```python
import torch

def _softmax(x, axis=-1):
    return torch.softmax(x, dim=axis)

def _gelu(x):
    return torch.nn.functional.gelu(x, approximate='tanh')

def _silu(x):
    return torch.nn.functional.silu(x)

def _sigmoid(x):
    return torch.sigmoid(x)

def _layernorm(x, axis=-1, eps=1e-05):
    m = x.mean(dim=axis, keepdim=True)
    v = x.var(dim=axis, keepdim=True, unbiased=False)
    return (x - m) / torch.sqrt(v + eps)

def _scatter_add(tgt, idx, src, axis=0):
    return tgt.clone().index_add_(axis, idx, src)

def _segment_sum(src, seg, n):
    out = torch.zeros((n,) + src.shape[1:], dtype=src.dtype)
    return out.index_add_(0, seg, src)

def _pad(x, pw):
    flat = tuple((v for pair in reversed(pw) for v in pair))
    return torch.nn.functional.pad(x, flat)
kernel_name = 'gated_mix__softmax_full_mha__mixer_gmlp__prompt'

def setup_inputs():

    _w = lambda a: (lambda t: t.to(torch.bfloat16) if t.is_floating_point() else t)(torch.as_tensor(a))

    def _A_setup():
        B, S, D = (1, 2048, 512)
        return {'x': _w((lambda *s: torch.randn(*s, dtype=torch.bfloat16) * 0.05)(B, S, D)), 'wqkv': _w((lambda *s: torch.randn(*s, dtype=torch.bfloat16) * 1.6)(D, 3 * D)), 'wo': _w((lambda *s: torch.randn(*s, dtype=torch.bfloat16) * 0.1)(D, D))}
    _A_in = _A_setup()

    def _B_setup():
        B, S, D, F = (1, 2048, 512, 1792)
        Fh = F // 2
        return {'x': _w((lambda *s: torch.randn(*s, dtype=torch.bfloat16) * 0.05)(B, S, D)), 'w_in': _w((lambda *s: torch.randn(*s, dtype=torch.bfloat16) * 0.8)(D, 2 * Fh)), 'w_sp': _w(0.01 * (lambda *s: torch.randn(*s, dtype=torch.bfloat16) * 0.8)(S, S)), 'b_sp': _w(1.0 + 0.01 * (lambda *s: torch.randn(*s, dtype=torch.bfloat16) * 0.05)(S)), 'w_out': _w((lambda *s: torch.randn(*s, dtype=torch.bfloat16) * 0.05)(Fh, D))}
    _B_in = _B_setup()
    return {'A_x': _A_in['x'], 'A_wqkv': _A_in['wqkv'], 'A_wo': _A_in['wo'], 'B_x': _B_in['x'], 'B_w_in': _B_in['w_in'], 'B_w_sp': _B_in['w_sp'], 'B_b_sp': _B_in['b_sp'], 'B_w_out': _B_in['w_out'], 'gate_w': _w((lambda *s: torch.randn(*s, dtype=torch.bfloat16) * 0.05)(512) * 16.0)}

def reference(A_x, A_wqkv, A_wo, B_x, B_w_in, B_w_sp, B_b_sp, B_w_out, gate_w):

    def _A_ref(x, wqkv, wo):
        B, S, D = x.shape
        H = 32
        Dh = D // H
        qkv = (lambda x, *d: x.permute(*d))((x @ wqkv).reshape(B, S, 3, H, Dh), 2, 0, 3, 1, 4)
        q, k, v = (qkv[0], qkv[1], qkv[2])
        scale = Dh ** (-0.5)
        scores = torch.einsum('bhqd,bhkd->bhqk', q, k) * scale
        p = _softmax(scores, axis=-1)
        o = torch.einsum('bhqk,bhkd->bhqd', p, v)
        return (lambda x, *d: x.permute(*d))(o, 0, 2, 1, 3).reshape(B, S, D) @ wo

    def _B_ref(x, w_in, w_sp, b_sp, w_out):
        B, S, D = x.shape
        F = w_in.shape[-1]
        Fh = F // 2
        z = _gelu(torch.einsum('bsd,df->bsf', x, w_in))
        z1 = z[..., :Fh].clone()
        z2 = _layernorm(z[..., Fh:], axis=-1)
        g = torch.einsum('ts,bsf->btf', w_sp, z2) + b_sp[None, :, None]
        return torch.einsum('bsf,fd->bsd', z1 * g, w_out)
    x = A_x
    g = _sigmoid((x * gate_w).sum(-1, keepdims=True))
    a = _A_ref(x, A_wqkv, A_wo)
    b = _B_ref(x, B_w_in, B_w_sp, B_b_sp, B_w_out)
    return g * a + (1 - g) * b
```

```python
import sys, os, subprocess, struct, ctypes
sys.path.insert(0, "cdna_kernels")
import numpy as np
from cdna_launch import AsmKernel, DeviceBuffer, with_harness_metadata, pack_ptr_kernargs, _hip, hip_check

HDR = """; @launch grid=(%d,1,1) block=(%d,1,1) lds=%d
.amdgcn_target "amdgcn-amd-amdhsa--gfx950"
.text
.globl mb_kernel
.p2align 8
.type mb_kernel,@function
mb_kernel:
"""
FTR = """
.section .rodata,"a"
.p2align 6
.amdhsa_kernel mb_kernel
  .amdhsa_next_free_vgpr %d
  .amdhsa_next_free_sgpr 96
  .amdhsa_accum_offset %d
  .amdhsa_group_segment_fixed_size 0
  .amdhsa_kernarg_size 16
  .amdhsa_user_sgpr_count 2
  .amdhsa_user_sgpr_kernarg_segment_ptr 1
  .amdhsa_system_sgpr_workgroup_id_x 1
  .amdhsa_float_denorm_mode_32 3
.end_amdhsa_kernel
"""

def build(name, body, init, grid, block, lds, iters, nvgpr=128):
    s = HDR % (grid, block, lds)
    s += """
    s_load_dwordx2 s[4:5], s[0:1], 0
    s_load_dwordx2 s[6:7], s[0:1], 8
    v_lshrrev_b32 v1, 6, v0
    s_nop 0
    v_readfirstlane_b32 s20, v1
    s_waitcnt lgkmcnt(0)
    s_mov_b32 s8, s4
    s_mov_b32 s9, s5
    s_mov_b32 s10, 0x100000
    s_mov_b32 s11, 0x20000
    s_mov_b32 s12, s6
    s_mov_b32 s13, s7
    s_mov_b32 s14, 0x4000000
    s_mov_b32 s15, 0x20000
"""
    s += init
    s += """
    s_barrier
    s_memtime s[16:17]
    s_waitcnt lgkmcnt(0)
    s_mov_b32 s21, %d
.p2align 6
L_loop:
""" % iters
    s += body
    s += """
    s_sub_u32 s21, s21, 1
    s_cmp_lg_u32 s21, 0
    s_cbranch_scc1 L_loop
    s_waitcnt vmcnt(0) lgkmcnt(0)
    s_memtime s[18:19]
    s_waitcnt lgkmcnt(0)
    s_sub_u32 s18, s18, s16
    s_mul_i32 s22, s2, %d
    s_add_u32 s22, s22, s20
    s_lshl_b32 s22, s22, 2
    v_mov_b32 v1, s18
    v_mov_b32 v2, s22
    buffer_store_dword v1, v2, s[8:11], 0 offen
    s_waitcnt vmcnt(0)
    s_endpgm
""" % (block // 64)
    s += FTR % (nvgpr, nvgpr)
    s = with_harness_metadata(s, "mb_kernel", 2)
    open(name + ".s", "w").write(s)
    r = subprocess.run(["clang", "-x", "assembler", "-target", "amdgcn-amd-amdhsa", "-mcpu=gfx950", name + ".s", "-o", name + ".co"], capture_output=True, text=True)
    if r.returncode != 0:
        print(r.stderr); raise SystemExit(1)
    return name + ".co"

_bufs = {}
def run(co, grid, block, lds):
    if not _bufs:
        _bufs['out'] = DeviceBuffer(1 << 20)
        _bufs['inp'] = DeviceBuffer.from_numpy((np.random.randn(1 << 24).astype(np.float32)))
    k = AsmKernel(co, "mb_kernel")
    ka = pack_ptr_kernargs([_bufs['out'].ptr, _bufs['inp'].ptr])
    res = None
    for it in range(3):
        k.launch((grid, 1, 1), (block, 1, 1), ka, lds)
        hip_check(_hip.hipDeviceSynchronize())
        res = _bufs['out'].to_numpy(np.uint32, (grid * block // 64,))
    k.unload()
    return res

def bench(name, body, init="", grid=256, block=256, lds=0, iters=200, nvgpr=128, per=1):
    co = build("gen_" + name, body, init, grid, block, lds, iters, nvgpr)
    if not os.path.exists('/dev/kfd'):
        print("built", name); return
    r = run(co, grid, block, lds)
    print("%-40s block=%4d  cyc/iter: min %.1f med %.1f max %.1f   per-unit(max) %.2f" % (name, block, r.min() / iters, np.median(r) / iters, r.max() / iters, r.max() / iters / per), flush=True)
```

```python
class Asm:
    def __init__(self):
        self.lines = []
        self.nlabel = 0
    def __call__(self, s):
        for l in s.split("\n"):
            l = l.rstrip()
            if l.strip():
                self.lines.append(l if (l.endswith(":") or l.startswith(".") or l.startswith(";")) else "    " + l.strip())
    def label(self, name):
        self.lines.append(name + ":")
    def newlabel(self, base):
        self.nlabel += 1
        return "%s_%d" % (base, self.nlabel)
    def text(self):
        return "\n".join(self.lines) + "\n"

def v(i, n=1):
    return "v%d" % i if n == 1 else "v[%d:%d]" % (i, i + n - 1)
def s(i, n=1):
    return "s%d" % i if n == 1 else "s[%d:%d]" % (i, i + n - 1)
def a(i, n=1):
    return "a%d" % i if n == 1 else "a[%d:%d]" % (i, i + n - 1)

import struct
def f32(x):
    return "0x%08x" % struct.unpack("<I", struct.pack("<f", x))[0]

def srd(A, d, lo, hi, nbytes):
    A("s_mov_b32 s%d, s%d" % (d, lo))
    A("s_mov_b32 s%d, s%d" % (d + 1, hi))
    A("s_mov_b32 s%d, 0x%x" % (d + 2, nbytes))
    A("s_mov_b32 s%d, 0x20000" % (d + 3))

def kdesc(name, vgpr, sgpr, accum):
    return """.p2align 6
.amdhsa_kernel %s
  .amdhsa_next_free_vgpr %d
  .amdhsa_next_free_sgpr %d
  .amdhsa_accum_offset %d
  .amdhsa_group_segment_fixed_size 0
  .amdhsa_kernarg_size 96
  .amdhsa_user_sgpr_count 2
  .amdhsa_user_sgpr_kernarg_segment_ptr 1
  .amdhsa_system_sgpr_workgroup_id_x 1
  .amdhsa_float_denorm_mode_32 3
.end_amdhsa_kernel
""" % (name, vgpr, sgpr, accum)

WS_Q    = 0x000000
WS_K    = 0x200000
WS_V    = 0x400000
WS_Z1   = 0x600000
WS_Z2N  = 0xA00000
WS_ACT  = 0xE00000
WS_WC   = 0x1400000
WS_G    = 0x1600000
WS_ST   = 0x1610000
WS_TS   = 0x1700000
WS_USED = 0x1800000
KA_X, KA_WQKV, KA_WO, KA_WIN, KA_WSP, KA_BSP, KA_WOUT, KA_GW, KA_OUT, KA_DBG, KA_WS = 0, 8, 16, 32, 40, 48, 56, 64, 72, 80, 88

STAMP_BASE = 76
def stamp(A, i, on=True):
    if on:
        A("s_memrealtime s[%d:%d]" % (STAMP_BASE + 2*i, STAMP_BASE + 2*i + 1))
def stamp_begin(A, on=True):
    if on:
        for i in range(1, 7):
            A("s_mov_b32 s%d, 0" % (STAMP_BASE + 2*i))
        stamp(A, 0)
        A("s_memtime s[94:95]")
def stamp_end(A, kern, swave, wsrd=16, on=True):
    if not on: return
    A("s_waitcnt vmcnt(0)")
    stamp(A, 7)
    A("s_memtime s[92:93]")
    A("s_waitcnt lgkmcnt(0)")
    A("s_sub_u32 s92, s92, s94")
    A("s_lshl_b32 s96, s2, 4\ns_add_u32 s96, s96, s%d\ns_lshl_b32 s96, s96, 6\ns_add_u32 s96, s96, 0x%x" % (swave, WS_TS + kern*0x40000))
    for i in range(9):
        A("v_mov_b32 v%d, s%d" % (4 + i, STAMP_BASE + 2*i))
    A("v_mov_b32 v3, 0")
    A("s_mov_b64 exec, 1")
    A("buffer_store_dwordx4 v[4:7], v3, %s, s96 offen" % s(wsrd, 4))
    A("buffer_store_dwordx4 v[8:11], v3, %s, s96 offen offset:16" % s(wsrd, 4))
    A("buffer_store_dword v12, v3, %s, s96 offen offset:32" % s(wsrd, 4))
    A("s_mov_b64 exec, -1")
```

```python
from asmlib import Asm, v, s, a, f32, srd, kdesc
from asmlib import KA_X, KA_WQKV, KA_WO, KA_WIN, KA_WSP, KA_BSP, KA_WOUT, KA_GW, KA_OUT, KA_DBG, KA_WS
WS_Q    = 0x000000
WS_K    = 0x200000
WS_V    = 0x400000
WS_Z1   = 0x600000
WS_Z2N  = 0xA00000
WS_ACT  = 0xE00000
WS_G    = 0x1600000
WS_ST   = 0x1610000
WS_FL   = 0x1690000
FL_EPOCH = WS_FL
FL_F0 = WS_FL + 0x1000
FL_F1 = WS_FL + 0x2000
FL_F3 = WS_FL + 0x3000
FL_F4 = WS_FL + 0x4000
FL_F5 = WS_FL + 0x5000
WS_TS   = 0x1700000
WS_USED = 0x1800000
NST = 14
SB = 64
class Stamps:
    def __init__(self, A, on): self.A, self.on = A, on
    def __call__(self, i, wait=False):
        if self.on:
            self.A("s_memrealtime s[%d:%d]" % (SB + 2*i, SB + 2*i + 1))
            if wait: self.A("s_waitcnt lgkmcnt(0)")
    def begin(self):
        if self.on:
            for i in range(1, NST): self.A("s_mov_b32 s%d, 0" % (SB + 2*i))
            self(0); self.A("s_memtime s[94:95]")
    def end(self, swave, wsrd=16):
        if not self.on: return
        A = self.A
        A("s_waitcnt vmcnt(0)")
        self(NST - 1)
        A("s_memtime s[92:93]")
        A("s_waitcnt lgkmcnt(0)")
        A("s_sub_u32 s92, s92, s94")
        A("s_lshl_b32 s96, s2, 4\ns_add_u32 s96, s96, s%d\ns_lshl_b32 s96, s96, 6\ns_add_u32 s96, s96, 0x%x" % (swave, WS_TS))
        for i in range(NST + 1):
            A("v_mov_b32 v%d, s%d" % (4 + i, SB + 2*i))
        A("v_mov_b32 v3, 0")
        A("s_mov_b64 exec, 1")
        for q in range(4):
            A("buffer_store_dwordx4 v[%d:%d], v3, %s, s96 offen offset:%d" % (4 + 4*q, 7 + 4*q, s(wsrd, 4), 16*q))
        A("s_mov_b64 exec, -1")
```

```python
from asmlib import *

LOG2E = 1.4426950408889634
QSCALE = 0.25 * LOG2E
GC1 = -2.0 * 0.7978845608028654 * LOG2E
GC2 = GC1 * 0.044715

def emit_gelu(A, base, n, t0, vc1, sc2, vone):
    for b in range(base, base + n, 8):
        for i in range(4):
            A("v_pk_mul_f32 %s, %s, %s" % (v(t0 + 2*i, 2), v(b + 2*i, 2), v(b + 2*i, 2)))
        for i in range(4):
            A("v_pk_fma_f32 %s, %s, %s, %s" % (v(t0 + 2*i, 2), v(t0 + 2*i, 2), s(sc2, 2), v(vc1, 2)))
        for i in range(4):
            A("v_pk_mul_f32 %s, %s, %s" % (v(t0 + 2*i, 2), v(t0 + 2*i, 2), v(b + 2*i, 2)))
        for i in range(8):
            A("v_exp_f32 %s, %s" % (v(t0 + i), v(t0 + i)))
        for i in range(4):
            A("v_pk_add_f32 %s, %s, %s" % (v(t0 + 2*i, 2), v(t0 + 2*i, 2), v(vone, 2)))
        for i in range(8):
            A("v_rcp_f32 %s, %s" % (v(t0 + i), v(t0 + i)))
        for i in range(4):
            A("v_pk_mul_f32 %s, %s, %s" % (v(b + 2*i, 2), v(b + 2*i, 2), v(t0 + 2*i, 2)))

def gen_p1(A, stamps=False):
    STAGE = 49152
    ACC = 64
    A(".p2align 8\n.type p1_kernel,@function\np1_kernel:")
    A("s_cmp_ge_u32 s2, 256\ns_cbranch_scc1 P1_END")
    stamp_begin(A, stamps)
    A("s_load_dwordx2 s[4:5], s[0:1], %d" % KA_X)
    A("s_load_dwordx2 s[6:7], s[0:1], %d" % KA_WQKV)
    A("s_load_dwordx2 s[36:37], s[0:1], %d" % KA_WIN)
    A("s_load_dwordx2 s[38:39], s[0:1], %d" % KA_GW)
    A("s_load_dwordx4 s[40:43], s[0:1], %d" % KA_DBG)
    A("v_lshrrev_b32 v2, 6, v0")
    A("v_and_b32 v1, 63, v0")
    A("v_readfirstlane_b32 s24, v2")
    A("s_and_b32 s3, s2, 7")
    A("s_lshr_b32 s29, s2, 3")
    A("s_waitcnt lgkmcnt(0)")
    srd(A, 8, 4, 5, 2048*512*2)
    srd(A, 16, 42, 43, WS_USED)
    srd(A, 20, 40, 41, 256)
    srd(A, 12, 6, 7, 512*1536*2)
    A("s_cmp_ge_u32 s29, 26\ns_cbranch_scc1 P1_SIDE")
    A("s_cmp_ge_u32 s29, 13\ns_cselect_b32 s25, 1, 0\ns_cselect_b32 s26, 13, 0")
    A("s_sub_u32 s26, s29, s26")
    A("s_lshl_b32 s3, s3, 1\ns_add_u32 s25, s25, s3")
    A("s_mov_b32 s27, 3072")
    A("s_lshl_b32 s35, s26, 9")
    A("s_cmp_lt_u32 s26, 6\ns_cbranch_scc1 P1_WSEL")
    A("s_mov_b32 s12, s36\ns_mov_b32 s13, s37\ns_mov_b32 s14, %d" % (512*1792*2))
    A("s_mov_b32 s27, 3584")
    A("s_sub_u32 s35, s35, 3072")
    A("P1_WSEL:")
    A("s_lshr_b32 s44, s24, 2")
    A("s_and_b32 s45, s24, 3")
    A("s_lshl_b32 s28, s26, 1\ns_add_u32 s28, s28, s44")
    A("v_lshrrev_b32 v11, 3, v1")
    A("v_and_b32 v12, 7, v1")
    A("v_lshrrev_b32 v13, 4, v1")
    A("v_xor_b32 v14, v12, v13")
    A("s_lshl_b32 s46, s25, 7\ns_lshl_b32 s47, s24, 4\ns_add_u32 s46, s46, s47")
    A("v_add_u32 v15, s46, v11")
    A("v_lshlrev_b32 v15, 10, v15")
    A("v_lshl_add_u32 v2, v14, 4, v15")
    A("v_xor_b32 v3, 64, v2")
    A("v_add_u32 v3, 8192, v3")
    A("v_and_b32 v14, 1, v13")
    A("v_lshlrev_b32 v14, 2, v14")
    A("v_xor_b32 v14, v12, v14")
    A("s_lshl_b32 s47, s24, 3")
    A("v_add_u32 v15, s47, v11")
    A("v_mul_lo_u32 v15, v15, s27")
    A("v_lshl_add_u32 v4, v14, 4, v15")
    A("v_add_u32 v4, s35, v4")
    A("s_lshl_b32 s30, s24, 11")
    A("s_lshl_b32 s31, s24, 10\ns_add_u32 s31, s31, 16384")
    A("s_lshl_b32 s34, s27, 6")
    A("s_mov_b32 s32, 0\ns_mov_b32 s33, 0")
    def dma(c):
        st = (c % 3) * STAGE
        A("s_add_u32 m0, s30, %d" % st)
        A("s_nop 0")
        A("buffer_load_dwordx4 v2, s[8:11], s32 offen lds")
        A("s_add_u32 m0, s30, %d" % (st + 1024))
        A("s_nop 0")
        A("buffer_load_dwordx4 v3, s[8:11], s32 offen lds")
        for d in range(4):
            A("s_add_u32 m0, s31, %d" % (st + d*8192 - d*128))
            A("s_nop 0")
            A("buffer_load_dwordx4 v4, s[12:15], s33 offen offset:%d lds" % (d*128))
        A("s_add_u32 s32, s32, 128\ns_add_u32 s33, s33, s34")
    dma(0); dma(1)
    A("v_and_b32 v11, 31, v1")
    A("s_lshl_b32 s46, s45, 5")
    A("v_add_u32 v11, s46, v11")
    A("v_lshrrev_b32 v12, 5, v1")
    A("v_bfe_u32 v14, v11, 1, 3")
    A("v_xor_b32 v14, v12, v14")
    A("v_lshlrev_b32 v14, 4, v14")
    A("v_lshl_add_u32 v5, v11, 7, v14")
    for i in range(1, 4):
        A("v_xor_b32 v%d, %d, v5" % (5 + i, 32*i))
    A("v_bfe_u32 v11, v1, 2, 2")
    A("v_lshl_add_u32 v14, v12, 3, v11")
    A("v_lshlrev_b32 v14, 7, v14")
    A("v_lshrrev_b32 v15, 1, v11")
    A("v_lshl_add_u32 v14, v15, 6, v14")
    A("v_and_b32 v15, 1, v13")
    A("v_lshl_add_u32 v14, v15, 5, v14")
    A("v_and_b32 v15, 1, v1")
    A("v_lshl_add_u32 v14, v15, 4, v14")
    A("v_bfe_u32 v15, v1, 1, 1")
    A("v_lshl_add_u32 v14, v15, 3, v14")
    A("s_lshl_b32 s46, s44, 14\ns_add_u32 s46, s46, 16384")
    A("v_add_u32 v9, s46, v14")
    A("v_xor_b32 v10, 64, v9")
    for i in range(64):
        A("v_mov_b32 v%d, 0" % (ACC + i))
    XF = [16, 20]; WF = [24, 40]
    def reads(sidx):
        b = sidx & 1
        A("ds_read_b128 %s, v%d" % (v(XF[b], 4), 5 + sidx))
        for u in range(4):
            for bb in range(2):
                A("ds_read_b64_tr_b16 %s, v%d offset:%d" % (v(WF[b] + 4*u + 2*bb, 2), 9 + (u & 1), (u >> 1)*8192 + sidx*2048 + bb*512))
    def mainloop(dform):
        for c in range(8):
            A("s_waitcnt vmcnt(%d)" % (6 if c < 7 else 0))
            A("s_barrier")
            if c in (0, 1, 2, 4):
                stamp(A, {0: 1, 1: 2, 2: 3, 4: 4}[c], stamps)
                if stamps: A("s_waitcnt lgkmcnt(0)")
            reads(0)
            if c + 2 < 8:
                dma(c + 2)
            for sidx in range(4):
                if sidx < 3:
                    reads(sidx + 1)
                    A("s_waitcnt lgkmcnt(9)")
                else:
                    A("s_waitcnt lgkmcnt(0)")
                    if c < 7:
                        inc = STAGE if (c % 3) != 2 else -2*STAGE
                        for r in range(5, 11):
                            A("v_add_u32 v%d, 0x%x, v%d" % (r, inc & 0xffffffff, r))
                b = sidx & 1
                for u in range(4):
                    if dform:
                        A("v_mfma_f32_32x32x16_bf16 %s, %s, %s, %s" % (v(ACC + 16*u, 16), v(XF[b], 4), v(WF[b] + 4*u, 4), v(ACC + 16*u, 16)))
                    else:
                        A("v_mfma_f32_32x32x16_bf16 %s, %s, %s, %s" % (v(ACC + 16*u, 16), v(WF[b] + 4*u, 4), v(XF[b], 4), v(ACC + 16*u, 16)))
    A("s_lshr_b32 s46, s28, 2\ns_cmp_eq_u32 s46, 2\ns_cbranch_scc1 P1_LOOPV")
    mainloop(False)
    A("s_branch P1_EPI")
    A("P1_LOOPV:")
    mainloop(True)
    A("P1_EPI:")
    stamp(A, 6, stamps)
    A("s_lshl_b32 s47, s25, 2\ns_add_u32 s47, s47, s45")
    A("s_mov_b32 s48, 1.0\ns_mov_b32 s49, 1.0")
    A("v_lshlrev_b32 v2, 4, v1")
    A("s_nop 7")
    A("s_cmp_ge_u32 s28, 12\ns_cbranch_scc1 P1_Z")
    A("s_lshl_b32 s50, s28, 19")
    A("s_lshl_b32 s51, s47, 10\ns_add_u32 s50, s50, s51")
    A("s_mov_b32 s51, 131072\ns_mov_b32 s52, 65536")
    A("s_cmp_ge_u32 s28, 4\ns_cbranch_scc1 P1_NOTQ")
    A("s_mov_b32 s48, %s\ns_mov_b32 s49, %s" % (f32(QSCALE), f32(QSCALE)))
    A("s_branch P1_STORE")
    A("P1_NOTQ:")
    A("s_cmp_ge_u32 s28, 8\ns_cbranch_scc1 P1_ISV")
    A("v_and_b32 v2, 0x33, v1")
    A("v_bfe_u32 v3, v1, 2, 1\nv_lshl_or_b32 v2, v3, 3, v2")
    A("v_bfe_u32 v3, v1, 3, 1\nv_lshl_or_b32 v2, v3, 2, v2")
    A("v_lshlrev_b32 v2, 4, v2")
    A("s_branch P1_STORE")
    A("P1_ISV:")
    A("v_and_b32 v2, 15, v1\nv_lshlrev_b32 v2, 4, v2")
    A("v_bfe_u32 v3, v1, 4, 1\nv_lshl_add_u32 v2, v3, 16, v2")
    A("v_lshrrev_b32 v3, 5, v1\nv_lshl_add_u32 v2, v3, 8, v2")
    A("s_mov_b32 s52, 512")
    A("s_branch P1_STORE")
    A("P1_Z:")
    A("s_mov_b32 s54, %s\ns_mov_b32 s55, %s" % (f32(GC2), f32(GC2)))
    A("v_mov_b32 v12, %s\nv_mov_b32 v13, %s" % (f32(GC1), f32(GC1)))
    A("v_mov_b32 v14, 1.0\nv_mov_b32 v15, 1.0")
    emit_gelu(A, ACC, 64, 16, 12, 54, 14)
    A("s_cmp_ge_u32 s28, 19\ns_cbranch_scc1 P1_Z2")
    A("s_mul_i32 s50, s47, 56\ns_sub_u32 s51, s28, 12\ns_lshl_b32 s51, s51, 3\ns_add_u32 s50, s50, s51")
    A("s_lshl_b32 s50, s50, 10\ns_add_u32 s50, s50, 0x%x" % WS_Z1)
    A("s_mov_b32 s51, 2048\ns_mov_b32 s52, 1024")
    A("P1_STORE:")
    for u in range(4):
        for h in range(2):
            b = ACC + 16*u + 8*h
            t = 16 + 4*((2*u + h) % 4)
            for i in range(4):
                A("v_pk_mul_f32 %s, %s, s[48:49]" % (v(b + 2*i, 2), v(b + 2*i, 2)))
            for i in range(4):
                A("v_cvt_pk_bf16_f32 v%d, v%d, v%d" % (t + i, b + 2*i, b + 2*i + 1))
            if h == 0:
                A("buffer_store_dwordx4 %s, v2, s[16:19], s50 offen" % v(t, 4))
            else:
                A("s_add_u32 s53, s50, s52")
                A("buffer_store_dwordx4 %s, v2, s[16:19], s53 offen" % v(t, 4))
                A("s_add_u32 s50, s50, s51")
    A("s_branch P1_FIN")
    A("P1_Z2:")
    A("v_mov_b32 v3, 0")
    A("buffer_load_dword v11, v3, s[20:23], 0 offen sc0 sc1")
    A("v_pk_add_f32 v[16:17], %s, %s" % (v(ACC, 2), v(ACC + 2, 2)))
    A("v_pk_mul_f32 v[18:19], %s, %s" % (v(ACC, 2), v(ACC, 2)))
    A("v_pk_fma_f32 v[18:19], %s, %s, v[18:19]" % (v(ACC + 2, 2), v(ACC + 2, 2)))
    for i in range(2, 32):
        A("v_pk_add_f32 v[16:17], v[16:17], %s" % v(ACC + 2*i, 2))
        A("v_pk_fma_f32 v[18:19], %s, %s, v[18:19]" % (v(ACC + 2*i, 2), v(ACC + 2*i, 2)))
    A("v_add_f32 v16, v16, v17")
    A("v_add_f32 v18, v18, v19")
    A("v_mov_b32 v17, v16\nv_mov_b32 v19, v18")
    A("s_nop 1")
    A("v_permlane32_swap_b32 v16, v17")
    A("v_permlane32_swap_b32 v18, v19")
    A("s_nop 1")
    A("v_add_f32 v16, v16, v17")
    A("v_add_f32 v18, v18, v19")
    A("s_mov_b32 s56, 0")
    A("P1_NONCE:")
    A("s_waitcnt vmcnt(0)")
    A("v_readfirstlane_b32 s57, v11")
    A("s_cmp_lg_u32 s57, 0\ns_cbranch_scc1 P1_GOTN")
    A("s_add_u32 s56, s56, 1\ns_cmp_ge_u32 s56, 0x20000\ns_cbranch_scc1 P1_GOTN")
    A("buffer_load_dword v11, v3, s[20:23], 0 offen sc0 sc1")
    A("s_branch P1_NONCE")
    A("P1_GOTN:")
    stamp(A, 5, stamps)
    A("v_mov_b32 v17, v11\nv_mov_b32 v19, v11")
    A("v_and_b32 v3, 31, v1\nv_lshlrev_b32 v3, 4, v3")
    A("s_lshl_b32 s50, s47, 9\ns_add_u32 s50, s50, 0x%x" % WS_ST)
    A("s_sub_u32 s58, s28, 19\ns_lshl_b32 s51, s58, 15\ns_add_u32 s51, s51, s50")
    A("s_mov_b32 exec_hi, 0")
    A("buffer_store_dwordx4 v[16:19], v3, s[16:19], s51 offen sc0 sc1")
    A("s_mov_b64 exec, -1")
    A("s_mov_b32 s56, 0")
    A("P1_POLL:")
    A("s_mov_b32 s51, s50")
    for j in range(7):
        A("buffer_load_dwordx4 %s, v3, s[16:19], s51 offen sc0 sc1" % v(24 + 4*j, 4))
        A("s_add_u32 s51, s51, 32768")
    A("s_waitcnt vmcnt(0)")
    A("v_xor_b32 v20, v11, v25")
    for j in range(7):
        for q in (1, 3):
            if j == 0 and q == 1: continue
            A("v_xor_b32 v21, v11, v%d\nv_or_b32 v20, v20, v21" % (24 + 4*j + q))
    A("v_cmp_ne_u32 vcc, 0, v20")
    A("s_add_u32 s56, s56, 1\ns_cmp_ge_u32 s56, 0x8000\ns_cbranch_scc1 P1_GOTS")
    A("s_nop 2")
    A("s_cbranch_vccnz P1_POLL")
    A("P1_GOTS:")
    for j in range(1, 7):
        A("v_add_f32 v24, v24, v%d\nv_add_f32 v26, v26, v%d" % (24 + 4*j, 26 + 4*j))
    A("v_mul_f32 v24, %s, v24" % f32(1.0/896))
    A("v_mul_f32 v26, %s, v26" % f32(1.0/896))
    A("v_fma_f32 v26, -v24, v24, v26")
    A("v_max_f32 v26, 0, v26")
    A("v_add_f32 v26, %s, v26" % f32(1e-5))
    A("v_rsq_f32 v26, v26")
    A("s_nop 0")
    A("v_mul_f32 v24, v24, v26")
    A("v_sub_f32 v24, 0, v24")
    A("v_mov_b32 v27, v26\nv_mov_b32 v25, v24")
    A("s_lshl_b32 s51, s24, 12\ns_add_u32 s51, s51, %d" % (2*STAGE))
    A("v_and_b32 v4, 31, v1\nv_bfe_u32 v5, v1, 1, 2\nv_lshrrev_b32 v6, 5, v1\nv_xor_b32 v5, v5, v6")
    A("v_lshlrev_b32 v5, 4, v5\nv_lshl_add_u32 v5, v4, 6, v5\nv_add_u32 v5, s51, v5")
    A("v_xor_b32 v6, 32, v5")
    A("v_bfe_u32 v7, v1, 2, 2\nv_lshrrev_b32 v8, 5, v1\nv_lshl_add_u32 v8, v8, 3, v7\nv_lshlrev_b32 v8, 6, v8")
    A("v_bfe_u32 v9, v1, 4, 1\nv_and_b32 v10, 1, v1\nv_lshl_add_u32 v9, v9, 1, v10")
    A("v_lshrrev_b32 v7, 1, v7\nv_xor_b32 v9, v9, v7\nv_lshl_add_u32 v8, v9, 4, v8")
    A("v_bfe_u32 v9, v1, 1, 1\nv_lshl_add_u32 v8, v9, 3, v8\nv_add_u32 v7, s51, v8")
    A("v_xor_b32 v8, 32, v7\nv_add_u32 v8, 256, v8")
    A("s_lshl_b32 s50, s58, 19\ns_lshl_b32 s51, s47, 11\ns_add_u32 s50, s50, s51\ns_add_u32 s50, s50, 0x%x" % WS_Z2N)
    for u in range(4):
        b = ACC + 16*u
        lo = (u & 1) * 2048
        for i in range(8):
            A("v_pk_fma_f32 %s, %s, v[26:27], v[24:25]" % (v(b + 2*i, 2), v(b + 2*i, 2)))
        for i in range(8):
            A("v_cvt_pk_bf16_f32 v%d, v%d, v%d" % (28 + i, b + 2*i, b + 2*i + 1))
        A("ds_write_b128 v5, v[28:31] offset:%d" % lo)
        A("ds_write_b128 v6, v[32:35] offset:%d" % lo)
        A("s_waitcnt lgkmcnt(0)")
        t = 36 + 8*(u & 1)
        for ks in range(2):
            A("ds_read_b64_tr_b16 %s, v7 offset:%d" % (v(t + 4*ks, 2), lo + ks*1024))
            A("ds_read_b64_tr_b16 %s, v8 offset:%d" % (v(t + 4*ks + 2, 2), lo + ks*1024))
        A("s_waitcnt lgkmcnt(0)")
        A("buffer_store_dwordx4 %s, v2, s[16:19], s50 offen" % v(t, 4))
        A("buffer_store_dwordx4 %s, v2, s[16:19], s50 offen offset:1024" % v(t + 4, 4))
        A("s_add_u32 s50, s50, 131072")
    A("s_branch P1_FIN")
    A("P1_SIDE:")
    A("s_cmp_ge_u32 s29, 28\ns_cbranch_scc1 P1_SIDE2")
    srd(A, 12, 38, 39, 1024)
    A("v_lshlrev_b32 v2, 4, v1")
    A("buffer_load_dwordx4 v[4:7], v2, s[12:15], 0 offen")
    A("s_lshl_b32 s3, s3, 1\ns_add_u32 s3, s3, s29\ns_sub_u32 s3, s3, 26\ns_lshl_b32 s3, s3, 7")
    A("s_lshl_b32 s25, s24, 4\ns_add_u32 s3, s3, s25")
    A("s_lshl_b32 s25, s3, 10")
    for r in range(16):
        A("buffer_load_dwordx4 %s, v2, s[8:11], s25 offen" % v(64 + 4*r, 4))
        A("s_add_u32 s25, s25, 1024")
    A("s_waitcnt vmcnt(0)")
    for r in range(16):
        A("v_mov_b32 v%d, 0" % (16 + r))
    for i in range(4):
        A("v_lshlrev_b32 v%d, 16, v%d\nv_and_b32 v%d, 0xffff0000, v%d" % (32 + 2*i, 4 + i, 33 + 2*i, 4 + i))
    for r in range(16):
        for i in range(4):
            A("v_lshlrev_b32 v40, 16, v%d\nv_and_b32 v41, 0xffff0000, v%d" % (64 + 4*r + i, 64 + 4*r + i))
            A("v_fmac_f32 v%d, v40, v%d\nv_fmac_f32 v%d, v41, v%d" % (16 + r, 32 + 2*i, 16 + r, 33 + 2*i))
    A("s_nop 1")
    for ctl in ("row_shr:1", "row_shr:2", "row_shr:4", "row_shr:8", "row_bcast:15 row_mask:0xa", "row_bcast:31 row_mask:0xc"):
        for r in range(16):
            A("v_add_f32_dpp v%d, v%d, v%d %s" % (16 + r, 16 + r, 16 + r, ctl))
    for r in range(16):
        A("v_mul_f32 v%d, %s, v%d" % (16 + r, f32(-LOG2E), 16 + r))
    for r in range(16):
        A("v_exp_f32 v%d, v%d" % (16 + r, 16 + r))
    for r in range(16):
        A("v_add_f32 v%d, 1.0, v%d" % (16 + r, 16 + r))
    for r in range(16):
        A("v_rcp_f32 v%d, v%d" % (16 + r, 16 + r))
    A("s_lshl_b32 s25, s3, 2\ns_add_u32 s25, s25, 0x%x" % WS_G)
    A("v_mov_b32 v2, 0")
    A("s_mov_b32 exec_lo, 0\ns_mov_b32 exec_hi, 0x80000000")
    for q in range(4):
        A("buffer_store_dwordx4 %s, v2, s[16:19], s25 offen offset:%d" % (v(16 + 4*q, 4), 16*q))
    A("s_mov_b64 exec, -1")
    A("s_branch P1_FIN")
    A("P1_SIDE2:")
    A("s_cmp_lg_u32 s2, 224\ns_cbranch_scc1 P1_FIN")
    A("s_cmp_lg_u32 s24, 0\ns_cbranch_scc1 P1_FIN")
    A("v_mov_b32 v2, 0")
    A("s_mov_b32 s25, 0x%x" % (WS_ST + 4))
    A("buffer_load_dword v3, v2, s[16:19], s25 offen sc0 sc1")
    A("s_waitcnt vmcnt(0)")
    A("v_add_u32 v3, 1, v3")
    A("v_max_u32 v3, 1, v3")
    A("s_mov_b64 exec, 1")
    A("buffer_store_dword v3, v2, s[20:23], 0 offen sc0 sc1")
    A("s_mov_b64 exec, -1")
    A("P1_FIN:")
    stamp_end(A, 0, 24, on=stamps)
    A("P1_END:")
    A("s_endpgm")
```

```python
from asmlib2 import *
from p1 import emit_gelu, LOG2E, QSCALE, GC1, GC2

KNAME = "gated_mix__softmax_full_mha__mixer_gmlp__prompt_kernel"
L_NONCE, L_CNTA, L_GO, L_CNTG, L_CNTKV, L_CNTR = 0, 16, 32, 48, 64, 80
L_X = 16384
L_WQ = 81920
L_G = 131072
P_X, P_WQKV, P_WO, P_WIN, P_WSP, P_BSP, P_WOUT = 36, 38, 40, 44, 46, 48, 50
P_GW, P_OUT, P_DBG, P_WS = 52, 54, 56, 58
SPIN_MAX = 0x20000

def gen(A, stamps=False, opt=None):
    opt = opt or {}
    ST = Stamps(A, stamps)
    VZ, VONE = 2, 3
    VL16 = 4
    def arrive(off):
        A("s_mov_b64 exec, 1")
        A("ds_add_u32 v%d, v%d offset:%d" % (VZ, VONE, off))
        A("s_mov_b64 exec, -1")
    def lds_wait(off, thr, vt, sleep=0):
        L = A.newlabel("LW")
        A("s_mov_b32 s34, 0")
        A(L + ":")
        if sleep: A("s_sleep %d" % sleep)
        A("ds_read_b32 v%d, v%d offset:%d" % (vt, VZ, off))
        A("s_waitcnt lgkmcnt(0)")
        A("v_readfirstlane_b32 s35, v%d" % vt)
        A("s_add_u32 s34, s34, 1\ns_cmp_ge_u32 s34, %d\ns_cbranch_scc1 %s_x" % (SPIN_MAX, L))
        A("s_cmp_lt_u32 s35, %s\ns_cbranch_scc1 %s" % (thr, L))
        A(L + "_x:")
    def set_flag(soff, vt):
        A("v_mov_b32 v%d, s27" % vt)
        A("s_mov_b64 exec, 1")
        A("buffer_store_dword v%d, v%d, s[16:19], %s offen sc0 sc1" % (vt, VZ, soff))
        A("s_mov_b64 exec, -1")
    def poll(vaddr, soff, vt, sleep=4, second=None):
        L = A.newlabel("PL")
        A("s_mov_b32 s34, 0")
        A(L + ":")
        A("buffer_load_dword v%d, v%d, s[16:19], %s offen sc0 sc1" % (vt, vaddr, soff))
        if second is not None:
            A("buffer_load_dword v%d, v%d, s[16:19], %s offen sc0 sc1" % (vt + 1, second, soff))
        A("s_waitcnt vmcnt(0)")
        A("v_xor_b32 v%d, s27, v%d" % (vt, vt))
        if second is not None:
            A("v_xor_b32 v%d, s27, v%d\nv_or_b32 v%d, v%d, v%d" % (vt + 1, vt + 1, vt, vt, vt + 1))
        A("v_cmp_ne_u32 vcc, 0, v%d" % vt)
        A("s_add_u32 s34, s34, 1\ns_cmp_ge_u32 s34, %d\ns_cbranch_scc1 %s_x" % (SPIN_MAX // 8, L))
        A("s_cbranch_vccz %s_x" % L)
        A("s_sleep %d" % sleep)
        A("s_branch %s" % L)
        A(L + "_x:")
    def nonce_load(vt):
        A("buffer_load_dword v%d, v%d, s[60:63], 0 offen sc0 sc1" % (vt, VZ))
    def nonce_get(vt, cnt=0):
        L = A.newlabel("NG")
        A("s_waitcnt vmcnt(%d)" % cnt)
        A("v_readfirstlane_b32 s27, v%d" % vt)
        A("s_mov_b32 s34, 0")
        A(L + ":")
        A("s_cmp_lg_u32 s27, 0\ns_cbranch_scc1 %s_x" % L)
        A("s_add_u32 s34, s34, 1\ns_cmp_ge_u32 s34, %d\ns_cbranch_scc1 %s_x" % (SPIN_MAX // 8, L))
        nonce_load(vt)
        A("s_waitcnt vmcnt(0)")
        A("v_readfirstlane_b32 s27, v%d" % vt)
        A("s_branch %s" % L)
        A(L + "_x:")

    VD = (5, 6, 7, 8)
    VW = (9, 10, 11, 12)
    VX = (13, 14)
    VXB = 15
    def w_setup(t0):
        A("v_lshrrev_b32 v%d, 3, v1\nv_mul_lo_u32 v%d, v%d, s28" % (t0, t0, t0))
        A("v_bfe_u32 v%d, v1, 4, 1\nv_lshlrev_b32 v%d, 1, v%d\nv_and_b32 v%d, 7, v1\nv_xor_b32 v%d, v%d, v%d" % (t0+1, t0+1, t0+1, t0+2, t0+1, t0+1, t0+2))
        A("v_lshl_add_u32 v%d, v%d, 4, v%d\nv_add_u32 v%d, s29, v%d" % (t0, t0+1, t0, VD[0], t0))
        A("s_lshl_b32 s32, s28, 3\ns_sub_u32 s32, s32, 1024")
        A("v_xor_b32 v%d, 64, v%d\nv_add_u32 v%d, s32, v%d" % (VD[1], VD[0], VD[1], VD[1]))
        A("s_lshl_b32 s32, s32, 1")
        A("v_add_u32 v%d, s32, v%d\nv_add_u32 v%d, s32, v%d" % (VD[2], VD[0], VD[3], VD[1]))
    def wr_setup(t0, sbase):
        A("v_lshrrev_b32 v%d, 4, v1\nv_bfe_u32 v%d, v1, 2, 2\nv_lshl_add_u32 v%d, v%d, 3, v%d\nv_lshlrev_b32 v%d, 7, v%d" % (t0, t0+1, t0, t0, t0+1, t0, t0))
        A("v_bfe_u32 v%d, v1, 3, 2\nv_lshl_add_u32 v%d, v%d, 5, v%d" % (t0+1, t0, t0+1, t0))
        A("v_and_b32 v%d, 3, v1\nv_lshl_add_u32 v%d, v%d, 3, v%d\nv_add_u32 v%d, %s, v%d" % (t0+1, t0, t0+1, t0, VW[0], sbase, t0))
        for m in range(1, 4):
            A("v_xor_b32 v%d, %d, v%d" % (VW[m], 32*m, VW[0]))
    def xr_setup(t0):
        A("v_and_b32 v%d, 15, v1\nv_lshrrev_b32 v%d, 4, v1\nv_bfe_u32 v%d, v1, 1, 3\nv_xor_b32 v%d, v%d, v%d" % (t0, t0+1, t0+2, t0+1, t0+1, t0+2))
        A("v_lshlrev_b32 v%d, 4, v%d\nv_lshl_add_u32 v%d, v%d, 7, v%d" % (t0+1, t0+1, VXB, t0, t0+1))
    def w_dma_list(slot):
        return ["buffer_load_dwordx4 v%d, s[8:11], s31 offen offset:%d lds" % (VD[q], 1024*q) for q in range(4)]
    def soff(slot):
        return 4096*(slot & 1) + (32768 if slot < 2 else 0)
    def w_dma(slot, wrap=True):
        A("s_add_u32 m0, s30, %d" % (soff(slot) - 32768))
        A("s_nop 0")
        for l in w_dma_list(slot): A(l)
        w_adv(wrap)
    def w_adv(wrap=True):
        A("s_add_u32 s31, s31, s29")
        if wrap:
            A("s_cmp_ge_u32 s31, s33\ns_cselect_b32 s31, 0, s31")
    def w_reads(dst, slot):
        return ["ds_read_b64_tr_b16 %s, v%d offset:%d" % (v(dst + 4*m + 2*b, 2), VW[m], soff(slot) + 512*b) for m in range(4) for b in range(2)]

    ACC = 128
    A(".p2align 8\n.type %s,@function\n%s:" % (KNAME, KNAME))
    A("s_cmp_ge_u32 s2, 256\ns_cbranch_scc1 L_END")
    ST.begin()
    A("s_load_dwordx16 s[36:51], s[0:1], 0")
    A("s_load_dwordx8 s[52:59], s[0:1], 64")
    A("v_lshrrev_b32 v5, 6, v0")
    A("v_and_b32 v1, 63, v0")
    A("v_readfirstlane_b32 s24, v5")
    A("s_and_b32 s3, s2, 7\ns_lshr_b32 s4, s2, 3")
    A("s_lshr_b32 s25, s3, 1\ns_lshl_b32 s25, s25, 3\ns_lshr_b32 s5, s4, 2\ns_add_u32 s25, s25, s5")
    A("s_and_b32 s26, s3, 1\ns_lshl_b32 s26, s26, 2\ns_and_b32 s5, s4, 3\ns_add_u32 s26, s26, s5")
    A("v_mov_b32 v%d, 0\nv_mov_b32 v%d, 1\nv_lshlrev_b32 v%d, 4, v1" % (VZ, VONE, VL16))
    A("s_and_b32 s6, s25, 3")
    A("s_mov_b32 s27, 0")
    A("s_waitcnt lgkmcnt(0)")
    srd(A, 8, P_WQKV, P_WQKV + 1, 512*1536*2)
    srd(A, 12, P_X, P_X + 1, 2048*512*2)
    srd(A, 16, P_WS, P_WS + 1, WS_USED)
    srd(A, 60, P_DBG, P_DBG + 1, 256)
    A("s_cmp_ge_u32 s24, 4\ns_cbranch_scc1 L_GSTART")
    A("s_setprio 1")
    A("s_cmp_lg_u32 s24, 3\ns_cbranch_scc1 L_NOA3")
    A("v_mov_b32 v16, 0\nv_mov_b32 v17, 0\nv_mov_b32 v18, 0\nv_mov_b32 v19, 0")
    A("ds_write_b128 v%d, v[16:19]" % VL16)
    A("s_cmp_lg_u32 s2, 0\ns_cbranch_scc1 L_NOLEAD")
    A("s_mov_b32 s31, 0x%x" % FL_EPOCH)
    A("buffer_load_dword v16, v%d, s[16:19], s31 offen sc0 sc1" % VZ)
    A("s_mov_b32 s32, 0x9e3779b1")
    A("s_waitcnt vmcnt(0)")
    A("v_mul_lo_u32 v16, v16, s32")
    A("v_add_u32 v16, 0x7f4a7c15, v16")
    A("v_max_u32 v16, 1, v16")
    A("s_mov_b64 exec, 1")
    A("buffer_store_dword v16, v%d, s[60:63], 0 offen sc0 sc1" % VZ)
    A("buffer_store_dword v16, v%d, s[16:19], s31 offen sc0 sc1" % VZ)
    A("s_mov_b64 exec, -1")
    A("L_NOLEAD:")
    if opt.get("codepf", 1):
        A("s_getpc_b64 s[22:23]")
        A("L_PC:")
        A("s_sub_u32 s22, s22, L_PC-%s\ns_subb_u32 s23, s23, 0" % KNAME)
        A("v_and_b32 v20, 7, v1\ns_lshl_b32 s32, s4, 3\nv_add_u32 v20, s32, v20\nv_lshlrev_b32 v20, 7, v20")
        A("v_min_u32 v20, L_END-%s, v20" % KNAME)
        A("global_load_dword v6, v20, s[22:23]")
    A("L_NOA3:")
    QA = 128
    XQ, WQ = (16, 72), (48, 104)
    A("s_mov_b32 s30, %d" % L_WQ)
    wr_setup(16, "s30"); xr_setup(16)
    A("s_lshl_b32 s32, s24, 5\nv_xor_b32 v%d, s32, v%d" % (VW[1], VW[0]))
    for i in range(48): A("v_mov_b32 v%d, 0" % (QA + i))
    for b in range(56): A("v_mov_b32 v%d, 0" % (XQ[1] + b))
    A("s_lshl_b32 s6, s6, 1\ns_mov_b32 s33, 0\ns_mov_b32 s5, 0")
    def q_mfma(b, k):
        mat, n, p = k >> 3, (k >> 1) & 3, k & 1
        c = v(QA + 16*mat + 4*n, 4)
        xf, wf = v(XQ[b] + 8*n + 4*p, 4), v(WQ[b] + 8*mat + 4*p, 4)
        A("v_mfma_f32_16x16x32_bf16 %s, %s, %s, %s" % ((c, xf, wf, c) if mat == 2 else (c, wf, xf, c)))
    A("s_waitcnt lgkmcnt(0)")
    A(".p2align 3")
    A("L_QLOOP:")
    for b in range(2):
        A("s_lshl_b32 s32, s6, 13\ns_add_u32 s32, s32, %d" % L_X)
        A("v_add_u32 v%d, s32, v%d\nv_xor_b32 v%d, 64, v%d\nv_add_u32 v%d, s33, v%d" % (VX[0], VXB, VX[1], VX[0], VW[0], VW[1]))
        A("s_add_u32 s6, s6, 1\ns_and_b32 s6, s6, 7")
        A("s_add_u32 s33, s33, 24576\ns_cmp_eq_u32 s33, %d\ns_cselect_b32 s33, 0, s33" % (3*24576))
        A("s_barrier")
        rd = ["ds_read_b64_tr_b16 %s, v%d offset:%d" % (v(WQ[b] + 8*mat + 4*p + 2*h, 2), VW[0], 8192*mat + 4096*p + 512*h) for mat in range(3) for p in range(2) for h in range(2)]
        rd += ["ds_read_b128 %s, v%d offset:%d" % (v(XQ[b] + 8*n + 4*p, 4), VX[p], 2048*n) for n in range(4) for p in range(2)]
        A(".p2align 3")
        for k in range(24):
            if k < 20:
                if k == 14: A("s_waitcnt lgkmcnt(8)\ns_nop 0")
                A(rd[k])
            q_mfma(b ^ 1, k)
        A("s_waitcnt lgkmcnt(0)")
        if b == 0:
            A("s_cmp_lg_u32 s5, 3\ns_cbranch_scc1 L_QNN")
            nonce_load(5)
            A("L_QNN:")
            if stamps:
                A("s_cmp_lg_u32 s5, 0\ns_cbranch_scc1 L_QST"); ST(1, True); A("L_QST:")
    A("s_add_u32 s5, s5, 1\ns_cmp_lt_u32 s5, 4\ns_cbranch_scc1 L_QLOOP")
    A("s_barrier")
    for k in range(24): q_mfma(1, k)
    ST(2)
    A("v_and_b32 v16, 15, v1\nv_lshlrev_b32 v16, 4, v16\nv_bfe_u32 v18, v1, 4, 1\nv_lshl_add_u32 v16, v18, 21, v16")
    A("v_lshrrev_b32 v19, 5, v1\nv_lshl_add_u32 v16, v19, 9, v16")
    A("v_and_b32 v17, 3, v1\nv_bfe_u32 v20, v1, 2, 1\nv_lshl_or_b32 v17, v20, 3, v17\nv_bfe_u32 v20, v1, 3, 1\nv_lshl_or_b32 v17, v20, 2, v17")
    A("v_lshlrev_b32 v17, 4, v17\nv_lshl_add_u32 v17, v18, 9, v17\nv_lshl_add_u32 v17, v19, 8, v17")
    A("s_lshl_b32 s7, s26, 2\ns_add_u32 s7, s7, s24")
    A("s_lshl_b32 s31, s7, 16\ns_lshl_b32 s32, s25, 11\ns_add_u32 s31, s31, s32\ns_add_u32 s32, s31, 0x%x" % WS_V)
    A("s_mov_b32 s20, %s\ns_mov_b32 s21, s20" % f32(QSCALE))
    for n in range(4):
        T = 24 + 4*n
        c, d = QA + 4*n, QA + 16 + 4*n
        A("v_pk_mul_f32 %s, %s, s[20:21]\nv_pk_mul_f32 %s, %s, s[20:21]" % (v(c, 2), v(c, 2), v(c + 2, 2), v(c + 2, 2)))
        A("v_cvt_pk_bf16_f32 v%d, v%d, v%d\nv_cvt_pk_bf16_f32 v%d, v%d, v%d" % (T + 2, d, d + 1, T + 3, d + 2, d + 3))
        A("v_cvt_pk_bf16_f32 v%d, v%d, v%d\nv_cvt_pk_bf16_f32 v%d, v%d, v%d" % (T, c, c + 1, T + 1, c + 2, c + 3))
        A("s_nop 1")
        A("v_permlane16_swap_b32 v%d, v%d\nv_permlane16_swap_b32 v%d, v%d" % (T, T + 2, T + 1, T + 3))
        A("buffer_store_dwordx4 %s, v16, s[16:19], s31 offen offset:%d sc1" % (v(T, 4), 1024*(n >> 1) + 256*(n & 1)))
    for mp in range(2):
        T = 40 + 4*mp
        c = QA + 32 + 8*mp
        for i in range(4): A("v_cvt_pk_bf16_f32 v%d, v%d, v%d" % (T + i, c + 2*i, c + 2*i + 1))
        A("s_nop 1")
        A("v_permlane16_swap_b32 v%d, v%d\nv_permlane16_swap_b32 v%d, v%d" % (T, T + 2, T + 1, T + 3))
        A("buffer_store_dwordx4 %s, v17, s[16:19], s32 offen offset:%d sc1" % (v(T, 4), 1024*mp))
    nonce_get(5, 6)
    A("s_lshl_b32 s31, s7, 7\ns_lshl_b32 s32, s25, 2\ns_add_u32 s31, s31, s32\ns_add_u32 s31, s31, 0x%x" % FL_F1)
    A("s_waitcnt vmcnt(0)")
    set_flag("s31", 17)
    ST(3)
    A("s_lshl_b32 s25, s3, 2\ns_lshr_b32 s5, s4, 3\ns_add_u32 s25, s25, s5\ns_and_b32 s26, s4, 7")
    A("v_and_b32 v18, 31, v1\nv_lshlrev_b32 v18, 2, v18")
    A("s_lshl_b32 s31, s25, 7\ns_add_u32 s31, s31, 0x%x" % FL_F1)
    poll(18, "s31", 20, sleep=opt.get("sl1", 3))
    XF, WF = (16, 32), (48, 64)
    def x_reads(dst, st):
        return ["ds_read_b128 %s, v%d offset:%d" % (v(dst + 4*n, 4), VX[st & 1], 2048*n + 8192*(st >> 1)) for n in range(4)]
    def x_addr():
        A("s_lshl_b32 s32, s6, 14\ns_add_u32 s32, s32, %d" % L_X)
        A("v_add_u32 v%d, s32, v%d\nv_xor_b32 v%d, 64, v%d" % (VX[0], VXB, VX[1], VX[0]))
        A("s_add_u32 s6, s6, 1\ns_and_b32 s6, s6, 3")
    def early_loop(R, name):
        A("s_waitcnt vmcnt(%d)" % (4*(R - 1)))
        for l in x_reads(XF[0], 0) + w_reads(WF[0], 0): A(l)
        A("s_waitcnt lgkmcnt(0)")
        w_dma(0)
        A("s_mov_b32 s5, 0")
        A(".p2align 3")
        A(name + ":")
        for st in range(4):
            b, nb = st & 1, (st + 1) & 1
            if st == 3:
                A("s_cmp_eq_u32 s5, 2\ns_cselect_b32 s10, 0, s10")
                x_addr()
            A("s_waitcnt vmcnt(%d)" % (4*(R - 1)))
            rd = w_reads(WF[nb], (st + 1) % R)
            xr = x_reads(XF[nb], (st + 1) & 3)
            rd = xr[:2] + rd[:2] + xr[2:] + rd[2:]
            dm = w_dma_list((st + 1) % R)
            A(".p2align 3")
            for k in range(16):
                m, n = k >> 2, k & 3
                c = v(ACC + 16*m + 4*n, 4)
                A("v_mfma_f32_16x16x32_bf16 %s, %s, %s, %s" % (c, v(WF[b] + 4*m, 4), v(XF[b] + 4*n, 4), c))
                if k < 6:
                    A(rd[2*k]); A(rd[2*k + 1])
                if k == 10:
                    A("s_add_u32 m0, s30, %d" % (soff((st + 1) % R) - 32768))
                    A(".p2align 3")
                if k == 11:
                    A("s_waitcnt lgkmcnt(0)\ns_nop 0")
                if k >= 12:
                    A(dm[k - 12])
            w_adv()
        A("s_add_u32 s5, s5, 1\ns_cmp_lt_u32 s5, 4\ns_cbranch_scc1 %s" % name)
    A("L_ATT:")
    ST(4)
    S = (16, 32); O = (48, 64); NM = (80, 96)
    Q = (112, 116); KF = (120, 124); K0 = 128; VF = (132, 140)
    IDX, KA, VA = 148, 149, 150
    A("s_lshl_b32 s7, s26, 2\ns_add_u32 s7, s7, s24")
    A("s_lshl_b32 s28, s25, 16")
    A("s_lshl_b32 s29, s7, 11\ns_add_u32 s29, s29, s28")
    A("buffer_load_dwordx4 %s, v%d, s[16:19], s29 offen sc1" % (v(Q[0], 4), VL16))
    A("buffer_load_dwordx4 %s, v%d, s[16:19], s29 offen offset:1024 sc1" % (v(Q[1], 4), VL16))
    A("s_add_u32 s30, s28, 0x%x" % WS_K)
    A("buffer_load_dwordx4 %s, v%d, s[16:19], s30 offen sc1" % (v(K0, 4), VL16))
    A("s_lshl_b32 s33, s24, 11")
    A("s_add_u32 s30, s30, s33\ns_add_u32 s31, s30, 0x%x" % (WS_V - WS_K))
    def kv_dma(first=False):
        if first:
            A("s_cmp_eq_u32 s24, 0\ns_cselect_b32 s32, 1024, 0\ns_add_u32 m0, s33, s32\ns_add_u32 s32, s32, s30")
            A("buffer_load_dwordx4 v%d, s[16:19], s32 offen sc1 lds" % VL16)
            A("s_mov_b32 m0, s33\ns_nop 0")
        else:
            A("s_mov_b32 m0, s33\ns_nop 0")
            A("buffer_load_dwordx4 v%d, s[16:19], s30 offen sc1 lds" % VL16)
        A("buffer_load_dwordx4 v%d, s[16:19], s30 offen offset:1024 sc1 lds" % VL16)
        A("s_add_u32 m0, s33, 8192\ns_add_u32 s30, s30, 8192")
        A("buffer_load_dwordx4 v%d, s[16:19], s31 offen sc1 lds" % VL16)
        A("buffer_load_dwordx4 v%d, s[16:19], s31 offen offset:1024 sc1 lds" % VL16)
        A("s_add_u32 s31, s31, 8192\ns_add_u32 s33, s33, 16384")
    kv_dma(True)
    A("v_mov_b32 v%d, 0xdddddddd" % IDX)
    A("s_mov_b32 exec_lo, 0x00110000\ns_mov_b32 exec_hi, 0x00110000")
    A("v_mov_b32 v5, 0x3f803f80")
    A("s_mov_b32 exec_lo, 0xffeeffff\ns_mov_b32 exec_hi, 0xffeeffff")
    A("v_mov_b32 v5, 0")
    A("s_mov_b64 exec, -1")
    for i in range(16): A("v_mov_b32 v%d, v5" % (VF[0] + i))
    A("s_mov_b32 s22, 0x0000ffff\ns_mov_b32 s23, 0x0000ffff")
    A("s_waitcnt vmcnt(4)")
    for sd in range(2):
        A("v_mfma_f32_32x32x16_bf16 %s, %s, %s, 0" % (v(S[sd], 16), v(K0, 4), v(Q[sd], 4)))
    A("s_nop 15")
    for sd in range(2):
        A("v_max3_f32 v%d, v%d, v%d, v%d" % (6 + sd, S[sd], S[sd] + 1, S[sd] + 2))
        for i in range(3, 15, 2):
            A("v_max3_f32 v%d, v%d, v%d, v%d" % (6 + sd, 6 + sd, S[sd] + i, S[sd] + i + 1))
        A("v_max_f32 v%d, v%d, v%d" % (6 + sd, 6 + sd, S[sd] + 15))
    A("s_mov_b32 s20, 0")
    A("s_mov_b32 s21, 8")
    A("s_mov_b32 s6, 1")
    A("s_waitcnt vmcnt(0)")
    arrive(L_CNTKV)
    lds_wait(L_CNTKV, 4, 5)
    A("L_SETMAX:")
    A("v_mov_b32 v8, v6\nv_mov_b32 v9, v7\ns_nop 1")
    A("v_permlane32_swap_b32 v6, v8\nv_permlane32_swap_b32 v7, v9\ns_nop 1")
    A("v_max_f32 v6, v6, v8\nv_max_f32 v7, v7, v9\nv_sub_f32 v6, 0, v6\nv_sub_f32 v7, 0, v7")
    A("v_mov_b32 v%d, v%d" % (KA, VL16))
    A("v_and_b32 v8, 15, v1\nv_lshlrev_b32 v8, 4, v8\nv_lshrrev_b32 v9, 5, v1\nv_lshl_add_u32 v8, v9, 8, v8")
    A("v_add_u32 v%d, 0x2000, v8" % VA)
    A("s_mov_b64 exec, s[22:23]")
    A("ds_read_b128 %s, v%d" % (v(VF[0], 4), VA))
    A("ds_read_b128 %s, v%d offset:512" % (v(VF[0] + 4, 4), VA))
    A("s_mov_b64 exec, -1")
    for sd in range(2):
        for i in range(16):
            A("v_mov_b32 v%d, v%d\nv_mov_b32 v%d, 0" % (NM[sd] + i, 6 + sd, O[sd] + i))
    for i in range(4): A("v_mov_b32 v%d, v%d" % (KF[0] + i, K0 + i))
    for i in range(8): A("v_mov_b32 v%d, 0" % (S[1] + 8 + i))
    A("s_mov_b64 exec, s[22:23]")
    for i in range(4): A("v_mov_b32 v%d, 0" % (VF[1] + 4 + i))
    A("s_mov_b64 exec, -1")
    A("v_mfma_f32_32x32x16_bf16 %s, %s, %s, %s" % (v(S[0], 16), v(K0, 4), v(Q[0], 4), v(NM[0], 16)))
    A("s_nop 11")
    ST(5, True)
    A("s_mov_b32 s5, 0")
    A(".p2align 3")
    A("L_ALOOP:")
    def ex(sd, a_, b_):
        for i in range(a_, b_): A("v_exp_f32 v%d, v%d" % (S[sd] + i, S[sd] + i))
    def sm(sd, vf, half):
        A("v_smfmac_f32_32x32x32_bf16 %s, %s, %s, v%d" % (v(O[sd], 16), v(vf + 4*half, 4), v(S[sd] + 8*half, 8), IDX))
    for t in range(8):
        kc, kn = KF[t & 1], KF[(t + 1) & 1]
        vc, vn = VF[t & 1], VF[(t + 1) & 1]
        noff = (t + 1)*1024 if t < 7 else 16384
        ex(0, 0, 2)
        sm(1, vn, 1)
        if t == 7:
            A("v_readfirstlane_b32 s35, v5")
            A("s_cmp_ge_u32 s35, s21\ns_cbranch_scc1 L_KVOK")
            lds_wait(L_CNTKV, "s21", 5)
            A("L_KVOK:")
            A("s_add_u32 s21, s21, 4")
            A(".p2align 3")
        ex(0, 2, 5)
        A("s_waitcnt lgkmcnt(0)")
        A("v_mfma_f32_32x32x16_bf16 %s, %s, %s, %s" % (v(S[1], 16), v(kc, 4), v(Q[1], 4), v(NM[1], 16)))
        A("ds_read_b128 %s, v%d offset:%d" % (v(kn, 4), KA, noff))
        ex(0, 5, 6)
        A("s_mov_b64 exec, s[22:23]")
        A("ds_read_b128 %s, v%d offset:%d" % (v(vn, 4), VA, noff))
        A("ds_read_b128 %s, v%d offset:%d" % (v(vn + 4, 4), VA, noff + 512))
        A("s_mov_b64 exec, -1")
        ex(0, 6, 11)
        sm(0, vc, 0)
        ex(0, 11, 16)
        ex(1, 0, 1)
        if t == 6:
            A("ds_read_b32 v5, v%d offset:%d" % (VZ, L_CNTKV))
        ex(1, 1, 3)
        sm(0, vc, 1)
        if t == 5:
            A("s_waitcnt vmcnt(0)")
            arrive(L_CNTKV)
            A(".p2align 3")
        if t == opt.get("kvt", 1):
            A("s_cmp_ge_u32 s6, 8\ns_cbranch_scc1 L_NODMA")
            A("s_cmp_lg_u32 s6, 1\ns_cbranch_scc1 L_XFREE")
            lds_wait(L_CNTG, 4, 5)
            A("L_XFREE:")
            kv_dma()
            A("s_add_u32 s6, s6, 1")
            A("L_NODMA:")
            A(".p2align 3")
        ex(1, 3, 6)
        A("s_waitcnt lgkmcnt(0)")
        A("v_mfma_f32_32x32x16_bf16 %s, %s, %s, %s" % (v(S[0], 16), v(kn, 4), v(Q[0], 4), v(NM[0], 16)))
        ex(1, 6, 10)
        if t == 7:
            A("v_add_u32 v%d, 0x4000, v%d\nv_add_u32 v%d, 0x4000, v%d" % (KA, KA, VA, VA))
        sm(1, vc, 0)
        ex(1, 10, 16)
        if t < 7: A("s_nop 0\ns_nop 0")
    A("s_add_u32 s5, s5, 1\ns_cmp_lt_u32 s5, 8\ns_cbranch_scc1 L_ALOOP")
    sm(1, VF[1], 1)
    ST(6)
    A("s_lshl_b32 s31, s7, 7\ns_add_u32 s31, s31, 0x%x" % FL_F0)
    poll(VZ, "s31", 5)
    A("v_and_b32 v5, 31, v1\nv_lshlrev_b32 v5, 2, v5\ns_lshl_b32 s31, s7, 8\ns_add_u32 s31, s31, 0x%x" % WS_G)
    A("buffer_load_dword v10, v5, s[16:19], s31 offen sc1")
    A("buffer_load_dword v11, v5, s[16:19], s31 offen offset:128 sc1")
    A("s_waitcnt lgkmcnt(0)")
    A("s_nop 7")
    A("v_add_f32 v5, abs(v%d), abs(v%d)" % (O[0] + 8, O[1] + 8))
    for sd in range(2):
        for i in range(8): A("v_add_f32 v5, v5, abs(v%d)" % (O[sd] + i))
    A("v_mov_b32 v6, 0x207")
    A("v_cmp_class_f32 vcc, v5, v6")
    A("s_cmp_lg_u32 s20, 0\ns_cbranch_scc1 L_AFIN")
    A("s_nop 2")
    A("s_cbranch_vccz L_AFIN")
    A("s_mov_b32 s20, 1\ns_mov_b32 s21, 0")
    A("v_mov_b32 v6, 0xff800000\nv_mov_b32 v7, 0xff800000")
    for i in range(4): A("v_mov_b32 v%d, v%d" % (KF[0] + i, K0 + i))
    A("s_mov_b32 s5, 1\ns_nop 1")
    A("L_MAXL:")
    for sd in range(2):
        A("v_mfma_f32_32x32x16_bf16 %s, %s, %s, 0" % (v(S[sd], 16), v(KF[0], 4), v(Q[sd], 4)))
    A("s_lshr_b32 s32, s5, 3\ns_lshl_b32 s32, s32, 14\ns_and_b32 s35, s5, 7\ns_lshl_b32 s35, s35, 10\ns_add_u32 s32, s32, s35")
    A("v_add_u32 v%d, s32, v%d" % (KA, VL16))
    A("ds_read_b128 %s, v%d" % (v(KF[0], 4), KA))
    A("s_nop 15")
    for sd in range(2):
        for i in range(0, 16, 2):
            A("v_max3_f32 v%d, v%d, v%d, v%d" % (6 + sd, 6 + sd, S[sd] + i, S[sd] + i + 1))
    A("s_waitcnt lgkmcnt(0)")
    A("s_add_u32 s5, s5, 1\ns_cmp_lt_u32 s5, 65\ns_cbranch_scc1 L_MAXL")
    A("s_branch L_SETMAX")
    A("L_AFIN:")
    A("v_rcp_f32 v5, v%d\nv_rcp_f32 v6, v%d" % (O[0] + 8, O[1] + 8))
    A("v_and_b32 v7, 15, v1\nv_lshlrev_b32 v7, 4, v7\nv_bfe_u32 v8, v1, 4, 1\nv_lshl_add_u32 v7, v8, 10, v7\nv_lshrrev_b32 v8, 5, v1\nv_lshl_add_u32 v7, v8, 8, v7")
    A("s_mul_i32 s31, s7, 44\ns_lshr_b32 s32, s25, 1\ns_add_u32 s31, s31, s32\ns_add_u32 s31, s31, 28\ns_lshl_b32 s31, s31, 12")
    A("s_and_b32 s32, s25, 1\ns_lshl_b32 s32, s32, 9\ns_add_u32 s31, s31, s32\ns_add_u32 s31, s31, 0x%x" % WS_ACT)
    A("s_waitcnt vmcnt(0)")
    A("v_mul_f32 v5, v5, v10\nv_mul_f32 v6, v6, v11")
    for sd in range(2):
        for i in range(8): A("v_mul_f32 v%d, v%d, v%d" % (O[sd] + i, 5 + sd, O[sd] + i))
        for i in range(4): A("v_cvt_pk_bf16_f32 v%d, v%d, v%d" % (16 + 4*sd + i, O[sd] + 2*i, O[sd] + 2*i + 1))
        A("buffer_store_dwordx4 %s, v7, s[16:19], s31 offen offset:%d sc1" % (v(16 + 4*sd, 4), 2048*sd))
    A("s_lshl_b32 s31, s7, 7\ns_lshl_b32 s32, s25, 2\ns_add_u32 s31, s31, s32\ns_add_u32 s31, s31, 0x%x" % FL_F5)
    A("s_waitcnt vmcnt(0)")
    set_flag("s31", 5)
    A("s_branch L_FIN")

    A("L_GSTART:")
    A("s_setprio 2")
    A("s_sub_u32 s7, s24, 4")
    A("v_lshrrev_b32 v20, 3, v1\nv_and_b32 v21, 7, v1\nv_lshrrev_b32 v22, 4, v1\nv_xor_b32 v17, v21, v22")
    A("s_lshl_b32 s28, s25, 6\ns_lshl_b32 s29, s7, 4\ns_add_u32 s28, s28, s29")
    A("v_add_u32 v16, s28, v20\nv_lshlrev_b32 v16, 10, v16\nv_lshl_add_u32 v16, v17, 4, v16")
    A("v_xor_b32 v17, 64, v16\nv_add_u32 v17, %d, v17" % (8192 - 1024))
    A("v_add_u32 v18, s29, v20\nv_mul_u32_u24 v18, 3072, v18\nv_and_b32 v22, 1, v22\nv_lshlrev_b32 v22, 1, v22\nv_xor_b32 v21, v21, v22")
    A("v_lshl_add_u32 v18, v21, 4, v18\ns_lshl_b32 s28, s26, 7\nv_add_u32 v18, s28, v18")
    A("v_xor_b32 v19, 64, v18\nv_add_u32 v19, %d, v19" % (8*3072 - 1024))
    A("s_lshl_b32 s22, s7, 11\ns_add_u32 s23, s22, %d\ns_add_u32 s22, s22, %d" % (L_WQ, L_X))
    A("s_lshl_b32 s20, s6, 1\ns_mov_b32 s21, s20")
    vq = []
    def ld_x(i):
        vq.extend([("x", i)]*2)
        A("s_lshl_b32 s31, s20, 13\ns_add_u32 m0, s31, s22\ns_lshl_b32 s31, s20, 7")
        A("buffer_load_dwordx4 v16, s[12:15], s31 offen lds")
        A("buffer_load_dwordx4 v17, s[12:15], s31 offen offset:1024 lds")
        A("s_add_u32 s20, s20, 1\ns_and_b32 s20, s20, 7")
    def ld_w(i):
        vq.extend([("w", i)]*6)
        A("s_mul_i32 s31, s21, %d" % (64*3072))
        for mat in range(3):
            A("s_add_u32 m0, s23, %d" % (24576*(i % 3) + 7168*mat))
            if mat == 0: A("s_add_u32 s21, s21, 1")
            elif mat == 1: A("s_and_b32 s21, s21, 7")
            else: A("s_nop 0")
            A("buffer_load_dwordx4 v18, s[8:11], s31 offen offset:%d lds" % (1024*mat))
            A("buffer_load_dwordx4 v19, s[8:11], s31 offen offset:%d lds" % (1024*mat + 1024))
    def vwait(*tags):
        last = max(i for i, x in enumerate(vq) if x in tags)
        A("s_waitcnt vmcnt(%d)" % (len(vq) - 1 - last))
    for i in range(3):
        ld_x(i); ld_w(i)
    ld_x(3); ld_x(4)
    A("s_and_b32 s32, s25, 1\ns_sub_u32 s4, s26, s32")
    A("s_mov_b32 s28, 3584")
    A("s_lshl_b32 s29, s4, 8\ns_and_b32 s32, s7, 1\ns_lshl_b32 s32, s32, 7\ns_add_u32 s29, s29, s32")
    A("s_cmp_lt_u32 s7, 2\ns_cselect_b32 s32, 1792, 0\ns_add_u32 s29, s29, s32")
    A("s_lshl_b32 s30, s7, 13\ns_add_u32 s30, s30, %d" % L_G)
    w_setup(20)
    A("s_sub_u32 s33, s30, 32768")
    wr_setup(20, "s33"); xr_setup(20)
    A("s_lshl_b32 s29, s28, 5\ns_lshl_b32 s33, s28, 9\ns_lshl_b32 s32, s6, 2\ns_mul_i32 s3, s32, s29")
    x_addr()
    for i in range(64): A("v_mov_b32 v%d, 0" % (ACC + i))
    for i in range(6):
        vwait(("x", i), ("w", i))
        A("s_barrier")
        if i >= 1:
            ld_w(i + 2)
            if i + 4 < 8: ld_x(i + 4)
    srd(A, 8, P_WIN, P_WIN + 1, 512*1792*2)
    A("s_cmp_ge_u32 s4, 7\ns_cselect_b32 s10, 0, s10\ns_mov_b32 s31, s3")
    vwait(("x", 6), ("w", 6))
    A("s_barrier")
    w_dma(0); w_dma(1)
    A("s_waitcnt vmcnt(8)\ns_barrier")
    A("s_barrier")
    A("s_cmp_ge_u32 s4, 7\ns_cbranch_scc1 L_G7")
    w_dma(2); w_dma(3)
    ST(1, True)
    early_loop(4, "L_EG")
    nonce_load(28)
    A("s_waitcnt vmcnt(1)")
    arrive(L_CNTG)
    ST(2)
    A("s_mov_b32 s20, %s\ns_mov_b32 s21, %s" % (f32(GC2), f32(GC2)))
    A("v_mov_b32 v24, %s\nv_mov_b32 v25, %s\nv_mov_b32 v26, 1.0\nv_mov_b32 v27, 1.0" % (f32(GC1), f32(GC1)))
    emit_gelu(A, ACC, 64, 16, 24, 20, 26)
    nonce_get(28)
    A("s_cmp_lt_u32 s7, 2\ns_cbranch_scc1 L_Z2")
    A("s_mul_i32 s31, s25, 7\ns_add_u32 s31, s31, s4\ns_lshl_b32 s31, s31, 14\ns_and_b32 s32, s7, 1\ns_lshl_b32 s32, s32, 13")
    A("s_add_u32 s31, s31, s32\ns_add_u32 s31, s31, 0x%x" % WS_Z1)
    for mp in range(2):
        for n in range(4):
            T = 32 + 4*(4*mp + n)
            for mm in range(2):
                c = ACC + 16*(2*mp + mm) + 4*n
                A("v_cvt_pk_bf16_f32 v%d, v%d, v%d\nv_cvt_pk_bf16_f32 v%d, v%d, v%d" % (T + 2*mm, c, c + 1, T + 2*mm + 1, c + 2, c + 3))
            A("buffer_store_dwordx4 %s, v%d, s[16:19], s31 offen offset:%d" % (v(T, 4), VL16, 1024*n))
        A("s_add_u32 s31, s31, 4096")
    A("s_branch L_SPAT")
    A("L_Z2:")
    for n in range(4):
        sA, sB = 16 + 2*n, 24 + 2*n
        first = True
        for m in range(4):
            for h in range(2):
                c = ACC + 16*m + 4*n + 2*h
                if first:
                    A("v_pk_mul_f32 %s, %s, %s" % (v(sB, 2), v(c, 2), v(c, 2)))
                    A("v_pk_add_f32 %s, %s, %s" % (v(sA, 2), v(c, 2), v(c + 2, 2)))
                    first = False
                else:
                    A("v_pk_fma_f32 %s, %s, %s, %s" % (v(sB, 2), v(c, 2), v(c, 2), v(sB, 2)))
                    if m > 0: A("v_pk_add_f32 %s, %s, %s" % (v(sA, 2), v(sA, 2), v(c, 2)))
    for i in range(8): A("v_add_f32 v%d, v%d, v%d" % (16 + 2*i, 16 + 2*i, 17 + 2*i))
    A("s_nop 1")
    for b in (16, 20, 24, 28): A("v_permlane16_swap_b32 v%d, v%d" % (b, b + 2))
    A("s_nop 1")
    for b in (16, 20, 24, 28): A("v_add_f32 v%d, v%d, v%d" % (b, b, b + 2))
    A("s_nop 1")
    for b in (16, 24): A("v_permlane32_swap_b32 v%d, v%d" % (b, b + 4))
    A("s_nop 1")
    A("v_add_f32 v16, v16, v20\nv_add_f32 v18, v24, v28\nv_mov_b32 v17, s27\nv_mov_b32 v19, s27")
    A("s_mul_i32 s31, s25, %d\ns_add_u32 s31, s31, 0x%x" % (14*1024, WS_ST))
    A("s_lshl_b32 s32, s4, 1\ns_add_u32 s32, s32, s7\ns_lshl_b32 s32, s32, 10\ns_add_u32 s32, s32, s31")
    A("buffer_store_dwordx4 v[16:19], v%d, s[16:19], s32 offen sc0 sc1" % VL16)
    ST(3)
    Lp = A.newlabel("SP")
    A("s_mov_b32 s34, 0")
    A(Lp + ":")
    A("s_mov_b32 s32, s31")
    for j in range(14):
        A("buffer_load_dwordx4 %s, v%d, s[16:19], s32 offen offset:%d sc0 sc1" % (v(32 + 4*j, 4), VL16, 1024*(j & 3)))
        if (j & 3) == 3: A("s_add_u32 s32, s32, 4096")
    A("s_waitcnt vmcnt(0)")
    A("v_xor_b32 v20, s27, v33")
    for j in range(14):
        for q in (1, 3):
            if j == 0 and q == 1: continue
            A("v_xor_b32 v21, s27, v%d\nv_or_b32 v20, v20, v21" % (32 + 4*j + q))
    A("v_cmp_ne_u32 vcc, 0, v20")
    A("s_add_u32 s34, s34, 1\ns_cmp_ge_u32 s34, %d\ns_cbranch_scc1 %s_x" % (SPIN_MAX // 16, Lp))
    A("s_cbranch_vccz %s_x" % Lp)
    A("s_sleep 4\ns_branch %s" % Lp)
    A(Lp + "_x:")
    ST(4)
    for j in range(1, 14):
        A("v_add_f32 v32, v32, v%d\nv_add_f32 v34, v34, v%d" % (32 + 4*j, 34 + 4*j))
    A("v_mul_f32 v32, %s, v32\nv_mul_f32 v34, %s, v34" % (f32(1.0/896), f32(1.0/896)))
    A("v_fma_f32 v34, -v32, v32, v34\nv_max_f32 v34, 0, v34\nv_add_f32 v34, %s, v34" % f32(1e-5))
    A("v_rsq_f32 v16, v34\ns_nop 0\nv_mul_f32 v24, v32, v16\nv_sub_f32 v24, 0, v24")
    A("v_mov_b32 v20, v16\nv_mov_b32 v28, v24\ns_nop 1")
    A("v_permlane32_swap_b32 v16, v20\nv_permlane32_swap_b32 v24, v28\ns_nop 1")
    A("v_mov_b32 v18, v16\nv_mov_b32 v22, v20\nv_mov_b32 v26, v24\nv_mov_b32 v30, v28\ns_nop 1")
    for b in (16, 20, 24, 28): A("v_permlane16_swap_b32 v%d, v%d" % (b, b + 2))
    A("v_and_b32 v32, 15, v1\nv_lshlrev_b32 v32, 7, v32\nv_bfe_u32 v33, v1, 1, 1\nv_lshl_add_u32 v32, v33, 5, v32")
    A("v_bfe_u32 v33, v1, 3, 1\nv_lshl_add_u32 v32, v33, 6, v32\nv_lshrrev_b32 v33, 4, v1\nv_lshl_add_u32 v32, v33, 3, v32\nv_add_u32 v32, s30, v32")
    for m in range(1, 4): A("v_xor_b32 v%d, %d, v32" % (32 + m, 32*m))
    for m in range(4):
        for n in range(4):
            c = ACC + 16*m + 4*n
            T = 36 + 2*(4*m + n)
            for h in range(2):
                A("v_pk_fma_f32 %s, %s, %s, %s op_sel_hi:[1,0,0]" % (v(c + 2*h, 2), v(c + 2*h, 2), v(16 + 2*n, 2), v(24 + 2*n, 2)))
            A("v_cvt_pk_bf16_f32 v%d, v%d, v%d\nv_cvt_pk_bf16_f32 v%d, v%d, v%d" % (T, c, c + 1, T + 1, c + 2, c + 3))
            A("ds_write_b64 v%d, %s offset:%d" % (32 + m, v(T, 2), 2048*n))
            if n == 3 and m == 1: A("s_waitcnt lgkmcnt(0)")
    A("s_waitcnt lgkmcnt(0)")
    A("s_lshl_b32 s31, s4, 5\ns_add_u32 s31, s31, s25\ns_lshl_b32 s31, s31, 14\ns_lshl_b32 s32, s7, 13\ns_add_u32 s31, s31, s32\ns_add_u32 s31, s31, 0x%x" % WS_Z2N)
    A("s_add_u32 s32, s31, 4096")
    for p in range(2):
        for l in w_reads(68 + 16*p, p): A(l)
        A("s_waitcnt lgkmcnt(0)")
        for m in range(4):
            A("buffer_store_dwordx4 %s, v%d, s[16:19], s%d offen offset:%d sc1" % (v(68 + 16*p + 4*m, 4), VL16, 31 + (m >> 1), 2048*(m & 1) + 1024*p))
    A("s_lshl_b32 s31, s4, 2\ns_lshr_b32 s32, s25, 3\ns_add_u32 s31, s31, s32\ns_lshl_b32 s31, s31, 7")
    A("s_and_b32 s32, s25, 7\ns_lshl_b32 s32, s32, 1\ns_add_u32 s32, s32, s7\ns_lshl_b32 s32, s32, 2\ns_add_u32 s31, s31, s32\ns_add_u32 s31, s31, 0x%x" % FL_F3)
    A("s_waitcnt vmcnt(0)")
    set_flag("s31", 16)
    A("L_SPAT:")
    ST(5)
    WSP, ZR = 32, 64
    srd(A, 12, P_WSP, P_WSP + 1, 2048*2048*2)
    A("v_lshrrev_b32 v16, 3, v1\nv_and_b32 v17, 7, v1\nv_lshrrev_b32 v18, 4, v1\nv_xor_b32 v17, v17, v18")
    A("s_lshl_b32 s28, s25, 6\nv_add_u32 v16, s28, v16\nv_lshlrev_b32 v16, 12, v16\nv_lshl_add_u32 v16, v17, 4, v16")
    A("v_xor_b32 v17, 64, v16\nv_add_u32 v17, %d, v17" % (32768 - 1024))
    A("v_add_u32 v18, %d, v16\nv_add_u32 v19, %d, v17" % (2*(32768 - 1024), 2*(32768 - 1024)))
    A("s_lshl_b32 s31, s7, 10")
    def sp_dma():
        for hf in range(2):
            A("s_add_u32 m0, s30, %d" % (4096*hf))
            A("s_add_u32 s32, s31, %d" % (131072*hf))
            for q in range(4):
                A("buffer_load_dwordx4 v%d, s[12:15], s32 offen offset:%d lds" % (16 + q, 1024*q))
        A("s_add_u32 s31, s31, 128")
    A("s_waitcnt vmcnt(0)")
    sp_dma()
    A("v_add_u32 v%d, s30, v%d\nv_xor_b32 v%d, 64, v%d" % (VX[0], VXB, VX[1], VX[0]))
    for mu in range(4):
        A("s_add_u32 s32, s7, %d\ns_and_b32 s32, s32, 3\ns_lshl_b32 s32, s32, 12\nv_add_u32 v%d, s32, v%d" % (mu, 20 + mu, VL16))
    A("s_lshl_b32 s33, s4, 5\ns_lshl_b32 s32, s7, 3\ns_add_u32 s33, s33, s32\ns_lshl_b32 s33, s33, 14\ns_add_u32 s33, s33, 0x%x" % WS_Z2N)
    for i in range(128): A("v_mov_b32 v%d, 0" % (ACC + i))
    A("v_and_b32 v24, 15, v1\nv_lshlrev_b32 v24, 2, v24")
    A("s_lshl_b32 s28, s4, 2\ns_add_u32 s28, s28, s7\ns_lshl_b32 s28, s28, 7\ns_add_u32 s28, s28, 0x%x" % FL_F3)
    poll(24, "s28", 25, sleep=6)
    ST(6)
    def z_load(m):
        for p in range(2):
            A("buffer_load_dwordx4 %s, v%d, s[16:19], s33 offen offset:%d sc1" % (v(ZR + 8*m + 4*p, 4), 20 + (m >> 1), 2048*(m & 1) + 1024*p))
    for m in range(8): z_load(m)
    A("s_mov_b32 s5, 0")
    A(".p2align 3")
    A("s_setprio %d\ns_nop 0" % opt.get("gprio", 0))
    A("L_SLOOP:")
    A("s_add_u32 s33, s33, 16384")
    A("s_cmp_eq_u32 s5, 7\ns_cselect_b32 s14, 0, s14\ns_cselect_b32 s33, 0x%x, s33" % 0x7ff00000)
    A("s_waitcnt vmcnt(16)")
    for n in range(4):
        for p in range(2):
            A("ds_read_b128 %s, v%d offset:%d" % (v(WSP + 8*n + 4*p, 4), VX[p], 2048*n))
    A("s_waitcnt lgkmcnt(0)")
    sp_dma()
    for m in range(8):
        A("s_waitcnt vmcnt(22)")
        A(".p2align 3")
        for n in range(4):
            c = v(ACC + 16*m + 4*n, 4)
            for p in range(2):
                A("v_mfma_f32_16x16x32_bf16 %s, %s, %s, %s" % (c, v(ZR + 8*m + 4*p, 4), v(WSP + 8*n + 4*p, 4), c))
        z_load(m)
    A("s_add_u32 s5, s5, 1\ns_cmp_lt_u32 s5, 8\ns_cbranch_scc1 L_SLOOP")
    A("s_setprio 2")
    ST(7)
    A("s_lshl_b32 s28, s25, 7\ns_add_u32 s28, s28, 0x%x" % FL_F0)
    poll(VZ, "s28", 16)
    srd(A, 12, P_BSP, P_BSP + 1, 4096)
    A("v_and_b32 v24, 15, v1\nv_lshlrev_b32 v25, 1, v24\nv_lshlrev_b32 v24, 2, v24")
    A("s_lshl_b32 s28, s25, 7\ns_lshl_b32 s29, s25, 8\ns_add_u32 s29, s29, 0x%x" % WS_G)
    for n in range(4):
        A("buffer_load_ushort v%d, v25, s[12:15], s28 offen offset:%d" % (16 + n, 32*n))
        A("buffer_load_dword v%d, v24, s[16:19], s29 offen offset:%d sc1" % (20 + n, 64*n))
    A("v_add_u32 v24, s30, v%d" % VL16)
    for r in range(1, 4):
        for q in range(8):
            A("ds_write_b128 v24, %s offset:%d" % (v(ACC + 32*r + 4*q, 4), 1024*q))
        A("s_sub_u32 s32, s7, %d\ns_and_b32 s32, s32, 3\ns_lshl_b32 s32, s32, 13\ns_add_u32 s32, s32, %d" % (r, L_G))
        A("v_add_u32 v25, s32, v%d" % VL16)
        A("s_waitcnt lgkmcnt(0)")
        arrive(L_CNTR)
        lds_wait(L_CNTR, 8*r - 4, 26)
        if r == 1:
            A("s_mul_i32 s31, s25, 7\ns_add_u32 s31, s31, s4\ns_lshl_b32 s31, s31, 14\ns_lshl_b32 s32, s7, 12\ns_add_u32 s31, s31, s32\ns_add_u32 s31, s31, 0x%x" % WS_Z1)
            for n in range(4):
                A("buffer_load_dwordx4 %s, v%d, s[16:19], s31 offen offset:%d sc1" % (v(32 + 4*n, 4), VL16, 1024*n))
        for q in range(8):
            A("ds_read_b128 %s, v25 offset:%d" % (v(ZR + 4*q, 4), 1024*q))
        A("s_waitcnt lgkmcnt(0)")
        arrive(L_CNTR)
        for i in range(16):
            A("v_pk_add_f32 %s, %s, %s" % (v(ACC + 2*i, 2), v(ACC + 2*i, 2), v(ZR + 2*i, 2)))
        if r < 3:
            lds_wait(L_CNTR, 8*r, 26)
    ST(8)
    A("s_waitcnt vmcnt(0)")
    for n in range(4):
        A("v_lshlrev_b32 v%d, 16, v%d\nv_sub_f32 v%d, 1.0, v%d" % (16 + n, 16 + n, 20 + n, 20 + n))
    A("v_and_b32 v24, 15, v1\nv_lshlrev_b32 v24, 4, v24\nv_bfe_u32 v25, v1, 4, 1\nv_lshl_add_u32 v24, v25, 9, v24\nv_lshrrev_b32 v25, 5, v1\nv_lshl_add_u32 v24, v25, 8, v24")
    A("s_mul_i32 s31, s25, 44\ns_lshl_b32 s32, s4, 2\ns_add_u32 s32, s32, s7\ns_add_u32 s31, s31, s32\ns_lshl_b32 s31, s31, 12\ns_add_u32 s31, s31, 0x%x" % WS_ACT)
    for n in range(4):
        T = 48 + 4*n
        for mm in range(2):
            c = ACC + 16*mm + 4*n
            z = 32 + 4*n + 2*mm
            for i in range(4): A("v_add_f32 v%d, v%d, v%d" % (c + i, c + i, 16 + n))
            for i in range(2): A("v_lshlrev_b32 v%d, 16, v%d\nv_and_b32 v%d, 0xffff0000, v%d" % (64 + 2*i, z + i, 65 + 2*i, z + i))
            for i in range(4): A("v_mul_f32 v%d, v%d, v%d" % (c + i, c + i, 20 + n))
            for i in range(4): A("v_mul_f32 v%d, v%d, v%d" % (c + i, c + i, 64 + i))
            A("v_cvt_pk_bf16_f32 v%d, v%d, v%d\nv_cvt_pk_bf16_f32 v%d, v%d, v%d" % (T + 2*mm, c, c + 1, T + 2*mm + 1, c + 2, c + 3))
        A("s_nop 1")
        A("v_permlane16_swap_b32 v%d, v%d\nv_permlane16_swap_b32 v%d, v%d" % (T, T + 2, T + 1, T + 3))
        A("buffer_store_dwordx4 %s, v24, s[16:19], s31 offen offset:%d sc1" % (v(T, 4), 1024*n))
    A("s_lshl_b32 s31, s25, 7\ns_lshl_b32 s32, s32, 2\ns_add_u32 s31, s31, s32\ns_add_u32 s31, s31, 0x%x" % FL_F4)
    A("s_waitcnt vmcnt(0)")
    set_flag("s31", 16)
    lds_wait(L_CNTR, 24, 26)
    A("s_branch L_OUT")
    A("L_G7:")
    nonce_load(16)
    nonce_get(16)
    A("s_cmp_lg_u32 s7, 0\ns_cbranch_scc1 L_G7X")
    srd(A, 12, P_GW, P_GW + 1, 1024)
    A("v_lshrrev_b32 v16, 4, v1\nv_lshlrev_b32 v16, 4, v16")
    for st in range(16):
        A("buffer_load_dwordx4 %s, v16, s[12:15], 0 offen offset:%d" % (v(64 + 4*st, 4), 64*st))
    A("v_add_u32 v%d, %d, v%d\nv_xor_b32 v%d, 64, v%d" % (VX[0], L_X, VXB, VX[1], VX[0]))
    A("s_waitcnt vmcnt(0)")
    for st in range(16):
        for n in range(4):
            A("ds_read_b128 %s, v%d offset:%d" % (v(32 + 4*n, 4), VX[st & 1], 2048*n + 8192*(st >> 1)))
        A("s_waitcnt lgkmcnt(0)")
        for n in range(4):
            A("v_mfma_f32_16x16x32_bf16 %s, %s, %s, %s" % (v(ACC + 4*n, 4), v(64 + 4*st, 4), v(32 + 4*n, 4), v(ACC + 4*n, 4)))
    A("s_nop 9")
    for n in range(4): A("v_mul_f32 v%d, %s, v%d" % (16 + n, f32(-LOG2E), ACC + 4*n))
    for n in range(4): A("v_exp_f32 v%d, v%d" % (16 + n, 16 + n))
    for n in range(4): A("v_add_f32 v%d, 1.0, v%d" % (16 + n, 16 + n))
    for n in range(4): A("v_rcp_f32 v%d, v%d" % (16 + n, 16 + n))
    A("v_lshlrev_b32 v20, 2, v1\ns_lshl_b32 s29, s25, 8\ns_add_u32 s29, s29, 0x%x" % WS_G)
    A("s_mov_b32 exec_lo, 0xffff\ns_mov_b32 exec_hi, 0")
    for n in range(4):
        A("buffer_store_dword v%d, v20, s[16:19], s29 offen offset:%d sc1" % (16 + n, 64*n))
    A("s_mov_b64 exec, -1")
    A("s_lshl_b32 s28, s25, 7\ns_add_u32 s28, s28, 0x%x" % FL_F0)
    A("s_waitcnt vmcnt(0)")
    set_flag("s28", 16)
    A("L_G7X:")
    arrive(L_CNTG)
    A("L_OUT:")
    ST(9)
    OACC, WH, HR = 192, 80, 24
    NR = 14
    srd(A, 8, P_WOUT, P_WOUT + 1, 896*512*2)
    A("s_mov_b32 s28, 1024\ns_lshl_b32 s29, s26, 7")
    w_setup(16)
    A("s_mov_b32 s29, 32768\ns_mul_i32 s31, s7, %d" % (7*32768))
    def w_fetch(nsteps, dst):
        w_dma(0, False); w_dma(1, False)
        for st in range(nsteps):
            A("s_waitcnt vmcnt(%d)" % (4 if st + 1 < nsteps else 0))
            for l in w_reads(dst + 16*st, st & 1): A(l)
            A("s_waitcnt lgkmcnt(0)")
            if st + 2 < nsteps: w_dma(st & 1, False)
    w_fetch(7, WH)
    for nu in range(4):
        A("s_add_u32 s32, s7, %d\ns_and_b32 s32, s32, 3\ns_lshl_b32 s32, s32, 10\nv_add_u32 v%d, s32, v%d" % (nu, 16 + nu, VL16))
    A("s_mul_i32 s33, s25, 44\ns_mul_i32 s32, s7, 7\ns_add_u32 s33, s33, s32\ns_lshl_b32 s33, s33, 12\ns_add_u32 s33, s33, 0x%x" % WS_ACT)
    A("v_min_u32 v20, 6, v1\nv_add_u32 v20, s32, v20\nv_lshlrev_b32 v20, 2, v20")
    A("s_lshl_b32 s28, s25, 7\ns_add_u32 s28, s28, 0x%x" % FL_F4)
    poll(20, "s28", 21, sleep=6)
    ST(10)
    def a_load(f, base, nr):
        A("buffer_load_dwordx4 %s, v%d, s[16:19], s33 offen sc1" % (v(base + 4*(f % nr), 4), 16 + (f & 3)))
        if (f & 3) == 3: A("s_add_u32 s33, s33, 4096")
    for f in range(NR): a_load(f, HR, NR)
    for f in range(28):
        st, nu = f >> 2, f & 3
        A("s_waitcnt vmcnt(%d)" % (min(28, f + NR) - f - 1))
        for m in range(4):
            c = v(OACC + 16*nu + 4*m, 4)
            A("v_mfma_f32_16x16x32_bf16 %s, %s, %s, %s" % (c, v(WH + 16*st + 4*m, 4), v(HR + 4*(f % NR), 4), c if st else "0"))
        if f + NR < 28: a_load(f + NR, HR, NR)
    srd(A, 8, P_WO, P_WO + 1, 512*512*2)
    A("s_lshl_b32 s31, s7, 17")
    w_fetch(4, 128)
    A("s_mul_i32 s33, s25, 44\ns_lshl_b32 s32, s7, 2\ns_add_u32 s33, s33, s32\ns_add_u32 s33, s33, 28\ns_lshl_b32 s33, s33, 12\ns_add_u32 s33, s33, 0x%x" % WS_ACT)
    A("v_and_b32 v20, 7, v1\ns_lshl_b32 s32, s7, 3\nv_add_u32 v20, s32, v20\nv_lshlrev_b32 v20, 2, v20")
    A("s_lshl_b32 s28, s25, 7\ns_add_u32 s28, s28, 0x%x" % FL_F5)
    srd(A, 12, P_OUT, P_OUT + 1, 2048*512*2)
    ST(11)
    A("s_barrier")
    poll(20, "s28", 21, sleep=2)
    ST(12)
    for f in range(16): a_load(f, 24, 16)
    for nu in range(1, 4):
        A("s_add_u32 s32, s7, %d\ns_and_b32 s32, s32, 3\ns_mul_i32 s32, s32, 12288\ns_add_u32 s32, s32, %d\nv_add_u32 v%d, s32, v%d" % (nu, 4096*(nu - 1), 20 + nu, VL16))
    A("s_mul_i32 s32, s7, 12288\nv_add_u32 v20, s32, v%d" % VL16)
    for f in range(16):
        st, nu = f >> 2, f & 3
        A("s_waitcnt vmcnt(%d)" % (15 - f))
        for m in range(4):
            c = v(OACC + 16*nu + 4*m, 4)
            A("v_mfma_f32_16x16x32_bf16 %s, %s, %s, %s" % (c, v(128 + 16*st + 4*m, 4), v(24 + 4*f, 4), c))
    A("s_nop 7")
    for nu in range(1, 4):
        for m in range(4):
            A("ds_write_b128 v%d, %s offset:%d" % (20 + nu, v(OACC + 16*nu + 4*m, 4), 1024*m))
    A("v_and_b32 v16, 15, v1\nv_lshlrev_b32 v16, 10, v16\nv_bfe_u32 v17, v1, 4, 1\nv_lshl_add_u32 v16, v17, 5, v16\nv_lshrrev_b32 v17, 5, v1\nv_lshl_add_u32 v16, v17, 4, v16")
    A("s_lshl_b32 s31, s25, 16\ns_lshl_b32 s32, s7, 14\ns_add_u32 s31, s31, s32\ns_lshl_b32 s32, s26, 7\ns_add_u32 s31, s31, s32")
    A("s_waitcnt lgkmcnt(0)")
    A("s_barrier")
    for j in range(12):
        A("ds_read_b128 %s, v20 offset:%d" % (v(24 + 4*j, 4), 1024*j))
    for j in range(3):
        A("s_waitcnt lgkmcnt(%d)" % (8 - 4*j))
        for i in range(8):
            A("v_pk_add_f32 %s, %s, %s" % (v(OACC + 2*i, 2), v(OACC + 2*i, 2), v(24 + 16*j + 2*i, 2)))
    for i in range(8): A("v_cvt_pk_bf16_f32 v%d, v%d, v%d" % (80 + i, OACC + 2*i, OACC + 2*i + 1))
    A("s_nop 1")
    for mp in range(2):
        T = 80 + 4*mp
        A("v_permlane16_swap_b32 v%d, v%d\nv_permlane16_swap_b32 v%d, v%d" % (T, T + 2, T + 1, T + 3))
        A("buffer_store_dwordx4 %s, v16, s[12:15], s31 offen offset:%d" % (v(T, 4), 64*mp))
    A("L_FIN:")
    ST.end(24)
    A("L_END:")
    A("s_endpgm")

def build(stamps=False, opt=None):
    ref = open("gated_mix__softmax_full_mha__mixer_gmlp__prompt.s.ref").read().split("\n")
    hdr = [l for l in ref if l.startswith(";") and "@launch" not in l]
    out = "\n".join(hdr) + "\n; @launch grid=(256,1,1) block=(512,1,1) lds=163840\n"
    out += '.amdgcn_target "amdgcn-amd-amdhsa--gfx950"\n.text\n.globl %s\n' % KNAME
    A = Asm()
    gen(A, stamps, opt)
    out += A.text() + '.section .rodata,"a"\n' + kdesc(KNAME, 256, 100, 256)
    return out
if __name__ == "__main__":
    import sys
    opt = dict((a_.split("=")[0], int(a_.split("=")[1])) for a_ in sys.argv[2:] if "=" in a_)
    open(sys.argv[1], "w").write(build("--stamps" in sys.argv, opt))
```

```python
from asmlib import Asm, v, s, a, f32, srd, kdesc
from asmlib import KA_X, KA_WQKV, KA_WO, KA_WIN, KA_WSP, KA_BSP, KA_WOUT, KA_GW, KA_OUT, KA_DBG, KA_WS
WS_Q    = 0x000000
WS_K    = 0x200000
WS_V    = 0x400000
WS_Z1   = 0x600000
WS_Z2N  = 0xA00000
WS_ACT  = 0xE00000
WS_WC   = 0x1400000
WS_G    = 0x1600000
WS_ST   = 0x1610000
WS_FL   = 0x1690000
FL_EPOCH = WS_FL
FL_F0 = WS_FL + 0x1000
FL_F1 = WS_FL + 0x2000
FL_F3 = WS_FL + 0x10000
FL_F4 = WS_FL + 0x30000
FL_F5 = WS_FL + 0x50000
FL_F6 = WS_FL + 0x2c000
WS_TS   = 0x1700000
WS_USED = 0x1800000
NST = 14
SB = 64
class Stamps:
    def __init__(self, A, on): self.A, self.on = A, on
    def __call__(self, i, wait=False):
        if self.on:
            self.A("s_memrealtime s[%d:%d]" % (SB + 2*i, SB + 2*i + 1))
            if wait: self.A("s_waitcnt lgkmcnt(0)")
    def begin(self):
        if self.on:
            for i in range(1, NST): self.A("s_mov_b32 s%d, 0" % (SB + 2*i))
            self(0); self.A("s_memtime s[94:95]")
    def end(self, swave, wsrd=16):
        if not self.on: return
        A = self.A
        A("s_waitcnt vmcnt(0)")
        self(NST - 1)
        A("s_memtime s[92:93]")
        A("s_waitcnt lgkmcnt(0)")
        A("s_sub_u32 s92, s92, s94")
        A("s_lshl_b32 s96, s2, 4\ns_add_u32 s96, s96, s%d\ns_lshl_b32 s96, s96, 6\ns_add_u32 s96, s96, 0x%x" % (swave, WS_TS))
        for i in range(NST + 1):
            A("v_mov_b32 v%d, s%d" % (4 + i, SB + 2*i))
        A("v_mov_b32 v3, 0")
        A("s_mov_b64 exec, 1")
        for q in range(4):
            A("buffer_store_dwordx4 v[%d:%d], v3, %s, s96 offen offset:%d" % (4 + 4*q, 7 + 4*q, s(wsrd, 4), 16*q))
        A("s_mov_b64 exec, -1")
```

```python
from asmlib2 import *
from p1 import emit_gelu, LOG2E, QSCALE, GC1, GC2

KNAME = "gated_mix__softmax_full_mha__mixer_gmlp__prompt_kernel"
L_CNTG, L_CNTR, L_CNTKV = 0, 16, 32
L_X = 16384
L_WQ = 81920
L_G = 131072
P_X, P_WQKV, P_WO, P_WIN, P_WSP, P_BSP, P_WOUT = 36, 38, 40, 44, 46, 48, 50
P_GW, P_OUT, P_DBG, P_WS = 52, 54, 56, 58
SPIN_MAX = 0x20000

def gen(A, stamps=False, opt=None):
    opt = opt or {}
    ST = Stamps(A, stamps)
    VZ, VONE = 2, 3
    VL16 = 4
    def arrive(off, va=VZ):
        A("s_mov_b64 exec, 1")
        A("ds_add_u32 v%d, v%d offset:%d" % (va, VONE, off))
        A("s_mov_b64 exec, -1")
    def zero(base, n):
        for i in range(0, n, 2): A("v_mov_b64 %s, 0" % v(base + i, 2))
    def lds_wait(off, thr, vt, sleep=0, va=VZ):
        L = A.newlabel("LW")
        A("s_mov_b32 s34, 0")
        A(L + ":")
        if sleep: A("s_sleep %d" % sleep)
        A("ds_read_b32 v%d, v%d offset:%d" % (vt, va, off))
        A("s_waitcnt lgkmcnt(0)")
        A("v_readfirstlane_b32 s35, v%d" % vt)
        A("s_add_u32 s34, s34, 1\ns_cmp_ge_u32 s34, %d\ns_cbranch_scc1 %s_x" % (SPIN_MAX, L))
        A("s_cmp_lt_u32 s35, %s\ns_cbranch_scc1 %s" % (thr, L))
        A(L + "_x:")
    def set_flag(soff, vt):
        A("v_mov_b32 v%d, s27" % vt)
        A("s_mov_b64 exec, 1")
        A("buffer_store_dword v%d, v%d, s[16:19], %s offen sc0 sc1" % (vt, VZ, soff))
        A("s_mov_b64 exec, -1")
    def poll(vaddr, soff, vt, sleep=4, second=None):
        L = A.newlabel("PL")
        A("s_mov_b32 s34, 0")
        A(L + ":")
        A("buffer_load_dword v%d, v%d, s[16:19], %s offen sc0 sc1" % (vt, vaddr, soff))
        if second is not None:
            A("buffer_load_dword v%d, v%d, s[16:19], %s offen sc0 sc1" % (vt + 1, second, soff))
        A("s_waitcnt vmcnt(0)")
        A("v_xor_b32 v%d, s27, v%d" % (vt, vt))
        if second is not None:
            A("v_xor_b32 v%d, s27, v%d\nv_or_b32 v%d, v%d, v%d" % (vt + 1, vt + 1, vt, vt, vt + 1))
        A("v_cmp_ne_u32 vcc, 0, v%d" % vt)
        A("s_add_u32 s34, s34, 1\ns_cmp_ge_u32 s34, %d\ns_cbranch_scc1 %s_x" % (SPIN_MAX // 8, L))
        A("s_cbranch_vccz %s_x" % L)
        A("s_sleep %d" % sleep)
        A("s_branch %s" % L)
        A(L + "_x:")
    def nonce_load(vt):
        A("buffer_load_dword v%d, v%d, s[60:63], 0 offen sc0 sc1" % (vt, VZ))
    def nonce_get(vt, cnt=0):
        L = A.newlabel("NG")
        A("s_waitcnt vmcnt(%d)" % cnt)
        A("v_readfirstlane_b32 s27, v%d" % vt)
        A("s_mov_b32 s34, 0")
        A(L + ":")
        A("s_cmp_lg_u32 s27, 0\ns_cbranch_scc1 %s_x" % L)
        A("s_add_u32 s34, s34, 1\ns_cmp_ge_u32 s34, %d\ns_cbranch_scc1 %s_x" % (SPIN_MAX // 8, L))
        nonce_load(vt)
        A("s_waitcnt vmcnt(0)")
        A("v_readfirstlane_b32 s27, v%d" % vt)
        A("s_branch %s" % L)
        A(L + "_x:")

    VD = (5, 6, 7, 8)
    VW = (9, 10, 11, 12)
    VX = (13, 14)
    VXB = 15
    def w_setup(t0):
        A("v_lshrrev_b32 v%d, 3, v1\nv_mul_lo_u32 v%d, v%d, s28" % (t0, t0, t0))
        A("v_bfe_u32 v%d, v1, 4, 1\nv_lshlrev_b32 v%d, 1, v%d\nv_and_b32 v%d, 7, v1\nv_xor_b32 v%d, v%d, v%d" % (t0+1, t0+1, t0+1, t0+2, t0+1, t0+1, t0+2))
        A("v_lshl_add_u32 v%d, v%d, 4, v%d\nv_add_u32 v%d, s29, v%d" % (t0, t0+1, t0, VD[0], t0))
        A("s_lshl_b32 s32, s28, 3\ns_sub_u32 s32, s32, 1024")
        A("v_xor_b32 v%d, 64, v%d\nv_add_u32 v%d, s32, v%d" % (VD[1], VD[0], VD[1], VD[1]))
        A("s_lshl_b32 s32, s32, 1")
        A("v_add_u32 v%d, s32, v%d\nv_add_u32 v%d, s32, v%d" % (VD[2], VD[0], VD[3], VD[1]))
    def wr_setup(t0, sbase):
        A("v_lshrrev_b32 v%d, 4, v1\nv_bfe_u32 v%d, v1, 2, 2\nv_lshl_add_u32 v%d, v%d, 3, v%d\nv_lshlrev_b32 v%d, 7, v%d" % (t0, t0+1, t0, t0, t0+1, t0, t0))
        A("v_bfe_u32 v%d, v1, 3, 2\nv_lshl_add_u32 v%d, v%d, 5, v%d" % (t0+1, t0, t0+1, t0))
        A("v_and_b32 v%d, 3, v1\nv_lshl_add_u32 v%d, v%d, 3, v%d\nv_add_u32 v%d, %s, v%d" % (t0+1, t0, t0+1, t0, VW[0], sbase, t0))
        for m in range(1, 4):
            A("v_xor_b32 v%d, %d, v%d" % (VW[m], 32*m, VW[0]))
    def xr_setup(t0):
        A("v_and_b32 v%d, 15, v1\nv_lshrrev_b32 v%d, 4, v1\nv_bfe_u32 v%d, v1, 1, 3\nv_xor_b32 v%d, v%d, v%d" % (t0, t0+1, t0+2, t0+1, t0+1, t0+2))
        A("v_lshlrev_b32 v%d, 4, v%d\nv_lshl_add_u32 v%d, v%d, 7, v%d" % (t0+1, t0+1, VXB, t0, t0+1))
    def w_dma_list(slot):
        return ["buffer_load_dwordx4 v%d, s[8:11], s31 offen offset:%d lds" % (VD[q], 1024*q) for q in range(4)]
    def soff(slot):
        return 4096*(slot & 1) + (32768 if slot < 2 else 0)
    def w_dma(slot, wrap=True):
        A("s_add_u32 m0, s30, %d" % (soff(slot) - 32768))
        A("s_nop 0")
        for l in w_dma_list(slot): A(l)
        w_adv(wrap)
    def w_adv(wrap=True):
        A("s_add_u32 s31, s31, s29")
        if wrap:
            A("s_cmp_ge_u32 s31, s33\ns_cselect_b32 s31, s3, s31")
    def w_reads(dst, slot):
        return ["ds_read_b64_tr_b16 %s, v%d offset:%d" % (v(dst + 4*m + 2*b, 2), VW[m], soff(slot) + 512*b) for m in range(4) for b in range(2)]

    ACC = 128
    SLOT = 24576
    A(".p2align 8\n.type %s,@function\n%s:" % (KNAME, KNAME))
    A("s_cmp_ge_u32 s2, 256\ns_cbranch_scc1 L_END")
    ST.begin()
    A("s_load_dwordx16 s[36:51], s[0:1], 0")
    A("s_load_dwordx8 s[52:59], s[0:1], 64")
    A("v_lshrrev_b32 v5, 6, v0")
    A("v_and_b32 v1, 63, v0")
    A("v_readfirstlane_b32 s24, v5")
    A("s_getpc_b64 s[22:23]")
    A("L_PC:")
    A("s_and_b32 s32, s2, 0xf8\nv_and_b32 v20, 7, v1\nv_add_u32 v20, s32, v20\nv_lshlrev_b32 v20, 7, v20")
    A("v_min_u32 v20, L_END-L_PC, v20")
    A("s_cmp_lg_u32 s24, 4\ns_cbranch_scc1 L_NOPF")
    A("global_load_dword v0, v20, s[22:23]")
    A("L_NOPF:")
    A("s_and_b32 s3, s2, 7\ns_lshr_b32 s4, s2, 3")
    A("s_lshr_b32 s25, s3, 1\ns_lshl_b32 s25, s25, 3\ns_lshr_b32 s5, s4, 2\ns_add_u32 s25, s25, s5")
    A("s_and_b32 s26, s3, 1\ns_lshl_b32 s26, s26, 2\ns_and_b32 s5, s4, 3\ns_add_u32 s26, s26, s5")
    A("s_and_b32 s32, s25, 1\ns_sub_u32 s4, s26, s32")
    A("v_mov_b32 v%d, 0\nv_mov_b32 v%d, 1\nv_lshlrev_b32 v%d, 4, v1" % (VZ, VONE, VL16))
    A("s_and_b32 s6, s25, 6")
    A("s_mov_b32 s27, 0")
    A("v_lshrrev_b32 v20, 3, v1\nv_and_b32 v21, 7, v1\nv_lshrrev_b32 v22, 4, v1")
    A("s_waitcnt lgkmcnt(0)")
    srd(A, 8, P_WIN, P_WIN + 1, 512*1792*2)
    srd(A, 12, P_X, P_X + 1, 2048*512*2)
    srd(A, 16, P_WS, P_WS + 1, WS_USED)
    srd(A, 60, P_DBG, P_DBG + 1, 256)
    A("s_cmp_ge_u32 s4, 7\ns_cselect_b32 s10, 0, s10")
    A("s_cmp_ge_u32 s24, 4\ns_cbranch_scc1 L_GSTART")
    LX, LZ, LQ = (176, 177), (178, 179), (180, 181)
    A("s_setprio 3")
    A("v_xor_b32 v23, v21, v22")
    A("s_lshl_b32 s28, s25, 6\ns_lshl_b32 s29, s24, 4\ns_add_u32 s28, s28, s29")
    A("v_add_u32 v24, s28, v20\nv_lshlrev_b32 v24, 10, v24\nv_lshl_add_u32 v%d, v23, 4, v24" % LX[0])
    A("v_xor_b32 v%d, 64, v%d\nv_add_u32 v%d, %d, v%d" % (LX[1], LX[0], LX[1], 8192 - 1024, LX[1]))
    A("v_add_u32 v20, s29, v20\nv_and_b32 v22, 1, v22\nv_lshlrev_b32 v22, 1, v22\nv_xor_b32 v21, v21, v22\nv_lshlrev_b32 v21, 4, v21")
    A("v_mul_u32_u24 v24, 3584, v20\ns_lshl_b32 s28, s4, 8\ns_add_u32 s28, s28, 1792\nv_add3_u32 v%d, v24, v21, s28" % LZ[0])
    A("v_xor_b32 v%d, 64, v%d\nv_add_u32 v%d, %d, v%d" % (LZ[1], LZ[0], LZ[1], 8*3584 - 1024, LZ[1]))
    A("s_lshl_b32 s22, s24, 11\ns_add_u32 s23, s22, %d\ns_add_u32 s22, s22, %d" % (L_WQ, L_X))
    A("s_mov_b32 s20, s6\ns_mov_b32 s21, s6")
    vq = []
    def ld_x(i):
        vq.extend([("x", i)]*2)
        A("s_lshl_b32 s31, s20, 13\ns_add_u32 m0, s31, s22\ns_lshl_b32 s31, s20, 7")
        A("buffer_load_dwordx4 v%d, s[12:15], s31 offen lds" % LX[0])
        A("buffer_load_dwordx4 v%d, s[12:15], s31 offen offset:1024 lds" % LX[1])
        A("s_add_u32 s20, s20, 1\ns_and_b32 s20, s20, 7")
    def ld_z(i):
        vq.extend([("w", i)]*4)
        A("s_mul_i32 s31, s21, %d" % (64*3584))
        for d in range(2):
            A("s_add_u32 m0, s23, %d" % (SLOT*((i + 1) % 3) + (8192 - 128)*d))
            A("s_add_u32 s21, s21, 1" if d == 0 else "s_and_b32 s21, s21, 7")
            A("buffer_load_dwordx4 v%d, s[8:11], s31 offen offset:%d lds" % (LZ[0], 128*d))
            A("buffer_load_dwordx4 v%d, s[8:11], s31 offen offset:%d lds" % (LZ[1], 128*d + 1024))
    def q_dma_groups(sbase, imm):
        g = []
        for mat in range(3):
            pre = "s_mul_i32 s31, s21, %d\n" % (64*3072) if mat == 0 else ""
            g.append(pre + "s_add_u32 m0, %s, %d\n" % (sbase, imm + 7168*mat) + ("s_add_u32 s21, s21, 1", "s_and_b32 s21, s21, 7", "s_nop 0")[mat])
            g.append("buffer_load_dwordx4 v%d, s[8:11], s31 offen offset:%d lds" % (LQ[0], 1024*mat))
            g.append("buffer_load_dwordx4 v%d, s[8:11], s31 offen offset:%d lds" % (LQ[1], 1024*mat + 1024))
        return g
    def ld_q(i):
        vq.extend([("w", i)]*6)
        for l in q_dma_groups("s23", SLOT*((i + 1) % 3)): A(l)
    def vwait(*tags):
        last = max(i for i, x in enumerate(vq) if x in tags)
        A("s_waitcnt vmcnt(%d)" % (len(vq) - 1 - last))
    ld_x(0); ld_z(0); ld_x(1); ld_z(1); ld_x(2)
    QA = 128
    XQ, WQ = (16, 72), (48, 104)
    def asetup(part):
        if part == 0:
            A("v_mul_u32_u24 v24, 3072, v20\ns_lshl_b32 s28, s26, 7\nv_add3_u32 v%d, v24, v21, s28" % LQ[0])
            A("v_xor_b32 v%d, 64, v%d\nv_add_u32 v%d, %d, v%d" % (LQ[1], LQ[0], LQ[1], 8*3072 - 1024, LQ[1]))
            A("s_mov_b32 s30, %d" % L_WQ)
            wr_setup(16, "s30"); xr_setup(16)
            A("s_lshl_b32 s32, s24, 5\nv_xor_b32 v%d, s32, v%d" % (VW[1], VW[0]))
        if part == 1: zero(QA, 48)
        if part == 2: zero(XQ[1], 56)
        if part == 3:
            A("v_and_b32 v16, 15, v1\nv_lshlrev_b32 v16, 4, v16\nv_bfe_u32 v18, v1, 4, 1\nv_lshl_add_u32 v16, v18, 21, v16")
            A("v_lshrrev_b32 v19, 5, v1\nv_lshl_add_u32 v182, v19, 9, v16")
            A("v_and_b32 v17, 3, v1\nv_bfe_u32 v16, v1, 2, 1\nv_lshl_or_b32 v17, v16, 3, v17\nv_bfe_u32 v16, v1, 3, 1\nv_lshl_or_b32 v17, v16, 2, v17")
            A("v_lshlrev_b32 v17, 4, v17\nv_lshl_add_u32 v17, v18, 9, v17\nv_lshl_add_u32 v183, v19, 8, v17")
    for i in range(8):
        vwait(("x", i), ("w", i))
        A("s_barrier")
        if i == 0: ST(1)
        if i + 2 < 8: ld_z(i + 2)
        else: ld_q(i + 2)
        for k in {0: [3, 4], 1: [5], 2: [6], 3: [7]}.get(i, []): ld_x(k)
        if 1 <= i <= 4: asetup(i - 1)
        if i == 5: srd(A, 8, P_WQKV, P_WQKV + 1, 512*1536*2)
    A("s_mov_b32 s33, 0\ns_mov_b32 s29, %d\ns_mov_b32 s5, 0" % (2*SLOT))
    def q_mfma(b, k):
        mat, n, p = k >> 3, (k >> 1) & 3, k & 1
        c = v(QA + 16*mat + 4*n, 4)
        xf, wf = v(XQ[b] + 8*n + 4*p, 4), v(WQ[b] + 8*mat + 4*p, 4)
        A("v_mfma_f32_16x16x32_bf16 %s, %s, %s, %s" % ((c, xf, wf, c) if mat == 2 else (c, wf, xf, c)))
    def q_stage(b, dma, wait):
        A("s_lshl_b32 s32, s6, 13\ns_add_u32 s32, s32, %d" % L_X)
        A("v_add_u32 v%d, s32, v%d\nv_xor_b32 v%d, 64, v%d\nv_add_u32 v%d, s33, v%d" % (VX[0], VXB, VX[1], VX[0], VW[0], VW[1]))
        A("s_add_u32 s6, s6, 1\ns_and_b32 s6, s6, 7")
        A("s_add_u32 s28, s29, s23\ns_mov_b32 s29, s33")
        A("s_add_u32 s33, s33, %d\ns_cmp_eq_u32 s33, %d\ns_cselect_b32 s33, 0, s33" % (SLOT, 3*SLOT))
        A("s_waitcnt vmcnt(%d)" % wait)
        A("s_barrier")
        rd = ["ds_read_b64_tr_b16 %s, v%d offset:%d" % (v(WQ[b] + 8*mat + 4*p + 2*h, 2), VW[0], 8192*mat + 4096*p + 512*h) for mat in range(3) for p in range(2) for h in range(2)]
        rd += ["ds_read_b128 %s, v%d offset:%d" % (v(XQ[b] + 8*n + 4*p, 4), VX[p], 2048*n) for n in range(4) for p in range(2)]
        dm = q_dma_groups("s28", 0) if dma else []
        for k in range(24):
            if k < 9 and dm: A(dm[k])
            if k < 20:
                if k == 14: A("s_waitcnt lgkmcnt(8)")
                A(".p2align 3")
                A(rd[k])
            q_mfma(b ^ 1, k)
        A("s_waitcnt lgkmcnt(0)")
    A("L_QLOOP:")
    q_stage(0, True, 6); q_stage(1, True, 6)
    A("s_add_u32 s5, s5, 1\ns_cmp_lt_u32 s5, 3\ns_cbranch_scc1 L_QLOOP")
    q_stage(0, False, 6); q_stage(1, False, 0)
    nonce_load(5)
    A("s_barrier")
    for k in range(24): q_mfma(1, k)
    ST(2)
    A("s_lshl_b32 s7, s26, 2\ns_add_u32 s7, s7, s24")
    A("s_lshl_b32 s31, s7, 16\ns_lshl_b32 s32, s25, 11\ns_add_u32 s31, s31, s32\ns_add_u32 s32, s31, 0x%x" % WS_V)
    A("s_mov_b32 s20, %s\ns_mov_b32 s21, s20" % f32(QSCALE))
    for n in range(4):
        T = 152 + 4*n if False else 184 + 4*n
        c, d = QA + 4*n, QA + 16 + 4*n
        A("v_pk_mul_f32 %s, %s, s[20:21]\nv_pk_mul_f32 %s, %s, s[20:21]" % (v(c, 2), v(c, 2), v(c + 2, 2), v(c + 2, 2)))
        A("v_cvt_pk_bf16_f32 v%d, v%d, v%d\nv_cvt_pk_bf16_f32 v%d, v%d, v%d" % (T + 2, d, d + 1, T + 3, d + 2, d + 3))
        A("v_cvt_pk_bf16_f32 v%d, v%d, v%d\nv_cvt_pk_bf16_f32 v%d, v%d, v%d" % (T, c, c + 1, T + 1, c + 2, c + 3))
        A("s_nop 1")
        A("v_permlane16_swap_b32 v%d, v%d\nv_permlane16_swap_b32 v%d, v%d" % (T, T + 2, T + 1, T + 3))
        A("buffer_store_dwordx4 %s, v182, s[16:19], s31 offen offset:%d sc1" % (v(T, 4), 1024*(n >> 1) + 256*(n & 1)))
    for mp in range(2):
        T = 200 + 4*mp
        c = QA + 32 + 8*mp
        for i in range(4): A("v_cvt_pk_bf16_f32 v%d, v%d, v%d" % (T + i, c + 2*i, c + 2*i + 1))
        A("s_nop 1")
        A("v_permlane16_swap_b32 v%d, v%d\nv_permlane16_swap_b32 v%d, v%d" % (T, T + 2, T + 1, T + 3))
        A("buffer_store_dwordx4 %s, v183, s[16:19], s32 offen offset:%d sc1" % (v(T, 4), 1024*mp))
    A("s_lshl_b32 s21, s7, 7\ns_lshl_b32 s32, s25, 2\ns_add_u32 s21, s21, s32\ns_add_u32 s21, s21, 0x%x" % FL_F1)
    S = (16, 32); O = (48, 64); NM = (80, 96)
    Q = (112, 116); KF = (120, 124); K0 = 128; VF = (132, 140)
    IDX, KA, VA, VC, VAB = 148, 149, 150, 151, 12
    A("s_and_b32 s25, s3, 1\ns_xor_b32 s25, s25, 1\ns_lshl_b32 s25, s25, 2\ns_lshr_b32 s5, s3, 1\ns_add_u32 s25, s25, s5")
    A("s_lshl_b32 s25, s25, 2\ns_lshr_b32 s5, s2, 6\ns_add_u32 s25, s25, s5\ns_bfe_u32 s26, s2, 0x30003")
    A("s_lshl_b32 s7, s26, 2\ns_add_u32 s7, s7, s24")
    A("v_mov_b32 v%d, 0xdddddddd" % IDX)
    zero(VF[0], 16)
    A("s_mov_b32 exec_lo, 0x00110000\ns_mov_b32 exec_hi, 0x00110000")
    A("v_mov_b32 v6, 0x3f803f80\nv_mov_b32 v7, 0x3f803f80")
    for i in range(0, 16, 2): A("v_mov_b64 %s, v[6:7]" % v(VF[0] + i, 2))
    A("s_mov_b64 exec, -1")
    A("s_mov_b32 s22, 0x0000ffff\ns_mov_b32 s23, 0x0000ffff")
    A("v_and_b32 v8, 15, v1\nv_lshlrev_b32 v8, 4, v8\nv_lshrrev_b32 v9, 5, v1\nv_lshl_add_u32 v8, v9, 8, v8")
    A("v_add_u32 v%d, 0x2000, v8" % VAB)
    def att_reset():
        zero(O[0], 32)
        A("v_mov_b32 v%d, v%d\nv_mov_b32 v%d, v%d\nv_mov_b32 v%d, 0" % (KA, VL16, VA, VAB, VC))
    att_reset()
    A("s_lshl_b32 s28, s25, 16")
    A("s_lshl_b32 s29, s7, 11\ns_add_u32 s29, s29, s28")
    A("s_add_u32 s28, s28, 0x%x" % WS_K)
    A("s_lshl_b32 s33, s24, 11")
    A("s_add_u32 s30, s28, s33\ns_add_u32 s31, s30, 0x%x" % (WS_V - WS_K))
    A("s_mov_b32 s20, 0\ns_mov_b32 s6, 1")
    A("v_and_b32 v18, 31, v1\nv_lshlrev_b32 v18, 2, v18")
    nonce_get(5, 6)
    A("s_waitcnt vmcnt(0)")
    set_flag("s21", 17)
    ST(3)
    A("s_lshl_b32 s21, s25, 7\ns_add_u32 s21, s21, 0x%x" % FL_F1)
    poll(18, "s21", 20, sleep=opt.get("sl1", 3))
    ST(4)
    A("buffer_load_dwordx4 %s, v%d, s[16:19], s28 offen sc1" % (v(K0, 4), VL16))
    A("buffer_load_dwordx4 %s, v%d, s[16:19], s29 offen sc1" % (v(Q[0], 4), VL16))
    A("buffer_load_dwordx4 %s, v%d, s[16:19], s29 offen offset:1024 sc1" % (v(Q[1], 4), VL16))
    def kv_dma(first=False):
        if first:
            A("s_cmp_eq_u32 s24, 0\ns_cselect_b32 s32, 1024, 0\ns_add_u32 m0, s33, s32\ns_add_u32 s32, s32, s30")
            A("buffer_load_dwordx4 v%d, s[16:19], s32 offen sc1 lds" % VL16)
            A("s_mov_b32 m0, s33\ns_nop 0")
        else:
            A("s_mov_b32 m0, s33\ns_add_u32 s6, s6, 1")
            A("buffer_load_dwordx4 v%d, s[16:19], s30 offen sc1 lds" % VL16)
        A("buffer_load_dwordx4 v%d, s[16:19], s30 offen offset:1024 sc1 lds" % VL16)
        A("s_add_u32 m0, s33, 8192\ns_add_u32 s30, s30, 8192")
        A("buffer_load_dwordx4 v%d, s[16:19], s31 offen sc1 lds" % VL16)
        A("buffer_load_dwordx4 v%d, s[16:19], s31 offen offset:1024 sc1 lds" % VL16)
        A("s_add_u32 s31, s31, 8192\ns_add_u32 s33, s33, 16384")
    kv_dma(True)
    A("s_lshl_b32 s28, s7, 7\ns_add_u32 s28, s28, 0x%x" % FL_F0)
    A("s_waitcnt vmcnt(4)")
    for sd in range(2):
        A("v_mfma_f32_32x32x16_bf16 %s, %s, %s, 0" % (v(S[sd], 16), v(K0, 4), v(Q[sd], 4)))
    A("s_waitcnt vmcnt(0)")
    arrive(L_CNTKV)
    A("s_nop 7")
    for sd in range(2):
        A("v_max3_f32 v%d, v%d, v%d, v%d" % (6 + 2*sd, S[sd], S[sd] + 1, S[sd] + 2))
        for i in range(3, 15, 2):
            A("v_max3_f32 v%d, v%d, v%d, v%d" % (6 + 2*sd, 6 + 2*sd, S[sd] + i, S[sd] + i + 1))
        A("v_max_f32 v%d, v%d, v%d" % (6 + 2*sd, 6 + 2*sd, S[sd] + 15))
    A("L_SETMAX:")
    A("v_mov_b32 v7, v6\nv_mov_b32 v9, v8\ns_nop 1")
    A("v_permlane32_swap_b32 v6, v7\nv_permlane32_swap_b32 v8, v9\ns_nop 1")
    A("v_max_f32 v6, v6, v7\nv_max_f32 v8, v8, v9\nv_sub_f32 v6, 0, v6\nv_sub_f32 v8, 0, v8\nv_mov_b32 v7, v6\nv_mov_b32 v9, v8")
    for i in range(0, 16, 2): A("v_mov_b64 %s, v[6:7]" % v(NM[0] + i, 2))
    A("v_mov_b64 %s, %s\nv_mov_b64 %s, %s" % (v(KF[0], 2), v(K0, 2), v(KF[0] + 2, 2), v(K0 + 2, 2)))
    A("v_mfma_f32_32x32x16_bf16 %s, %s, %s, %s" % (v(S[0], 16), v(K0, 4), v(Q[0], 4), v(NM[0], 16)))
    for i in range(0, 16, 2): A("v_mov_b64 %s, v[8:9]" % v(NM[1] + i, 2))
    zero(S[1] + 8, 8)
    lds_wait(L_CNTKV, 4, 5)
    A("s_mov_b64 exec, s[22:23]")
    A("ds_read_b128 %s, v%d" % (v(VF[0], 4), VA))
    A("ds_read_b128 %s, v%d offset:512" % (v(VF[0] + 4, 4), VA))
    A("s_mov_b64 exec, -1")
    ST(5)
    A("s_waitcnt lgkmcnt(0)")
    A("s_setprio 1")
    A("s_mov_b32 s5, 0")
    A(".p2align 3")
    A("L_ALOOP:")
    def ex(sd, a_, b_):
        for i in range(a_, b_): A("v_exp_f32 v%d, v%d" % (S[sd] + i, S[sd] + i))
    def sm(sd, vf, half):
        A("v_smfmac_f32_32x32x32_bf16 %s, %s, %s, v%d" % (v(O[sd], 16), v(vf + 4*half, 4), v(S[sd] + 8*half, 8), IDX))
    for t in range(8):
        kc, kn = KF[t & 1], KF[(t + 1) & 1]
        vc, vn = VF[t & 1], VF[(t + 1) & 1]
        noff = (t + 1)*1024 if t < 7 else 16384
        ex(0, 0, 2)
        sm(1, vn, 1)
        if t == 7:
            A("v_readfirstlane_b32 s35, v5")
            A("s_cmp_ge_u32 s35, 4\ns_cbranch_scc1 L_KVOK")
            lds_wait(L_CNTKV + 4, 4, 5, va=VC)
            A("L_KVOK:")
            A("v_add_u32 v%d, 4, v%d" % (VC, VC))
            A(".p2align 3")
        ex(0, 2, 6)
        A("v_mfma_f32_32x32x16_bf16 %s, %s, %s, %s" % (v(S[1], 16), v(kc, 4), v(Q[1], 4), v(NM[1], 16)))
        A("ds_read_b128 %s, v%d offset:%d" % (v(kn, 4), KA, noff))
        ex(0, 6, 7)
        A("s_mov_b64 exec, s[22:23]")
        A("ds_read_b128 %s, v%d offset:%d" % (v(vn, 4), VA, noff))
        A("ds_read_b128 %s, v%d offset:%d" % (v(vn + 4, 4), VA, noff + 512))
        A("s_mov_b64 exec, -1")
        ex(0, 7, 12)
        sm(0, vc, 0)
        if t == 6:
            A("ds_read_b32 v5, v%d offset:%d" % (VC, L_CNTKV + 4))
        ex(0, 12, 16)
        ex(1, 0, 2)
        sm(0, vc, 1)
        if t == 5:
            A("s_waitcnt vmcnt(0)")
            arrive(L_CNTKV + 8, VC)
            A("s_cmp_lg_u32 s6, 3\ns_cbranch_scc1 L_NOG")
            arrive(L_CNTKV + 4)
            A("v_cmp_ne_u32 vcc, s27, v10")
            A("s_nop 4\ns_cbranch_vccz L_GOK")
            poll(VZ, "s28", 10)
            A("L_GOK:")
            A("v_and_b32 v5, 31, v1\nv_lshlrev_b32 v5, 2, v5\ns_lshl_b32 s29, s7, 8\ns_add_u32 s29, s29, 0x%x" % WS_G)
            A("buffer_load_dword v10, v5, s[16:19], s29 offen sc1")
            A("buffer_load_dword v11, v5, s[16:19], s29 offen offset:128 sc1")
            A("L_NOG:")
            A(".p2align 3")
        if t == opt.get("kvt", 0):
            A("s_cmp_ge_u32 s6, 8\ns_cbranch_scc1 L_NODMA")
            A("s_cmp_lg_u32 s6, 1\ns_cbranch_scc1 L_XFREE")
            lds_wait(L_CNTG, 4, 5)
            kv_dma()
            A("buffer_load_dword v10, v%d, s[16:19], s28 offen sc1" % VZ)
            A("L_XFREE:")
            kv_dma()
            A("L_NODMA:")
            A(".p2align 3")
        ex(1, 2, 5)
        A("s_waitcnt lgkmcnt(0)")
        A("v_mfma_f32_32x32x16_bf16 %s, %s, %s, %s" % (v(S[0], 16), v(kn, 4), v(Q[0], 4), v(NM[0], 16)))
        ex(1, 5, 11)
        if t == 7:
            A("v_add_u32 v%d, 0x4000, v%d\nv_add_u32 v%d, 0x4000, v%d" % (KA, KA, VA, VA))
        sm(1, vc, 0)
        ex(1, 11, 15)
        A("v_exp_f32_e64 v%d, v%d" % (S[1] + 15, S[1] + 15) if t < 7 else "v_exp_f32 v%d, v%d" % (S[1] + 15, S[1] + 15))
    A("s_add_u32 s5, s5, 1\ns_cmp_lt_u32 s5, 8\ns_cbranch_scc1 L_ALOOP")
    sm(1, VF[1], 1)
    A("s_setprio 3")
    ST(6)
    A("v_and_b32 v7, 15, v1\nv_lshlrev_b32 v7, 4, v7\nv_bfe_u32 v8, v1, 4, 1\nv_lshl_add_u32 v7, v8, 10, v7\nv_lshrrev_b32 v8, 5, v1\nv_lshl_add_u32 v7, v8, 8, v7")
    A("s_mul_i32 s31, s7, 44\ns_lshr_b32 s32, s25, 1\ns_add_u32 s31, s31, s32\ns_add_u32 s31, s31, 28\ns_lshl_b32 s31, s31, 12")
    A("s_and_b32 s32, s25, 1\ns_lshl_b32 s32, s32, 9\ns_add_u32 s31, s31, s32\ns_add_u32 s31, s31, 0x%x" % WS_ACT)
    A("v_add_f32 v5, abs(v%d), abs(v%d)" % (O[0] + 8, O[0]))
    for i in range(1, 8): A("v_add_f32 v5, v5, abs(v%d)" % (O[0] + i))
    for i in range(9): A("v_add_f32 v5, v5, abs(v%d)" % (O[1] + i))
    A("v_mov_b32 v6, 0x207")
    A("v_cmp_class_f32 vcc, v5, v6")
    A("v_rcp_f32 v5, v%d\nv_rcp_f32 v6, v%d" % (O[0] + 8, O[1] + 8))
    A("s_cmp_lg_u32 s20, 0\ns_cbranch_scc1 L_AFIN")
    A("s_nop 0")
    A("s_cbranch_vccnz L_REDO")
    A("L_AFIN:")
    A("v_mul_f32 v5, v5, v10\nv_mul_f32 v6, v6, v11")
    for sd in range(2):
        for i in range(8): A("v_mul_f32 v%d, v%d, v%d" % (O[sd] + i, 5 + sd, O[sd] + i))
        for i in range(4): A("v_cvt_pk_bf16_f32 v%d, v%d, v%d" % (152 + 4*sd + i, O[sd] + 2*i, O[sd] + 2*i + 1))
        A("buffer_store_dwordx4 %s, v7, s[16:19], s31 offen offset:%d sc1" % (v(152 + 4*sd, 4), 2048*sd))
    A("s_lshl_b32 s31, s7, 12\ns_lshl_b32 s32, s25, 7\ns_add_u32 s31, s31, s32\ns_add_u32 s31, s31, 0x%x" % FL_F5)
    A("s_waitcnt vmcnt(0)")
    set_flag("s31", 5)
    A("s_branch L_FIN")
    A("L_REDO:")
    A("s_waitcnt lgkmcnt(0)")
    A("s_mov_b32 s20, 1")
    A("s_mov_b64 exec, s[22:23]")
    zero(VF[1] + 4, 4)
    A("s_mov_b64 exec, -1")
    A("v_mov_b32 v6, 0xff800000\nv_mov_b32 v8, 0xff800000")
    A("v_mov_b64 %s, %s\nv_mov_b64 %s, %s" % (v(KF[0], 2), v(K0, 2), v(KF[0] + 2, 2), v(K0 + 2, 2)))
    A("s_mov_b32 s5, 1\ns_nop 1")
    A("L_MAXL:")
    for sd in range(2):
        A("v_mfma_f32_32x32x16_bf16 %s, %s, %s, 0" % (v(S[sd], 16), v(KF[0], 4), v(Q[sd], 4)))
    A("s_lshr_b32 s32, s5, 3\ns_lshl_b32 s32, s32, 14\ns_and_b32 s35, s5, 7\ns_lshl_b32 s35, s35, 10\ns_add_u32 s32, s32, s35")
    A("v_add_u32 v%d, s32, v%d" % (KA, VL16))
    A("ds_read_b128 %s, v%d" % (v(KF[0], 4), KA))
    A("s_nop 15")
    for sd in range(2):
        for i in range(0, 16, 2):
            A("v_max3_f32 v%d, v%d, v%d, v%d" % (6 + 2*sd, 6 + 2*sd, S[sd] + i, S[sd] + i + 1))
    A("s_waitcnt lgkmcnt(0)")
    A("s_add_u32 s5, s5, 1\ns_cmp_lt_u32 s5, 65\ns_cbranch_scc1 L_MAXL")
    att_reset()
    A("s_branch L_SETMAX")

    A("L_GSTART:")
    A("s_setprio 2")
    A("s_sub_u32 s7, s24, 4")
    A("s_cmp_lg_u32 s7, 3\ns_cbranch_scc1 L_NOLEAD")
    zero(16, 4)
    A("ds_write_b128 v%d, v[16:19]" % VL16)
    A("s_cmp_lg_u32 s2, 0\ns_cbranch_scc1 L_NOLEAD")
    A("s_mov_b32 s31, 0x%x" % FL_EPOCH)
    A("buffer_load_dword v16, v%d, s[16:19], s31 offen sc0 sc1" % VZ)
    A("s_mov_b32 s32, 0x9e3779b1")
    A("s_waitcnt vmcnt(0)")
    A("v_mul_lo_u32 v16, v16, s32")
    A("v_add_u32 v16, 0x7f4a7c15, v16")
    A("v_max_u32 v16, 1, v16")
    A("s_mov_b64 exec, 1")
    A("buffer_store_dword v16, v%d, s[60:63], 0 offen sc0 sc1" % VZ)
    A("buffer_store_dword v16, v%d, s[16:19], s31 offen sc0 sc1" % VZ)
    A("s_mov_b64 exec, -1")
    A("L_NOLEAD:")
    A("s_lshr_b32 s22, s7, 1\ns_and_b32 s23, s7, 1")
    A("s_lshl_b32 s30, s7, 13\ns_add_u32 s30, s30, %d" % L_G)
    xr_setup(16)
    A("s_cmp_ge_u32 s4, 7\ns_cbranch_scc1 L_G7")
    Z2 = 192
    XZ, WZ = (16, 64), (32, 80)
    A("s_lshl_b32 s32, s22, 13\ns_add_u32 s32, s32, %d" % L_WQ)
    wr_setup(16, "s32")
    A("v_mov_b32 v5, v%d" % VW[0])
    A("s_lshl_b32 s20, s23, 12\ns_add_u32 s20, s20, %d" % L_X)
    zero(Z2, 32); zero(XZ[1], 48)
    A("s_mov_b32 s33, %d\ns_mov_b32 s5, 0\ns_mov_b32 s21, s6" % SLOT)
    def z_mfma(b, k):
        m, nn, p = k >> 2, (k >> 1) & 1, k & 1
        c = v(Z2 + 8*m + 4*nn, 4)
        A("v_mfma_f32_16x16x32_bf16 %s, %s, %s, %s" % (c, v(WZ[b] + 8*m + 4*p, 4), v(XZ[b] + 8*nn + 4*p, 4), c))
    A("s_waitcnt lgkmcnt(0)")
    A("L_ZLOOP:")
    for b in range(2):
        A("s_lshl_b32 s32, s21, 13\ns_add_u32 s32, s32, s20")
        A("v_add_u32 v%d, s32, v%d\nv_xor_b32 v%d, 64, v%d\nv_add_u32 v%d, s33, v5" % (VX[0], VXB, VX[1], VX[0], VW[0]))
        for m in range(1, 4): A("v_xor_b32 v%d, %d, v%d" % (VW[m], 32*m, VW[0]))
        A("s_add_u32 s21, s21, 1\ns_and_b32 s21, s21, 7")
        A("s_add_u32 s33, s33, %d\ns_cmp_eq_u32 s33, %d\ns_cselect_b32 s33, 0, s33" % (SLOT, 3*SLOT))
        A("s_barrier")
        rd = ["ds_read_b128 %s, v%d offset:%d" % (v(XZ[b] + 8*nn + 4*p, 4), VX[p], 2048*nn) for nn in range(2) for p in range(2)]
        rd += ["ds_read_b64_tr_b16 %s, v%d offset:%d" % (v(WZ[b] + 8*m + 4*p + 2*h, 2), VW[m], 4096*p + 512*h) for m in range(4) for p in range(2) for h in range(2)]
        A(".p2align 3")
        for k in range(16):
            if k < 10:
                if k == 7: A("s_waitcnt lgkmcnt(8)\ns_nop 0")
                A(rd[2*k]); A(rd[2*k + 1])
            z_mfma(b ^ 1, k)
        A("s_waitcnt lgkmcnt(0)")
    A("s_add_u32 s5, s5, 1\ns_cmp_lt_u32 s5, 4\ns_cbranch_scc1 L_ZLOOP")
    A("s_barrier")
    ST(1)
    nonce_load(28)
    for k in range(16): z_mfma(1, k)
    A("s_mov_b32 s20, %s\ns_mov_b32 s21, %s" % (f32(GC2), f32(GC2)))
    A("v_mov_b32 v24, %s\nv_mov_b32 v25, %s\nv_mov_b32 v26, 1.0\nv_mov_b32 v27, 1.0" % (f32(GC1), f32(GC1)))
    A("s_mov_b32 s28, 3584")
    A("s_lshl_b32 s29, s4, 8\ns_lshl_b32 s32, s22, 7\ns_add_u32 s29, s29, s32")
    w_setup(16)
    for blk in range(4):
        A("s_barrier")
        emit_gelu(A, Z2 + 8*blk, 8, 16, 24, 20, 26)
    A("s_barrier")
    for nn in range(2):
        sA, sB = 16 + 2*nn, 20 + 2*nn
        for m in range(4):
            for h in range(2):
                c = Z2 + 8*m + 4*nn + 2*h
                if m == 0 and h == 0:
                    A("v_pk_mul_f32 %s, %s, %s" % (v(sB, 2), v(c, 2), v(c, 2)))
                    A("v_pk_add_f32 %s, %s, %s" % (v(sA, 2), v(c, 2), v(c + 2, 2)))
                else:
                    A("v_pk_fma_f32 %s, %s, %s, %s" % (v(sB, 2), v(c, 2), v(c, 2), v(sB, 2)))
                    if m > 0: A("v_pk_add_f32 %s, %s, %s" % (v(sA, 2), v(sA, 2), v(c, 2)))
    for i in range(4): A("v_add_f32 v%d, v%d, v%d" % (16 + 2*i, 16 + 2*i, 17 + 2*i))
    A("s_nop 1")
    A("v_permlane16_swap_b32 v16, v18\nv_permlane16_swap_b32 v20, v22\ns_nop 1")
    A("v_add_f32 v16, v16, v18\nv_add_f32 v18, v20, v22\nv_mov_b32 v17, v16\nv_mov_b32 v19, v18\ns_nop 1")
    A("v_permlane32_swap_b32 v16, v17\nv_permlane32_swap_b32 v18, v19\ns_nop 1")
    A("v_add_f32 v16, v16, v17\nv_add_f32 v18, v18, v19")
    nonce_get(28)
    A("v_mov_b32 v17, s27\nv_mov_b32 v19, s27")
    A("s_lshl_b32 s32, s25, 1\ns_add_u32 s32, s32, s23\ns_mul_i32 s0, s32, 7168\ns_add_u32 s0, s0, 0x%x" % WS_ST)
    A("s_lshl_b32 s32, s4, 1\ns_add_u32 s32, s32, s22\ns_lshl_b32 s32, s32, 9\ns_add_u32 s32, s32, s0")
    A("s_mov_b32 exec_hi, 0")
    A("buffer_store_dwordx4 v[16:19], v%d, s[16:19], s32 offen sc0 sc1" % VL16)
    A("s_mov_b32 exec_hi, -1")
    A("s_barrier")
    A("s_lshl_b32 s29, s28, 5\ns_lshl_b32 s3, s23, 3\ns_mul_i32 s3, s3, s29\ns_lshl_b32 s33, s29, 3\ns_add_u32 s33, s33, s3")
    A("s_bfe_u32 s6, s25, 0x10001\ns_lshl_b32 s32, s6, 2\ns_mul_i32 s31, s32, s29\ns_add_u32 s31, s31, s3")
    A("s_lshl_b32 s32, s23, 1\ns_add_u32 s6, s6, s32")
    w_dma(0); w_dma(1)
    A("s_sub_u32 s32, s30, 32768")
    wr_setup(20, "s32")
    A("s_lshl_b32 s32, s23, 6")
    for m in range(4): A("v_xor_b32 v%d, s32, v%d" % (VW[m], VW[m]))
    XF, WF = (16, 32), (48, 64)
    def x_reads(dst, st):
        return ["ds_read_b128 %s, v%d offset:%d" % (v(dst + 4*n, 4), VX[st & 1], 2048*n + 8192*(st >> 1)) for n in range(4)]
    def x_addr():
        A("s_lshl_b32 s32, s6, 14\ns_add_u32 s32, s32, %d" % L_X)
        A("v_add_u32 v%d, s32, v%d\nv_xor_b32 v%d, 64, v%d" % (VX[0], VXB, VX[1], VX[0]))
        A("s_xor_b32 s6, s6, 1")
    x_addr()
    A("s_barrier")
    zero(ACC, 64)
    A("s_barrier")
    ST(2)
    w_dma(2); w_dma(3)
    R = 4
    A("s_waitcnt vmcnt(%d)" % (4*(R - 1)))
    for l in x_reads(XF[0], 0) + w_reads(WF[0], 0): A(l)
    A("s_waitcnt lgkmcnt(0)")
    w_dma(0)
    A("s_mov_b32 s5, 0")
    A("L_EG:")
    for st in range(4):
        b, nb = st & 1, (st + 1) & 1
        if st == 3:
            A("s_mov_b32 s10, 0")
            x_addr()
        A("s_waitcnt vmcnt(%d)" % (4*(R - 1)))
        rd = w_reads(WF[nb], (st + 1) % R)
        xr = x_reads(XF[nb], (st + 1) & 3)
        rd = xr[:2] + rd[:2] + xr[2:] + rd[2:]
        dm = w_dma_list((st + 1) % R)
        A(".p2align 3")
        for k in range(16):
            m, n = k >> 2, k & 3
            c = v(ACC + 16*m + 4*n, 4)
            A("v_mfma_f32_16x16x32_bf16 %s, %s, %s, %s" % (c, v(WF[b] + 4*m, 4), v(XF[b] + 4*n, 4), c))
            if k < 6:
                A(rd[2*k]); A(rd[2*k + 1])
            if k == 10:
                A("s_add_u32 m0, s30, %d" % (soff((st + 1) % R) - 32768))
                A(".p2align 3")
            if k == 11:
                A("s_waitcnt lgkmcnt(0)\ns_nop 0")
            if k >= 12:
                A(dm[k - 12])
        w_adv()
    A("s_add_u32 s5, s5, 1\ns_cmp_lt_u32 s5, 2\ns_cbranch_scc1 L_EG")
    ST(3)
    def st_loads():
        A("s_add_u32 s1, s0, 4096")
        for j in range(7):
            A("buffer_load_dwordx4 %s, v%d, s[16:19], s%d offen offset:%d sc0 sc1" % (v(32 + 4*j, 4), VL16, j >> 2, 1024*(j & 3)))
        A("buffer_load_dword v60, v%d, s[16:19], s28 offen sc0 sc1" % VZ)
    A("s_lshl_b32 s28, s25, 7\ns_add_u32 s28, s28, 0x%x" % FL_F0)
    st_loads()
    A("v_add_u32 v16, s30, v%d\nv_xor_b32 v17, 0x2000, v16" % VL16)
    A("s_waitcnt vmcnt(8)")
    for q in range(8):
        A("ds_write_b128 v16, %s offset:%d" % (v(ACC + 32 + 4*q, 4), 1024*q))
    A("v_and_b32 v64, 15, v1\nv_lshlrev_b32 v64, 7, v64\nv_bfe_u32 v65, v1, 1, 1\nv_lshl_add_u32 v64, v65, 5, v64")
    A("v_bfe_u32 v65, v1, 3, 1\nv_xor_b32 v65, s23, v65\nv_lshl_add_u32 v64, v65, 6, v64\nv_lshrrev_b32 v65, 4, v1\nv_lshl_add_u32 v64, v65, 3, v64")
    A("s_sub_u32 s32, s30, 32768\nv_add_u32 v64, s32, v64")
    for m in range(1, 4): A("v_xor_b32 v%d, %d, v64" % (64 + m, 32*m))
    A("s_waitcnt lgkmcnt(0)")
    arrive(L_CNTR)
    Lp = A.newlabel("SP")
    A("s_mov_b32 s34, 0")
    A(Lp + ":")
    A("s_waitcnt vmcnt(0)")
    A("v_xor_b32 v20, s27, v60")
    for j in range(7):
        for q in (1, 3):
            A("v_xor_b32 v21, s27, v%d\nv_or_b32 v20, v20, v21" % (32 + 4*j + q))
    A("v_cmp_ne_u32 vcc, 0, v20")
    A("s_add_u32 s34, s34, 1\ns_cmp_ge_u32 s34, %d\ns_cbranch_scc1 %s_x" % (SPIN_MAX // 16, Lp))
    A("s_cbranch_vccz %s_x" % Lp)
    A("s_sleep 4")
    st_loads()
    A("s_branch %s" % Lp)
    A(Lp + "_x:")
    ST(4)
    srd(A, 8, P_BSP, P_BSP + 1, 4096)
    A("v_and_b32 v5, 15, v1\nv_lshlrev_b32 v6, 1, v5\nv_lshlrev_b32 v5, 2, v5")
    A("s_lshl_b32 s28, s25, 7\ns_lshl_b32 s29, s25, 8\ns_add_u32 s29, s29, 0x%x" % WS_G)
    for n in range(4):
        A("buffer_load_ushort v%d, v6, s[8:11], s28 offen offset:%d" % (112 + 2*n, 32*n))
        A("buffer_load_dword v%d, v5, s[16:19], s29 offen offset:%d sc1" % (120 + 2*n, 64*n))
    for j in range(1, 7):
        A("v_add_f32 v32, v32, v%d\nv_add_f32 v34, v34, v%d" % (32 + 4*j, 34 + 4*j))
    A("v_mov_b32 v33, v32\nv_mov_b32 v35, v34\ns_nop 1")
    A("v_permlane32_swap_b32 v32, v33\nv_permlane32_swap_b32 v34, v35\ns_nop 1")
    A("v_add_f32 v32, v32, v33\nv_add_f32 v34, v34, v35")
    A("v_mul_f32 v32, %s, v32\nv_mul_f32 v34, %s, v34" % (f32(1.0/896), f32(1.0/896)))
    A("v_fma_f32 v34, -v32, v32, v34\nv_max_f32 v34, 0, v34\nv_add_f32 v34, %s, v34" % f32(1e-5))
    A("v_rsq_f32 v36, v34\ns_nop 0\nv_mul_f32 v40, v32, v36\nv_sub_f32 v40, 0, v40")
    A("v_mov_b32 v38, v36\nv_mov_b32 v42, v40\ns_nop 1")
    A("v_permlane16_swap_b32 v36, v38\nv_permlane16_swap_b32 v40, v42\ns_nop 1")
    for m in range(4):
        for nn in range(2):
            c = Z2 + 8*m + 4*nn
            T = 44 + 2*(2*m + nn)
            for h in range(2):
                A("v_pk_fma_f32 %s, %s, %s, %s op_sel_hi:[1,0,0]" % (v(c + 2*h, 2), v(c + 2*h, 2), v(36 + 2*nn, 2), v(40 + 2*nn, 2)))
            A("v_cvt_pk_bf16_f32 v%d, v%d, v%d\nv_cvt_pk_bf16_f32 v%d, v%d, v%d" % (T, c, c + 1, T + 1, c + 2, c + 3))
            A("ds_write_b64 v%d, %s offset:%d" % (64 + m, v(T, 2), 2048*nn))
    A("s_lshl_b32 s31, s4, 5\ns_add_u32 s31, s31, s25\ns_lshl_b32 s31, s31, 14\ns_lshl_b32 s32, s22, 13\ns_add_u32 s31, s31, s32")
    A("s_lshl_b32 s32, s23, 10\ns_add_u32 s31, s31, s32\ns_add_u32 s31, s31, 0x%x\ns_add_u32 s32, s31, 4096" % WS_Z2N)
    A("s_waitcnt lgkmcnt(0)")
    for l in w_reads(68, 2): A(l)
    A("s_waitcnt lgkmcnt(0)")
    for m in range(4):
        A("buffer_store_dwordx4 %s, v%d, s[16:19], s%d offen offset:%d sc1" % (v(68 + 4*m, 4), VL16, 31 + (m >> 1), 2048*(m & 1)))
    arrive(L_CNTG)
    lds_wait(L_CNTR, 4, 18)
    for q in range(8):
        A("ds_read_b128 %s, v17 offset:%d" % (v(32 + 4*q, 4), 1024*q))
    A("v_mov_b32 v24, %s\nv_mov_b32 v25, %s\nv_mov_b32 v26, 1.0\nv_mov_b32 v27, 1.0" % (f32(GC1), f32(GC1)))
    A("s_lshl_b32 s31, s4, 7\ns_lshl_b32 s32, s25, 2\ns_add_u32 s31, s31, s32\ns_add_u32 s31, s31, s7\ns_lshl_b32 s31, s31, 7\ns_add_u32 s31, s31, 0x%x" % FL_F3)
    A("s_waitcnt lgkmcnt(0)")
    arrive(L_CNTR)
    for i in range(16):
        A("v_pk_add_f32 %s, %s, %s" % (v(ACC + 2*i, 2), v(ACC + 2*i, 2), v(32 + 2*i, 2)))
    emit_gelu(A, ACC, 24, 16, 24, 20, 26)
    A("s_waitcnt vmcnt(0)")
    set_flag("s31", 28)
    emit_gelu(A, ACC + 24, 8, 16, 24, 20, 26)
    for n in range(4):
        A("v_lshlrev_b32 v%d, 16, v%d\nv_sub_f32 v%d, 1.0, v%d\nv_mov_b32 v%d, v%d" % (112 + 2*n, 112 + 2*n, 120 + 2*n, 120 + 2*n, 113 + 2*n, 112 + 2*n))
    for n in range(4):
        for mm in range(2):
            c = ACC + 16*mm + 4*n
            for h in range(2):
                A("v_pk_mul_f32 %s, %s, %s op_sel_hi:[1,0]" % (v(c + 2*h, 2), v(c + 2*h, 2), v(120 + 2*n, 2)))
            A("v_cvt_pk_bf16_f32 v%d, v%d, v%d\nv_cvt_pk_bf16_f32 v%d, v%d, v%d" % (16 + 4*n + 2*mm, c, c + 1, 17 + 4*n + 2*mm, c + 2, c + 3))
            A("v_mov_b64 %s, %s\nv_mov_b64 %s, %s" % (v(c, 2), v(112 + 2*n, 2), v(c + 2, 2), v(112 + 2*n, 2)))
    ST(5)
    WSP, ZR = 32, 64
    srd(A, 12, P_WSP, P_WSP + 1, 2048*2048*2)
    A("v_lshrrev_b32 v5, 3, v1\nv_and_b32 v6, 7, v1\nv_lshrrev_b32 v7, 4, v1\nv_xor_b32 v6, v6, v7")
    A("s_lshl_b32 s28, s25, 6\nv_add_u32 v5, s28, v5\nv_lshlrev_b32 v5, 12, v5\nv_lshl_add_u32 v5, v6, 4, v5")
    A("v_xor_b32 v6, 64, v5\nv_add_u32 v6, %d, v6" % (32768 - 1024))
    A("v_add_u32 v7, %d, v5\nv_add_u32 v8, %d, v6" % (2*(32768 - 1024), 2*(32768 - 1024)))
    A("s_lshl_b32 s31, s7, 10")
    def sp_dma():
        for hf in range(2):
            A("s_add_u32 m0, s30, %d" % (4096*hf))
            A("s_add_u32 s32, s31, %d" % (131072*hf))
            for q in range(4):
                A("buffer_load_dwordx4 v%d, s[12:15], s32 offen offset:%d lds" % (5 + q, 1024*q))
        A("s_add_u32 s31, s31, 128")
    lds_wait(L_CNTR, 8, 32)
    sp_dma()
    A("v_add_u32 v%d, s30, v%d\nv_xor_b32 v%d, 64, v%d" % (VX[0], VXB, VX[1], VX[0]))
    for mu in range(4):
        A("s_add_u32 s32, s7, %d\ns_and_b32 s32, s32, 3\ns_lshl_b32 s32, s32, 12\nv_add_u32 v%d, s32, v%d" % (mu, 9 + mu, VL16))
    A("s_lshl_b32 s33, s4, 5\ns_lshl_b32 s32, s7, 3\ns_add_u32 s33, s33, s32\ns_lshl_b32 s33, s33, 14\ns_add_u32 s33, s33, 0x%x" % WS_Z2N)
    zero(ACC + 32, 96)
    A("s_lshl_b32 s28, s4, 2\ns_add_u32 s28, s28, s7\ns_lshl_b32 s28, s28, 12\ns_add_u32 s28, s28, 0x%x" % FL_F3)
    A("v_lshl_add_u32 v32, v1, 7, s28")
    A("s_lshl_b32 s28, s26, 11\ns_add_u32 s28, s28, 0x%x" % FL_F6)
    A("s_mov_b32 exec_lo, 0\nv_and_b32 v32, 15, v1\nv_lshl_add_u32 v32, v32, 7, s28\ns_mov_b32 exec_lo, -1")
    poll(32, "0", 33, sleep=opt.get("sl3", 6))
    ST(6)
    def z_load(m):
        for p in range(2):
            A("buffer_load_dwordx4 %s, v%d, s[16:19], s33 offen offset:%d sc1" % (v(ZR + 8*m + 4*p, 4), 9 + (m >> 1), 2048*(m & 1) + 1024*p))
    for m in range(8): z_load(m)
    A("s_mov_b32 s5, 0")
    A("s_setprio %d" % opt.get("gprio", 0))
    A("L_SLOOP:")
    A("s_add_u32 s33, s33, 16384")
    A("s_cmp_eq_u32 s5, 7\ns_cselect_b32 s14, 0, s14\ns_cselect_b32 s33, 0x%x, s33" % 0x7ff00000)
    A("s_waitcnt vmcnt(16)")
    for n in range(4):
        for p in range(2):
            A("ds_read_b128 %s, v%d offset:%d" % (v(WSP + 8*n + 4*p, 4), VX[p], 2048*n))
    A("s_waitcnt lgkmcnt(0)")
    sp_dma()
    for m in range(8):
        A("s_waitcnt vmcnt(22)")
        A(".p2align 3")
        for n in range(4):
            c = v(ACC + 16*m + 4*n, 4)
            for p in range(2):
                A("v_mfma_f32_16x16x32_bf16 %s, %s, %s, %s" % (c, v(ZR + 8*m + 4*p, 4), v(WSP + 8*n + 4*p, 4), c))
        z_load(m)
    A("s_add_u32 s5, s5, 1\ns_cmp_lt_u32 s5, 8\ns_cbranch_scc1 L_SLOOP")
    A("s_setprio %d" % opt.get("gprio2", 2))
    ST(7)
    WHR = (96, 112, 160, 176, 192, 208, 224)
    def wc_base(first_step_expr):
        A("s_mul_i32 s29, s26, 44\n%s\ns_add_u32 s29, s29, s32\ns_lshl_b32 s29, s29, 12\ns_add_u32 s29, s29, 0x%x" % (first_step_expr, WS_WC))
    def wc_load(dst):
        for m in range(4):
            A("buffer_load_dwordx4 %s, v%d, s[16:19], s29 offen offset:%d sc1" % (v(dst + 4*m, 4), VL16, 1024*m))
        A("s_add_u32 s29, s29, 4096")
    wc_base("s_mul_i32 s32, s7, 7")
    A("v_add_u32 v5, s30, v%d" % VL16)
    A("s_waitcnt vmcnt(0)")
    wc_load(WHR[0]); wc_load(WHR[1])
    for r in range(1, 4):
        for q in range(8):
            A("ds_write_b128 v5, %s offset:%d" % (v(ACC + 32*r + 4*q, 4), 1024*q))
        A("s_sub_u32 s32, s7, %d\ns_and_b32 s32, s32, 3\ns_lshl_b32 s32, s32, 13\ns_add_u32 s32, s32, %d" % (r, L_G))
        A("v_add_u32 v6, s32, v%d" % VL16)
        A("s_waitcnt lgkmcnt(0)")
        arrive(L_CNTR)
        for k in range(2*r, min(2*r + 2, 7)): wc_load(WHR[k])
        lds_wait(L_CNTR, 8*r + 4, 7)
        for q in range(8):
            A("ds_read_b128 %s, v6 offset:%d" % (v(ZR + 4*q, 4), 1024*q))
        A("s_waitcnt lgkmcnt(0)")
        if r < 3: arrive(L_CNTR)
        for i in range(16):
            A("v_pk_add_f32 %s, %s, %s" % (v(ACC + 2*i, 2), v(ACC + 2*i, 2), v(ZR + 2*i, 2)))
        if r < 3:
            lds_wait(L_CNTR, 8*r + 8, 7)
    ST(8)
    A("v_and_b32 v5, 15, v1\nv_lshlrev_b32 v5, 4, v5\nv_bfe_u32 v6, v1, 4, 1\nv_lshl_add_u32 v5, v6, 9, v5\nv_lshrrev_b32 v6, 5, v1\nv_lshl_add_u32 v5, v6, 8, v5")
    A("s_mul_i32 s31, s25, 44\ns_lshl_b32 s32, s4, 2\ns_add_u32 s32, s32, s7\ns_add_u32 s31, s31, s32\ns_lshl_b32 s31, s31, 12\ns_add_u32 s31, s31, 0x%x" % WS_ACT)
    for n in range(4):
        T = 48 + 4*n
        for i in range(4): A("v_lshlrev_b32 v%d, 16, v%d\nv_and_b32 v%d, 0xffff0000, v%d" % (32 + 2*i, 16 + 4*n + i, 33 + 2*i, 16 + 4*n + i))
        for mm in range(2):
            c = ACC + 16*mm + 4*n
            for i in range(2): A("v_pk_mul_f32 %s, %s, %s" % (v(c + 2*i, 2), v(c + 2*i, 2), v(32 + 4*mm + 2*i, 2)))
        for mm in range(2):
            c = ACC + 16*mm + 4*n
            A("v_cvt_pk_bf16_f32 v%d, v%d, v%d\nv_cvt_pk_bf16_f32 v%d, v%d, v%d" % (T + 2*mm, c, c + 1, T + 2*mm + 1, c + 2, c + 3))
        A("s_nop 1")
        A("v_permlane16_swap_b32 v%d, v%d\nv_permlane16_swap_b32 v%d, v%d" % (T, T + 2, T + 1, T + 3))
        A("buffer_store_dwordx4 %s, v5, s[16:19], s31 offen offset:%d sc1" % (v(T, 4), 1024*n))
    A("s_lshl_b32 s31, s25, 12\ns_lshl_b32 s32, s32, 7\ns_add_u32 s31, s31, s32\ns_add_u32 s31, s31, 0x%x" % FL_F4)
    A("s_waitcnt vmcnt(0)")
    set_flag("s31", 6)
    A("s_branch L_OUT")
    A("L_G7:")
    A("s_sub_u32 s32, s30, 32768")
    wr_setup(16, "s32")
    A("s_cmp_eq_u32 s7, 0\ns_cbranch_scc1 L_GATE")
    A("s_waitcnt lgkmcnt(0)")
    for i in range(17): A("s_barrier")
    nonce_load(16)
    nonce_get(16)
    A("s_branch L_G7X")
    A("L_GATE:")
    srd(A, 12, P_GW, P_GW + 1, 1024)
    A("v_lshrrev_b32 v16, 4, v1\nv_lshlrev_b32 v16, 4, v16")
    for st in range(16):
        A("buffer_load_dwordx4 %s, v16, s[12:15], 0 offen offset:%d" % (v(64 + 4*st, 4), 64*st))
    A("v_add_u32 v%d, %d, v%d\nv_xor_b32 v%d, 64, v%d" % (VX[0], L_X, VXB, VX[1], VX[0]))
    zero(ACC, 16)
    for i in range(8): A("s_barrier")
    A("s_waitcnt vmcnt(0)")
    nonce_load(20)
    for sb in range(8):
        for p in range(2):
            for n in range(4):
                A("ds_read_b128 %s, v%d offset:%d" % (v(32 + 16*p + 4*n, 4), VX[p], 2048*n + 8192*sb))
        A("s_barrier")
        A("s_waitcnt lgkmcnt(0)")
        for n in range(4):
            for p in range(2):
                A("v_mfma_f32_16x16x32_bf16 %s, %s, %s, %s" % (v(ACC + 4*n, 4), v(64 + 8*sb + 4*p, 4), v(32 + 16*p + 4*n, 4), v(ACC + 4*n, 4)))
    nonce_get(20)
    A("s_nop 3")
    for n in range(4): A("v_mul_f32 v%d, %s, v%d" % (16 + n, f32(-LOG2E), ACC + 4*n))
    for n in range(4): A("v_exp_f32 v%d, v%d" % (16 + n, 16 + n))
    for n in range(4): A("v_add_f32 v%d, 1.0, v%d" % (16 + n, 16 + n))
    for n in range(4): A("v_rcp_f32 v%d, v%d" % (16 + n, 16 + n))
    A("v_lshlrev_b32 v20, 2, v1\ns_lshl_b32 s29, s25, 8\ns_add_u32 s29, s29, 0x%x" % WS_G)
    A("s_mov_b32 exec_lo, 0xffff\ns_mov_b32 exec_hi, 0")
    for n in range(4):
        A("buffer_store_dword v%d, v20, s[16:19], s29 offen offset:%d sc1" % (16 + n, 64*n))
    A("s_mov_b64 exec, -1")
    A("s_barrier")
    A("s_lshl_b32 s28, s25, 7\ns_add_u32 s28, s28, 0x%x" % FL_F0)
    A("s_waitcnt vmcnt(0)")
    set_flag("s28", 16)
    A("L_G7X:")
    arrive(L_CNTG)
    A("s_lshl_b32 s20, s25, 2\ns_add_u32 s20, s20, s7\ns_and_b32 s21, s20, 7\ns_lshr_b32 s20, s20, 3\ns_mov_b32 s22, s20")
    A("s_mov_b32 s28, 1024\ns_lshl_b32 s29, s21, 7")
    w_setup(16)
    A("L_WT:")
    srd(A, 8, P_WOUT, P_WOUT + 1, 896*512*2)
    A("s_lshl_b32 s31, s22, 15")
    A("s_cmp_lt_u32 s22, 28\ns_cbranch_scc1 L_WT2")
    srd(A, 8, P_WO, P_WO + 1, 512*512*2)
    A("s_sub_u32 s31, s31, %d" % (28*32768))
    A("L_WT2:")
    w_dma(0, False)
    A("s_mul_i32 s31, s21, 44\ns_add_u32 s31, s31, s22\ns_lshl_b32 s31, s31, 12\ns_add_u32 s31, s31, 0x%x" % WS_WC)
    A("s_waitcnt vmcnt(0)")
    for l in w_reads(32, 0): A(l)
    A("s_waitcnt lgkmcnt(0)")
    for m in range(4):
        A("buffer_store_dwordx4 %s, v%d, s[16:19], s31 offen offset:%d sc1" % (v(32 + 4*m, 4), VL16, 1024*m))
    A("s_add_u32 s22, s22, 16\ns_cmp_lt_u32 s22, 44\ns_cbranch_scc1 L_WT")
    A("s_lshl_b32 s31, s21, 11\ns_lshl_b32 s32, s20, 7\ns_add_u32 s31, s31, s32\ns_add_u32 s31, s31, 0x%x" % FL_F6)
    A("s_waitcnt vmcnt(0)")
    set_flag("s31", 16)
    A("v_and_b32 v24, 15, v1\nv_lshlrev_b32 v24, 7, v24")
    A("s_lshl_b32 s28, s26, 11\ns_add_u32 s28, s28, 0x%x" % FL_F6)
    poll(24, "s28", 25, sleep=32)
    wc_base("s_mul_i32 s32, s7, 7")
    for k in range(7): wc_load(WHR[k])
    A("L_OUT:")
    ST(9)
    OA = (128, 144, 64, 80)
    HRR = [24 + 4*k for k in range(10)] + [240 + 4*k for k in range(4)]
    NR = 14
    for nu in range(4):
        A("s_add_u32 s32, s7, %d\ns_and_b32 s32, s32, 3\ns_lshl_b32 s32, s32, 10\nv_add_u32 v%d, s32, v%d" % (nu, 16 + nu, VL16))
    A("s_mul_i32 s33, s25, 44\ns_mul_i32 s32, s7, 7\ns_add_u32 s33, s33, s32\ns_lshl_b32 s33, s33, 12\ns_add_u32 s33, s33, 0x%x" % WS_ACT)
    A("v_min_u32 v20, 6, v1\nv_add_u32 v20, s32, v20\nv_lshlrev_b32 v20, 7, v20")
    A("s_lshl_b32 s28, s25, 12\ns_add_u32 s28, s28, 0x%x" % FL_F4)
    poll(20, "s28", 21, sleep=6)
    ST(10)
    vq2 = []
    def vw2(tag):
        last = max(i for i, x in enumerate(vq2) if x == tag)
        A("s_waitcnt vmcnt(%d)" % (len(vq2) - 1 - last))
    def a_load(f, dst):
        vq2.append(("a", f))
        A("buffer_load_dwordx4 %s, v%d, s[16:19], s33 offen sc1" % (v(dst, 4), 16 + (f & 3)))
        if (f & 3) == 3: A("s_add_u32 s33, s33, 4096")
    for f in range(NR): a_load(f, HRR[f])
    wc_base("s_lshl_b32 s32, s7, 2\ns_add_u32 s32, s32, 28")
    for f in range(28):
        st, nu = f >> 2, f & 3
        vw2(("a", f))
        for m in range(4):
            c = v(OA[nu] + 4*m, 4)
            A("v_mfma_f32_16x16x32_bf16 %s, %s, %s, %s" % (c, v(WHR[st] + 4*m, 4), v(HRR[f % NR], 4), c if st else "0"))
        if f + NR < 28: a_load(f + NR, HRR[f % NR])
        if f >= 14 and (f & 1) and (f - 15)//2 < 4:
            wc_load(WHR[(f - 15)//2]); vq2.extend([("w", 0)]*4)
    A("s_mul_i32 s33, s25, 44\ns_lshl_b32 s32, s7, 2\ns_add_u32 s33, s33, s32\ns_add_u32 s33, s33, 28\ns_lshl_b32 s33, s33, 12\ns_add_u32 s33, s33, 0x%x" % WS_ACT)
    A("v_and_b32 v20, 7, v1\ns_lshl_b32 s32, s7, 3\nv_add_u32 v20, s32, v20\nv_lshlrev_b32 v20, 7, v20")
    A("s_lshl_b32 s28, s25, 12\ns_add_u32 s28, s28, 0x%x" % FL_F5)
    srd(A, 12, P_OUT, P_OUT + 1, 2048*512*2)
    for nu in range(1, 4):
        A("s_add_u32 s32, s7, %d\ns_and_b32 s32, s32, 3\ns_mul_i32 s32, s32, 12288\ns_add_u32 s32, s32, %d\nv_add_u32 v%d, s32, v%d" % (nu, 4096*(nu - 1), 8 + nu, VL16))
    A("s_mul_i32 s32, s7, 12288\nv_add_u32 v8, s32, v%d" % VL16)
    A("v_and_b32 v5, 15, v1\nv_lshlrev_b32 v5, 10, v5\nv_bfe_u32 v6, v1, 4, 1\nv_lshl_add_u32 v5, v6, 5, v5\nv_lshrrev_b32 v6, 5, v1\nv_lshl_add_u32 v5, v6, 4, v5")
    A("s_lshl_b32 s31, s25, 16\ns_lshl_b32 s32, s7, 14\ns_add_u32 s31, s31, s32\ns_lshl_b32 s32, s26, 7\ns_add_u32 s31, s31, s32")
    ST(11)
    A("s_barrier")
    poll(20, "s28", 21, sleep=2)
    ST(12)
    for f in range(16): a_load(f, 192 + 4*f)
    for f in range(16):
        st, nu = f >> 2, f & 3
        A("s_waitcnt vmcnt(%d)" % (15 - f))
        for m in range(4):
            c = v(OA[nu] + 4*m, 4)
            A("v_mfma_f32_16x16x32_bf16 %s, %s, %s, %s" % (c, v(WHR[st] + 4*m, 4), v(192 + 4*f, 4), c))
    A("s_nop 3")
    for nu in range(1, 4):
        for m in range(4):
            A("ds_write_b128 v%d, %s offset:%d" % (8 + nu, v(OA[nu] + 4*m, 4), 1024*m))
    A("s_waitcnt lgkmcnt(0)")
    A("s_barrier")
    for j in range(12):
        A("ds_read_b128 %s, v8 offset:%d" % (v(192 + 4*j, 4), 1024*j))
    for j in range(3):
        A("s_waitcnt lgkmcnt(%d)" % (8 - 4*j))
        for i in range(8):
            A("v_pk_add_f32 %s, %s, %s" % (v(OA[0] + 2*i, 2), v(OA[0] + 2*i, 2), v(192 + 16*j + 2*i, 2)))
    for i in range(8): A("v_cvt_pk_bf16_f32 v%d, v%d, v%d" % (24 + i, OA[0] + 2*i, OA[0] + 2*i + 1))
    A("s_nop 1")
    for mp in range(2):
        T = 24 + 4*mp
        A("v_permlane16_swap_b32 v%d, v%d\nv_permlane16_swap_b32 v%d, v%d" % (T, T + 2, T + 1, T + 3))
        A("buffer_store_dwordx4 %s, v5, s[12:15], s31 offen offset:%d" % (v(T, 4), 64*mp))
    A("L_FIN:")
    ST.end(24)
    A("L_END:")
    A("s_endpgm")

def build(stamps=False, opt=None):
    ref = open("gated_mix__softmax_full_mha__mixer_gmlp__prompt.s.ref").read().split("\n")
    hdr = [l for l in ref if l.startswith(";") and "@launch" not in l]
    out = "\n".join(hdr) + "\n; @launch grid=(256,1,1) block=(512,1,1) lds=163840\n"
    out += '.amdgcn_target "amdgcn-amd-amdhsa--gfx950"\n.text\n.globl %s\n' % KNAME
    A = Asm()
    gen(A, stamps, opt)
    txt = A.text()
    if (opt or {}).get("sc1only", 1): txt = txt.replace("sc0 sc1", "sc1")
    out += txt + '.section .rodata,"a"\n' + kdesc(KNAME, 256, 100, 256)
    return out
if __name__ == "__main__":
    import sys
    opt = dict((a_.split("=")[0], int(a_.split("=")[1])) for a_ in sys.argv[2:] if "=" in a_)
    open(sys.argv[1], "w").write(build("--stamps" in sys.argv, opt))
```

```python
import sys, importlib
from asmlib2 import *
def probe(mod, role, k, kind, opt=None):
    m = importlib.import_module(mod)
    t = m.build(True, opt)
    for q in range(4):
        t = t.replace("s96 offen offset:%d\n" % (16*q), "s96 offen offset:%d sc1\n" % (16*q))
    code = """
    s_cmp_lg_u32 s2, 0
    s_cbranch_scc1 L_END
    s_cmp_lg_u32 s24, 4
    s_cbranch_scc1 L_END
    s_mov_b32 s97, 0
PR_W1:
    s_memrealtime s[92:93]
    s_waitcnt lgkmcnt(0)
    s_sub_u32 s92, s92, s64
    s_add_u32 s97, s97, 1
    s_cmp_ge_u32 s97, 0x10000
    s_cbranch_scc1 PR_W1X
    s_cmp_lt_u32 s92, 5000
    s_cbranch_scc1 PR_W1
PR_W1X:
    v_lshrrev_b32 v5, 2, v1
    v_and_b32 v6, 3, v1
    v_lshlrev_b32 v5, 10, v5
    v_lshl_add_u32 v5, v6, 6, v5
    s_mov_b32 s96, 0x%x
""" % (WS_TS + (0 if role == "A" else 256))
    for i in range(16):
        code += "    buffer_load_dword v%d, v5, s[16:19], s96 offen sc1\n    buffer_load_dword v%d, v5, s[16:19], s96 offen offset:%d sc1\n    s_add_u32 s96, s96, 16384\n" % (16+i, 32+i, 4*k)
    code += "    s_waitcnt vmcnt(0)\n    s_sub_u32 s98, s64, 1000\n    v_mov_b32 v7, %s\n    v_mov_b32 v8, -1\n    v_mov_b32 v10, 0\n" % ("-1" if kind == "min" else "0")
    for i in range(16):
        code += "    v_subrev_u32 v%d, s98, v%d\n    v_min_u32 v8, v8, v%d\n" % (16+i, 16+i, 16+i)
        code += "    v_cmp_ne_u32 vcc, 0, v%d\n    v_subrev_u32 v9, s98, v%d\n    s_and_saveexec_b64 s[20:21], vcc\n" % (32+i, 32+i)
        code += "    %s v7, v7, v9\n    v_add_u32 v10, 1, v10\n    s_mov_b64 exec, -1\n" % {"max": "v_max_u32", "min": "v_min_u32", "mean": "v_add_u32"}[kind]
    code += "    s_mov_b32 s20, %s\n    s_mov_b32 s21, -1\n    s_mov_b32 s22, 0\n    s_mov_b32 s23, 0\nPR_R:\n    s_nop 4\n" % ("-1" if kind == "min" else "0")
    code += "    v_readlane_b32 s28, v7, s23\n    v_readlane_b32 s29, v8, s23\n    v_readlane_b32 s30, v10, s23\n    s_nop 4\n"
    code += "    %s s20, s20, s28\n    s_min_u32 s21, s21, s29\n    s_add_u32 s22, s22, s30\n    s_add_u32 s23, s23, 1\n    s_cmp_lt_u32 s23, 64\n    s_cbranch_scc1 PR_R\n" % {"max": "s_max_u32", "min": "s_min_u32", "mean": "s_add_u32"}[kind]
    if kind == "mean":
        code += "    v_cvt_f32_u32 v7, s20\n    v_cvt_f32_u32 v8, s22\n    v_rcp_f32 v8, v8\n    s_nop 1\n    v_mul_f32 v7, v7, v8\n    v_cvt_u32_f32 v7, v7\n    s_nop 1\n    v_readfirstlane_b32 s20, v7\n    s_nop 4\n"
    code += """    s_sub_u32 s28, s20, s21
    v_mov_b32 v7, s28
    v_mov_b32 v3, 0
    buffer_store_dword v7, v3, s[60:63], 0 offen offset:16
    s_min_u32 s96, s20, 7000
    s_add_u32 s96, s96, 6000
PR_W2:
    s_memrealtime s[92:93]
    s_waitcnt lgkmcnt(0)
    s_sub_u32 s92, s92, s98
    s_add_u32 s97, s97, 1
    s_cmp_ge_u32 s97, 0x20000
    s_cbranch_scc1 L_END
    s_cmp_lt_u32 s92, s96
    s_cbranch_scc1 PR_W2
"""
    return t.replace("L_END:\n", code + "L_END:\n")
if __name__ == "__main__":
    mod = sys.argv[1]
    for i, spec in enumerate(sys.argv[2:]):
        role, k, kind = spec.split(":")
        open("pr%d.s" % i, "w").write(probe(mod, role, int(k), kind))
```

```python
from asmlib2 import *
from p1 import emit_gelu, LOG2E, QSCALE, GC1, GC2

KNAME = "gated_mix__softmax_full_mha__mixer_gmlp__prompt_kernel"
L_CNTG, L_CNTR, L_CNTKV = 0, 16, 32
L_X = 16384
L_WQ = 81920
L_G = 131072
P_X, P_WQKV, P_WO, P_WIN, P_WSP, P_BSP, P_WOUT = 36, 38, 40, 44, 46, 48, 50
P_GW, P_OUT, P_DBG, P_WS = 52, 54, 56, 58
SPIN_MAX = 0x20000

def gen(A, stamps=False, opt=None):
    opt = opt or {}
    ST = Stamps(A, stamps)
    VZ, VONE = 2, 3
    VL16 = 4
    def arrive(off, va=VZ):
        A("s_mov_b64 exec, 1")
        A("ds_add_u32 v%d, v%d offset:%d" % (va, VONE, off))
        A("s_mov_b64 exec, -1")
    def zero(base, n):
        for i in range(0, n, 2): A("v_mov_b64 %s, 0" % v(base + i, 2))
    def lds_wait(off, thr, vt, sleep=0, va=VZ):
        L = A.newlabel("LW")
        A("s_mov_b32 s34, 0")
        A(L + ":")
        if sleep: A("s_sleep %d" % sleep)
        A("ds_read_b32 v%d, v%d offset:%d" % (vt, va, off))
        A("s_waitcnt lgkmcnt(0)")
        A("v_readfirstlane_b32 s35, v%d" % vt)
        A("s_add_u32 s34, s34, 1\ns_cmp_ge_u32 s34, %d\ns_cbranch_scc1 %s_x" % (SPIN_MAX, L))
        A("s_cmp_lt_u32 s35, %s\ns_cbranch_scc1 %s" % (thr, L))
        A(L + "_x:")
    def set_flag(soff, vt):
        A("v_mov_b32 v%d, s27" % vt)
        A("s_mov_b64 exec, 1")
        A("buffer_store_dword v%d, v%d, s[16:19], %s offen sc0 sc1" % (vt, VZ, soff))
        A("s_mov_b64 exec, -1")
    def poll(vaddr, soff, vt, sleep=4, second=None):
        L = A.newlabel("PL")
        A("s_mov_b32 s34, 0")
        A(L + ":")
        A("buffer_load_dword v%d, v%d, s[16:19], %s offen sc0 sc1" % (vt, vaddr, soff))
        if second is not None:
            A("buffer_load_dword v%d, v%d, s[16:19], %s offen sc0 sc1" % (vt + 1, second, soff))
        A("s_waitcnt vmcnt(0)")
        A("v_xor_b32 v%d, s27, v%d" % (vt, vt))
        if second is not None:
            A("v_xor_b32 v%d, s27, v%d\nv_or_b32 v%d, v%d, v%d" % (vt + 1, vt + 1, vt, vt, vt + 1))
        A("v_cmp_ne_u32 vcc, 0, v%d" % vt)
        A("s_add_u32 s34, s34, 1\ns_cmp_ge_u32 s34, %d\ns_cbranch_scc1 %s_x" % (SPIN_MAX // 8, L))
        A("s_cbranch_vccz %s_x" % L)
        A("s_sleep %d" % sleep)
        A("s_branch %s" % L)
        A(L + "_x:")
    def nonce_load(vt):
        A("buffer_load_dword v%d, v%d, s[60:63], 0 offen sc0 sc1" % (vt, VZ))
    def nonce_get(vt, cnt=0):
        L = A.newlabel("NG")
        A("s_waitcnt vmcnt(%d)" % cnt)
        A("v_readfirstlane_b32 s27, v%d" % vt)
        A("s_mov_b32 s34, 0")
        A(L + ":")
        A("s_cmp_lg_u32 s27, 0\ns_cbranch_scc1 %s_x" % L)
        A("s_add_u32 s34, s34, 1\ns_cmp_ge_u32 s34, %d\ns_cbranch_scc1 %s_x" % (SPIN_MAX // 8, L))
        nonce_load(vt)
        A("s_waitcnt vmcnt(0)")
        A("v_readfirstlane_b32 s27, v%d" % vt)
        A("s_branch %s" % L)
        A(L + "_x:")

    VD = (5, 6, 7, 8)
    VW = (9, 10, 11, 12)
    VX = (13, 14)
    VXB = 15
    def w_setup(t0):
        A("v_lshrrev_b32 v%d, 3, v1\nv_mul_lo_u32 v%d, v%d, s28" % (t0, t0, t0))
        A("v_bfe_u32 v%d, v1, 4, 1\nv_lshlrev_b32 v%d, 1, v%d\nv_and_b32 v%d, 7, v1\nv_xor_b32 v%d, v%d, v%d" % (t0+1, t0+1, t0+1, t0+2, t0+1, t0+1, t0+2))
        A("v_lshl_add_u32 v%d, v%d, 4, v%d\nv_add_u32 v%d, s29, v%d" % (t0, t0+1, t0, VD[0], t0))
        A("s_lshl_b32 s32, s28, 3\ns_sub_u32 s32, s32, 1024")
        A("v_xor_b32 v%d, 64, v%d\nv_add_u32 v%d, s32, v%d" % (VD[1], VD[0], VD[1], VD[1]))
        A("s_lshl_b32 s32, s32, 1")
        A("v_add_u32 v%d, s32, v%d\nv_add_u32 v%d, s32, v%d" % (VD[2], VD[0], VD[3], VD[1]))
    def wr_setup(t0, sbase):
        A("v_lshrrev_b32 v%d, 4, v1\nv_bfe_u32 v%d, v1, 2, 2\nv_lshl_add_u32 v%d, v%d, 3, v%d\nv_lshlrev_b32 v%d, 7, v%d" % (t0, t0+1, t0, t0, t0+1, t0, t0))
        A("v_bfe_u32 v%d, v1, 3, 2\nv_lshl_add_u32 v%d, v%d, 5, v%d" % (t0+1, t0, t0+1, t0))
        A("v_and_b32 v%d, 3, v1\nv_lshl_add_u32 v%d, v%d, 3, v%d\nv_add_u32 v%d, %s, v%d" % (t0+1, t0, t0+1, t0, VW[0], sbase, t0))
        for m in range(1, 4):
            A("v_xor_b32 v%d, %d, v%d" % (VW[m], 32*m, VW[0]))
    def xr_setup(t0):
        A("v_and_b32 v%d, 15, v1\nv_lshrrev_b32 v%d, 4, v1\nv_bfe_u32 v%d, v1, 1, 3\nv_xor_b32 v%d, v%d, v%d" % (t0, t0+1, t0+2, t0+1, t0+1, t0+2))
        A("v_lshlrev_b32 v%d, 4, v%d\nv_lshl_add_u32 v%d, v%d, 7, v%d" % (t0+1, t0+1, VXB, t0, t0+1))
    def w_dma_list(slot):
        return ["buffer_load_dwordx4 v%d, s[8:11], s31 offen offset:%d lds" % (VD[q], 1024*q) for q in range(4)]
    def soff(slot):
        return 4096*(slot & 1) + (32768 if slot < 2 else 0)
    def w_dma(slot, wrap=True):
        A("s_add_u32 m0, s30, %d" % (soff(slot) - 32768))
        A("s_nop 0")
        for l in w_dma_list(slot): A(l)
        w_adv(wrap)
    def w_adv(wrap=True):
        A("s_add_u32 s31, s31, s29")
        if wrap:
            A("s_cmp_ge_u32 s31, s33\ns_cselect_b32 s31, s3, s31")
    def w_reads(dst, slot):
        return ["ds_read_b64_tr_b16 %s, v%d offset:%d" % (v(dst + 4*m + 2*b, 2), VW[m], soff(slot) + 512*b) for m in range(4) for b in range(2)]

    ACC = 128
    SLOT = 24576
    A(".p2align 8\n.type %s,@function\n%s:" % (KNAME, KNAME))
    A("s_cmp_ge_u32 s2, 256\ns_cbranch_scc1 L_END")
    ST.begin()
    A("s_load_dwordx16 s[36:51], s[0:1], 0")
    A("s_load_dwordx8 s[52:59], s[0:1], 64")
    A("v_lshrrev_b32 v5, 6, v0")
    A("v_and_b32 v1, 63, v0")
    A("v_readfirstlane_b32 s24, v5")
    A("s_getpc_b64 s[22:23]")
    A("L_PC:")
    A("s_and_b32 s32, s2, 0xf8\nv_and_b32 v20, 7, v1\nv_add_u32 v20, s32, v20\nv_lshlrev_b32 v20, 7, v20")
    A("v_min_u32 v20, L_END-L_PC, v20")
    A("s_cmp_lg_u32 s24, 4\ns_cbranch_scc1 L_NOPF")
    A("global_load_dword v0, v20, s[22:23]")
    A("L_NOPF:")
    A("s_and_b32 s3, s2, 7\ns_lshr_b32 s4, s2, 3")
    A("s_lshr_b32 s25, s3, 1\ns_lshl_b32 s25, s25, 3\ns_lshr_b32 s5, s4, 2\ns_add_u32 s25, s25, s5")
    A("s_and_b32 s26, s3, 1\ns_lshl_b32 s26, s26, 2\ns_and_b32 s5, s4, 3\ns_add_u32 s26, s26, s5")
    A("s_and_b32 s32, s25, 1\ns_sub_u32 s4, s26, s32")
    A("v_mov_b32 v%d, 0\nv_mov_b32 v%d, 1\nv_lshlrev_b32 v%d, 4, v1" % (VZ, VONE, VL16))
    A("s_and_b32 s6, s25, 6")
    A("s_mov_b32 s27, 0")
    A("v_lshrrev_b32 v20, 3, v1\nv_and_b32 v21, 7, v1\nv_lshrrev_b32 v22, 4, v1")
    A("s_waitcnt lgkmcnt(0)")
    srd(A, 8, P_WIN, P_WIN + 1, 512*1792*2)
    srd(A, 12, P_X, P_X + 1, 2048*512*2)
    srd(A, 16, P_WS, P_WS + 1, WS_USED)
    srd(A, 60, P_DBG, P_DBG + 1, 256)
    A("s_cmp_ge_u32 s4, 7\ns_cselect_b32 s10, 0, s10")
    A("s_cmp_ge_u32 s24, 4\ns_cbranch_scc1 L_GSTART")
    LX, LZ, LQ = (176, 177), (178, 179), (180, 181)
    A("s_setprio 3")
    A("v_xor_b32 v23, v21, v22")
    A("s_lshl_b32 s28, s25, 6\ns_lshl_b32 s29, s24, 4\ns_add_u32 s28, s28, s29")
    A("v_add_u32 v24, s28, v20\nv_lshlrev_b32 v24, 10, v24\nv_lshl_add_u32 v%d, v23, 4, v24" % LX[0])
    A("v_xor_b32 v%d, 64, v%d\nv_add_u32 v%d, %d, v%d" % (LX[1], LX[0], LX[1], 8192 - 1024, LX[1]))
    A("v_add_u32 v20, s29, v20\nv_and_b32 v22, 1, v22\nv_lshlrev_b32 v22, 1, v22\nv_xor_b32 v21, v21, v22\nv_lshlrev_b32 v21, 4, v21")
    A("v_mul_u32_u24 v24, 3584, v20\ns_lshl_b32 s28, s4, 8\ns_add_u32 s28, s28, 1792\nv_add3_u32 v%d, v24, v21, s28" % LZ[0])
    A("v_xor_b32 v%d, 64, v%d\nv_add_u32 v%d, %d, v%d" % (LZ[1], LZ[0], LZ[1], 8*3584 - 1024, LZ[1]))
    A("s_lshl_b32 s22, s24, 11\ns_add_u32 s23, s22, %d\ns_add_u32 s22, s22, %d" % (L_WQ, L_X))
    A("s_mov_b32 s20, s6\ns_mov_b32 s21, s6")
    vq = []
    def ld_x(i):
        vq.extend([("x", i)]*2)
        A("s_lshl_b32 s31, s20, 13\ns_add_u32 m0, s31, s22\ns_lshl_b32 s31, s20, 7")
        A("buffer_load_dwordx4 v%d, s[12:15], s31 offen lds" % LX[0])
        A("buffer_load_dwordx4 v%d, s[12:15], s31 offen offset:1024 lds" % LX[1])
        A("s_add_u32 s20, s20, 1\ns_and_b32 s20, s20, 7")
    def ld_z(i):
        vq.extend([("w", i)]*4)
        A("s_mul_i32 s31, s21, %d" % (64*3584))
        for d in range(2):
            A("s_add_u32 m0, s23, %d" % (SLOT*((i + 1) % 3) + (8192 - 128)*d))
            A("s_add_u32 s21, s21, 1" if d == 0 else "s_and_b32 s21, s21, 7")
            A("buffer_load_dwordx4 v%d, s[8:11], s31 offen offset:%d lds" % (LZ[0], 128*d))
            A("buffer_load_dwordx4 v%d, s[8:11], s31 offen offset:%d lds" % (LZ[1], 128*d + 1024))
    def q_dma_groups(sbase, imm):
        g = []
        for mat in range(3):
            pre = "s_mul_i32 s31, s21, %d\n" % (64*3072) if mat == 0 else ""
            g.append(pre + "s_add_u32 m0, %s, %d\n" % (sbase, imm + 7168*mat) + ("s_add_u32 s21, s21, 1", "s_and_b32 s21, s21, 7", "s_nop 0")[mat])
            g.append("buffer_load_dwordx4 v%d, s[8:11], s31 offen offset:%d lds" % (LQ[0], 1024*mat))
            g.append("buffer_load_dwordx4 v%d, s[8:11], s31 offen offset:%d lds" % (LQ[1], 1024*mat + 1024))
        return g
    def ld_q(i):
        vq.extend([("w", i)]*6)
        for l in q_dma_groups("s23", SLOT*((i + 1) % 3)): A(l)
    def vwait(*tags):
        last = max(i for i, x in enumerate(vq) if x in tags)
        A("s_waitcnt vmcnt(%d)" % (len(vq) - 1 - last))
    ld_x(0); ld_z(0); ld_x(1); ld_z(1); ld_x(2)
    QA = 128
    XQ, WQ = (16, 72), (48, 104)
    def asetup(part):
        if part == 0:
            A("v_mul_u32_u24 v24, 3072, v20\ns_lshl_b32 s28, s26, 7\nv_add3_u32 v%d, v24, v21, s28" % LQ[0])
            A("v_xor_b32 v%d, 64, v%d\nv_add_u32 v%d, %d, v%d" % (LQ[1], LQ[0], LQ[1], 8*3072 - 1024, LQ[1]))
            A("s_mov_b32 s30, %d" % L_WQ)
            wr_setup(16, "s30"); xr_setup(16)
            A("s_lshl_b32 s32, s24, 5\nv_xor_b32 v%d, s32, v%d" % (VW[1], VW[0]))
        if part == 1: zero(QA, 48)
        if part == 2: zero(XQ[1], 56)
        if part == 3:
            A("v_and_b32 v16, 15, v1\nv_lshlrev_b32 v16, 4, v16\nv_bfe_u32 v18, v1, 4, 1\nv_lshl_add_u32 v16, v18, 21, v16")
            A("v_lshrrev_b32 v19, 5, v1\nv_lshl_add_u32 v182, v19, 9, v16")
            A("v_and_b32 v17, 3, v1\nv_bfe_u32 v16, v1, 2, 1\nv_lshl_or_b32 v17, v16, 3, v17\nv_bfe_u32 v16, v1, 3, 1\nv_lshl_or_b32 v17, v16, 2, v17")
            A("v_lshlrev_b32 v17, 4, v17\nv_lshl_add_u32 v17, v18, 9, v17\nv_lshl_add_u32 v183, v19, 8, v17")
    for i in range(8):
        vwait(("x", i), ("w", i))
        A("s_barrier")
        if i == 0: ST(1)
        if i + 2 < 8: ld_z(i + 2)
        else: ld_q(i + 2)
        for k in {0: [3, 4], 1: [5], 2: [6], 3: [7]}.get(i, []): ld_x(k)
        if 1 <= i <= 4: asetup(i - 1)
        if i == 5: srd(A, 8, P_WQKV, P_WQKV + 1, 512*1536*2)
    A("s_mov_b32 s33, 0\ns_mov_b32 s29, %d\ns_mov_b32 s5, 0" % (2*SLOT))
    def q_mfma(b, k):
        mat, n, p = k >> 3, (k >> 1) & 3, k & 1
        c = v(QA + 16*mat + 4*n, 4)
        xf, wf = v(XQ[b] + 8*n + 4*p, 4), v(WQ[b] + 8*mat + 4*p, 4)
        A("v_mfma_f32_16x16x32_bf16 %s, %s, %s, %s" % ((c, xf, wf, c) if mat == 2 else (c, wf, xf, c)))
    def q_stage(b, dma, wait):
        A("s_lshl_b32 s32, s6, 13\ns_add_u32 s32, s32, %d" % L_X)
        A("v_add_u32 v%d, s32, v%d\nv_xor_b32 v%d, 64, v%d\nv_add_u32 v%d, s33, v%d" % (VX[0], VXB, VX[1], VX[0], VW[0], VW[1]))
        A("s_add_u32 s6, s6, 1\ns_and_b32 s6, s6, 7")
        A("s_add_u32 s28, s29, s23\ns_mov_b32 s29, s33")
        A("s_add_u32 s33, s33, %d\ns_cmp_eq_u32 s33, %d\ns_cselect_b32 s33, 0, s33" % (SLOT, 3*SLOT))
        A("s_waitcnt vmcnt(%d)" % wait)
        A("s_barrier")
        rd = ["ds_read_b64_tr_b16 %s, v%d offset:%d" % (v(WQ[b] + 8*mat + 4*p + 2*h, 2), VW[0], 8192*mat + 4096*p + 512*h) for mat in range(3) for p in range(2) for h in range(2)]
        rd += ["ds_read_b128 %s, v%d offset:%d" % (v(XQ[b] + 8*n + 4*p, 4), VX[p], 2048*n) for n in range(4) for p in range(2)]
        dm = q_dma_groups("s28", 0) if dma else []
        for k in range(24):
            if k < 9 and dm: A(dm[k])
            if k < 20:
                if k == 14: A("s_waitcnt lgkmcnt(8)")
                A(".p2align 3")
                A(rd[k])
            q_mfma(b ^ 1, k)
        A("s_waitcnt lgkmcnt(0)")
    A("L_QLOOP:")
    q_stage(0, True, 6); q_stage(1, True, 6)
    A("s_add_u32 s5, s5, 1\ns_cmp_lt_u32 s5, 3\ns_cbranch_scc1 L_QLOOP")
    q_stage(0, False, 6); q_stage(1, False, 0)
    nonce_load(5)
    A("s_barrier")
    for k in range(24): q_mfma(1, k)
    ST(2)
    A("s_lshl_b32 s7, s26, 2\ns_add_u32 s7, s7, s24")
    A("s_lshl_b32 s31, s7, 16\ns_lshl_b32 s32, s25, 11\ns_add_u32 s31, s31, s32\ns_add_u32 s32, s31, 0x%x" % WS_V)
    A("s_mov_b32 s20, %s\ns_mov_b32 s21, s20" % f32(QSCALE))
    for n in range(4):
        T = 152 + 4*n if False else 184 + 4*n
        c, d = QA + 4*n, QA + 16 + 4*n
        A("v_pk_mul_f32 %s, %s, s[20:21]\nv_pk_mul_f32 %s, %s, s[20:21]" % (v(c, 2), v(c, 2), v(c + 2, 2), v(c + 2, 2)))
        A("v_cvt_pk_bf16_f32 v%d, v%d, v%d\nv_cvt_pk_bf16_f32 v%d, v%d, v%d" % (T + 2, d, d + 1, T + 3, d + 2, d + 3))
        A("v_cvt_pk_bf16_f32 v%d, v%d, v%d\nv_cvt_pk_bf16_f32 v%d, v%d, v%d" % (T, c, c + 1, T + 1, c + 2, c + 3))
        A("s_nop 1")
        A("v_permlane16_swap_b32 v%d, v%d\nv_permlane16_swap_b32 v%d, v%d" % (T, T + 2, T + 1, T + 3))
        A("buffer_store_dwordx4 %s, v182, s[16:19], s31 offen offset:%d sc1" % (v(T, 4), 1024*(n >> 1) + 256*(n & 1)))
    for mp in range(2):
        T = 200 + 4*mp
        c = QA + 32 + 8*mp
        for i in range(4): A("v_cvt_pk_bf16_f32 v%d, v%d, v%d" % (T + i, c + 2*i, c + 2*i + 1))
        A("s_nop 1")
        A("v_permlane16_swap_b32 v%d, v%d\nv_permlane16_swap_b32 v%d, v%d" % (T, T + 2, T + 1, T + 3))
        A("buffer_store_dwordx4 %s, v183, s[16:19], s32 offen offset:%d sc1" % (v(T, 4), 1024*mp))
    A("s_lshl_b32 s21, s7, 7\ns_lshl_b32 s32, s25, 2\ns_add_u32 s21, s21, s32\ns_add_u32 s21, s21, 0x%x" % FL_F1)
    S = (16, 32); O = (48, 64); NM = (80, 96)
    Q = (112, 116); KF = (120, 124); K0 = 128; VF = (132, 140)
    IDX, KA, VA, VC, VAB = 148, 149, 150, 151, 12
    A("s_and_b32 s25, s3, 1\ns_xor_b32 s25, s25, 1\ns_lshl_b32 s25, s25, 2\ns_lshr_b32 s5, s3, 1\ns_add_u32 s25, s25, s5")
    A("s_lshl_b32 s25, s25, 2\ns_lshr_b32 s5, s2, 6\ns_add_u32 s25, s25, s5\ns_bfe_u32 s26, s2, 0x30003")
    A("s_lshl_b32 s7, s26, 2\ns_add_u32 s7, s7, s24")
    A("v_mov_b32 v%d, 0xdddddddd" % IDX)
    zero(VF[0], 16)
    A("s_mov_b32 exec_lo, 0x00110000\ns_mov_b32 exec_hi, 0x00110000")
    A("v_mov_b32 v6, 0x3f803f80\nv_mov_b32 v7, 0x3f803f80")
    for i in range(0, 16, 2): A("v_mov_b64 %s, v[6:7]" % v(VF[0] + i, 2))
    A("s_mov_b64 exec, -1")
    A("s_mov_b32 s22, 0x0000ffff\ns_mov_b32 s23, 0x0000ffff")
    A("v_and_b32 v8, 15, v1\nv_lshlrev_b32 v8, 4, v8\nv_lshrrev_b32 v9, 5, v1\nv_lshl_add_u32 v8, v9, 8, v8")
    A("v_add_u32 v%d, 0x2000, v8" % VAB)
    def att_reset():
        zero(O[0], 32)
        A("v_mov_b32 v%d, v%d\nv_mov_b32 v%d, v%d\nv_mov_b32 v%d, 0" % (KA, VL16, VA, VAB, VC))
    att_reset()
    A("s_lshl_b32 s28, s25, 16")
    A("s_lshl_b32 s29, s7, 11\ns_add_u32 s29, s29, s28")
    A("s_add_u32 s28, s28, 0x%x" % WS_K)
    A("s_lshl_b32 s33, s24, 11")
    A("s_add_u32 s30, s28, s33\ns_add_u32 s31, s30, 0x%x" % (WS_V - WS_K))
    A("s_mov_b32 s20, 0\ns_mov_b32 s6, 1")
    A("v_and_b32 v18, 31, v1\nv_lshlrev_b32 v18, 2, v18")
    nonce_get(5, 6)
    A("s_waitcnt vmcnt(0)")
    set_flag("s21", 17)
    ST(3)
    A("s_lshl_b32 s21, s25, 7\ns_add_u32 s21, s21, 0x%x" % FL_F1)
    poll(18, "s21", 20, sleep=opt.get("sl1", 3))
    ST(4)
    A("buffer_load_dwordx4 %s, v%d, s[16:19], s28 offen sc1" % (v(K0, 4), VL16))
    A("buffer_load_dwordx4 %s, v%d, s[16:19], s29 offen sc1" % (v(Q[0], 4), VL16))
    A("buffer_load_dwordx4 %s, v%d, s[16:19], s29 offen offset:1024 sc1" % (v(Q[1], 4), VL16))
    def kv_dma(first=False):
        if first:
            A("s_cmp_eq_u32 s24, 0\ns_cselect_b32 s32, 1024, 0\ns_add_u32 m0, s33, s32\ns_add_u32 s32, s32, s30")
            A("buffer_load_dwordx4 v%d, s[16:19], s32 offen sc1 lds" % VL16)
            A("s_mov_b32 m0, s33\ns_nop 0")
        else:
            A("s_mov_b32 m0, s33\ns_add_u32 s6, s6, 1")
            A("buffer_load_dwordx4 v%d, s[16:19], s30 offen sc1 lds" % VL16)
        A("buffer_load_dwordx4 v%d, s[16:19], s30 offen offset:1024 sc1 lds" % VL16)
        A("s_add_u32 m0, s33, 8192\ns_add_u32 s30, s30, 8192")
        A("buffer_load_dwordx4 v%d, s[16:19], s31 offen sc1 lds" % VL16)
        A("buffer_load_dwordx4 v%d, s[16:19], s31 offen offset:1024 sc1 lds" % VL16)
        A("s_add_u32 s31, s31, 8192\ns_add_u32 s33, s33, 16384")
    kv_dma(True)
    A("s_lshl_b32 s28, s7, 7\ns_add_u32 s28, s28, 0x%x" % FL_F0)
    A("s_waitcnt vmcnt(4)")
    for sd in range(2):
        A("v_mfma_f32_32x32x16_bf16 %s, %s, %s, 0" % (v(S[sd], 16), v(K0, 4), v(Q[sd], 4)))
    A("s_waitcnt vmcnt(0)")
    arrive(L_CNTKV)
    A("s_nop 7")
    for sd in range(2):
        A("v_max3_f32 v%d, v%d, v%d, v%d" % (6 + 2*sd, S[sd], S[sd] + 1, S[sd] + 2))
        for i in range(3, 15, 2):
            A("v_max3_f32 v%d, v%d, v%d, v%d" % (6 + 2*sd, 6 + 2*sd, S[sd] + i, S[sd] + i + 1))
        A("v_max_f32 v%d, v%d, v%d" % (6 + 2*sd, 6 + 2*sd, S[sd] + 15))
    A("L_SETMAX:")
    A("v_mov_b32 v7, v6\nv_mov_b32 v9, v8\ns_nop 1")
    A("v_permlane32_swap_b32 v6, v7\nv_permlane32_swap_b32 v8, v9\ns_nop 1")
    A("v_max_f32 v6, v6, v7\nv_max_f32 v8, v8, v9\nv_sub_f32 v6, 0, v6\nv_sub_f32 v8, 0, v8\nv_mov_b32 v7, v6\nv_mov_b32 v9, v8")
    for i in range(0, 16, 2): A("v_mov_b64 %s, v[6:7]" % v(NM[0] + i, 2))
    A("v_mov_b64 %s, %s\nv_mov_b64 %s, %s" % (v(KF[0], 2), v(K0, 2), v(KF[0] + 2, 2), v(K0 + 2, 2)))
    A("v_mfma_f32_32x32x16_bf16 %s, %s, %s, %s" % (v(S[0], 16), v(K0, 4), v(Q[0], 4), v(NM[0], 16)))
    for i in range(0, 16, 2): A("v_mov_b64 %s, v[8:9]" % v(NM[1] + i, 2))
    zero(S[1] + 8, 8)
    lds_wait(L_CNTKV, 4, 5)
    A("s_mov_b64 exec, s[22:23]")
    A("ds_read_b128 %s, v%d" % (v(VF[0], 4), VA))
    A("ds_read_b128 %s, v%d offset:512" % (v(VF[0] + 4, 4), VA))
    A("s_mov_b64 exec, -1")
    ST(5)
    A("s_waitcnt lgkmcnt(0)")
    A("s_setprio 1")
    A("s_mov_b32 s5, 0")
    A(".p2align 3")
    A("L_ALOOP:")
    def ex(sd, a_, b_):
        for i in range(a_, b_): A("v_exp_f32 v%d, v%d" % (S[sd] + i, S[sd] + i))
    def sm(sd, vf, half):
        A("v_smfmac_f32_32x32x32_bf16 %s, %s, %s, v%d" % (v(O[sd], 16), v(vf + 4*half, 4), v(S[sd] + 8*half, 8), IDX))
    for t in range(8):
        kc, kn = KF[t & 1], KF[(t + 1) & 1]
        vc, vn = VF[t & 1], VF[(t + 1) & 1]
        noff = (t + 1)*1024 if t < 7 else 16384
        ex(0, 0, 2)
        sm(1, vn, 1)
        if t == 7:
            A("v_readfirstlane_b32 s35, v5")
            A("s_cmp_ge_u32 s35, 4\ns_cbranch_scc1 L_KVOK")
            lds_wait(L_CNTKV + 4, 4, 5, va=VC)
            A("L_KVOK:")
            A("v_add_u32 v%d, 4, v%d" % (VC, VC))
            A(".p2align 3")
        ex(0, 2, 6)
        A("v_mfma_f32_32x32x16_bf16 %s, %s, %s, %s" % (v(S[1], 16), v(kc, 4), v(Q[1], 4), v(NM[1], 16)))
        A("ds_read_b128 %s, v%d offset:%d" % (v(kn, 4), KA, noff))
        ex(0, 6, 7)
        A("s_mov_b64 exec, s[22:23]")
        A("ds_read_b128 %s, v%d offset:%d" % (v(vn, 4), VA, noff))
        A("ds_read_b128 %s, v%d offset:%d" % (v(vn + 4, 4), VA, noff + 512))
        A("s_mov_b64 exec, -1")
        ex(0, 7, 12)
        sm(0, vc, 0)
        if t == 6:
            A("ds_read_b32 v5, v%d offset:%d" % (VC, L_CNTKV + 4))
        ex(0, 12, 16)
        ex(1, 0, 2)
        sm(0, vc, 1)
        if t == 5:
            A("s_waitcnt vmcnt(0)")
            arrive(L_CNTKV + 8, VC)
            A("s_cmp_lg_u32 s6, 3\ns_cbranch_scc1 L_NOG")
            arrive(L_CNTKV + 4)
            A("v_cmp_ne_u32 vcc, s27, v10")
            A("s_nop 4\ns_cbranch_vccz L_GOK")
            poll(VZ, "s28", 10)
            A("L_GOK:")
            A("v_and_b32 v5, 31, v1\nv_lshlrev_b32 v5, 2, v5\ns_lshl_b32 s29, s7, 8\ns_add_u32 s29, s29, 0x%x" % WS_G)
            A("buffer_load_dword v10, v5, s[16:19], s29 offen sc1")
            A("buffer_load_dword v11, v5, s[16:19], s29 offen offset:128 sc1")
            A("L_NOG:")
            A(".p2align 3")
        if t == opt.get("kvt", 0):
            A("s_cmp_ge_u32 s6, 8\ns_cbranch_scc1 L_NODMA")
            A("s_cmp_lg_u32 s6, 1\ns_cbranch_scc1 L_XFREE")
            lds_wait(L_CNTG, 4, 5)
            kv_dma()
            A("buffer_load_dword v10, v%d, s[16:19], s28 offen sc1" % VZ)
            A("L_XFREE:")
            kv_dma()
            A("L_NODMA:")
            A(".p2align 3")
        ex(1, 2, 5)
        A("s_waitcnt lgkmcnt(0)")
        A("v_mfma_f32_32x32x16_bf16 %s, %s, %s, %s" % (v(S[0], 16), v(kn, 4), v(Q[0], 4), v(NM[0], 16)))
        ex(1, 5, 11)
        if t == 7:
            A("v_add_u32 v%d, 0x4000, v%d\nv_add_u32 v%d, 0x4000, v%d" % (KA, KA, VA, VA))
        sm(1, vc, 0)
        ex(1, 11, 15)
        A("v_exp_f32_e64 v%d, v%d" % (S[1] + 15, S[1] + 15) if t < 7 else "v_exp_f32 v%d, v%d" % (S[1] + 15, S[1] + 15))
    A("s_add_u32 s5, s5, 1\ns_cmp_lt_u32 s5, 8\ns_cbranch_scc1 L_ALOOP")
    sm(1, VF[1], 1)
    A("s_setprio 3")
    ST(6)
    A("v_and_b32 v7, 15, v1\nv_lshlrev_b32 v7, 4, v7\nv_bfe_u32 v8, v1, 4, 1\nv_lshl_add_u32 v7, v8, 10, v7\nv_lshrrev_b32 v8, 5, v1\nv_lshl_add_u32 v7, v8, 8, v7")
    A("s_mul_i32 s31, s7, 44\ns_lshr_b32 s32, s25, 1\ns_add_u32 s31, s31, s32\ns_add_u32 s31, s31, 28\ns_lshl_b32 s31, s31, 12")
    A("s_and_b32 s32, s25, 1\ns_lshl_b32 s32, s32, 9\ns_add_u32 s31, s31, s32\ns_add_u32 s31, s31, 0x%x" % WS_ACT)
    A("v_add_f32 v5, abs(v%d), abs(v%d)" % (O[0] + 8, O[0]))
    for i in range(1, 8): A("v_add_f32 v5, v5, abs(v%d)" % (O[0] + i))
    for i in range(9): A("v_add_f32 v5, v5, abs(v%d)" % (O[1] + i))
    A("v_mov_b32 v6, 0x207")
    A("v_cmp_class_f32 vcc, v5, v6")
    A("v_rcp_f32 v5, v%d\nv_rcp_f32 v6, v%d" % (O[0] + 8, O[1] + 8))
    A("s_cmp_lg_u32 s20, 0\ns_cbranch_scc1 L_AFIN")
    A("s_nop 0")
    A("s_cbranch_vccnz L_REDO")
    A("L_AFIN:")
    A("v_mul_f32 v5, v5, v10\nv_mul_f32 v6, v6, v11")
    for sd in range(2):
        for i in range(8): A("v_mul_f32 v%d, v%d, v%d" % (O[sd] + i, 5 + sd, O[sd] + i))
        for i in range(4): A("v_cvt_pk_bf16_f32 v%d, v%d, v%d" % (152 + 4*sd + i, O[sd] + 2*i, O[sd] + 2*i + 1))
        A("buffer_store_dwordx4 %s, v7, s[16:19], s31 offen offset:%d sc1" % (v(152 + 4*sd, 4), 2048*sd))
    A("s_lshl_b32 s31, s7, 12\ns_lshl_b32 s32, s25, 7\ns_add_u32 s31, s31, s32\ns_add_u32 s31, s31, 0x%x" % FL_F5)
    A("s_waitcnt vmcnt(0)")
    set_flag("s31", 5)
    A("s_branch L_FIN")
    A("L_REDO:")
    A("s_waitcnt lgkmcnt(0)")
    A("s_mov_b32 s20, 1")
    A("s_mov_b64 exec, s[22:23]")
    zero(VF[1] + 4, 4)
    A("s_mov_b64 exec, -1")
    A("v_mov_b32 v6, 0xff800000\nv_mov_b32 v8, 0xff800000")
    A("v_mov_b64 %s, %s\nv_mov_b64 %s, %s" % (v(KF[0], 2), v(K0, 2), v(KF[0] + 2, 2), v(K0 + 2, 2)))
    A("s_mov_b32 s5, 1\ns_nop 1")
    A("L_MAXL:")
    for sd in range(2):
        A("v_mfma_f32_32x32x16_bf16 %s, %s, %s, 0" % (v(S[sd], 16), v(KF[0], 4), v(Q[sd], 4)))
    A("s_lshr_b32 s32, s5, 3\ns_lshl_b32 s32, s32, 14\ns_and_b32 s35, s5, 7\ns_lshl_b32 s35, s35, 10\ns_add_u32 s32, s32, s35")
    A("v_add_u32 v%d, s32, v%d" % (KA, VL16))
    A("ds_read_b128 %s, v%d" % (v(KF[0], 4), KA))
    A("s_nop 15")
    for sd in range(2):
        for i in range(0, 16, 2):
            A("v_max3_f32 v%d, v%d, v%d, v%d" % (6 + 2*sd, 6 + 2*sd, S[sd] + i, S[sd] + i + 1))
    A("s_waitcnt lgkmcnt(0)")
    A("s_add_u32 s5, s5, 1\ns_cmp_lt_u32 s5, 65\ns_cbranch_scc1 L_MAXL")
    att_reset()
    A("s_branch L_SETMAX")

    A("L_GSTART:")
    A("s_setprio 2")
    A("s_sub_u32 s7, s24, 4")
    A("s_cmp_lg_u32 s7, 3\ns_cbranch_scc1 L_NOLEAD")
    zero(16, 4)
    A("ds_write_b128 v%d, v[16:19]" % VL16)
    A("s_cmp_lg_u32 s2, 0\ns_cbranch_scc1 L_NOLEAD")
    A("s_mov_b32 s31, 0x%x" % FL_EPOCH)
    A("buffer_load_dword v16, v%d, s[16:19], s31 offen sc0 sc1" % VZ)
    A("s_mov_b32 s32, 0x9e3779b1")
    A("s_waitcnt vmcnt(0)")
    A("v_mul_lo_u32 v16, v16, s32")
    A("v_add_u32 v16, 0x7f4a7c15, v16")
    A("v_max_u32 v16, 1, v16")
    A("s_mov_b64 exec, 1")
    A("buffer_store_dword v16, v%d, s[60:63], 0 offen sc0 sc1" % VZ)
    A("buffer_store_dword v16, v%d, s[16:19], s31 offen sc0 sc1" % VZ)
    A("s_mov_b64 exec, -1")
    A("L_NOLEAD:")
    if opt.get("tlb", 1):
        A("s_cmp_lg_u32 s7, 1\ns_cbranch_scc1 L_NOTLB")
        A("v_lshlrev_b32 v16, 21, v1\nv_add_u32 v16, 0x1fff80, v16")
        A("buffer_load_dword v0, v16, s[16:19], 0 offen")
        for (p, nb) in ((P_WSP, 2048*2048*2), (P_OUT, 2048*512*2)):
            srd(A, 12, p, p + 1, nb)
            A("buffer_load_dword v0, v16, s[12:15], 0 offen")
        for p in (P_WQKV, P_WO, P_WOUT, P_BSP):
            srd(A, 12, p, p + 1, 4)
            A("buffer_load_dword v0, v%d, s[12:15], 0 offen" % VL16)
        A("L_NOTLB:")
    A("s_lshr_b32 s22, s7, 1\ns_and_b32 s23, s7, 1")
    A("s_lshl_b32 s30, s7, 13\ns_add_u32 s30, s30, %d" % L_G)
    xr_setup(16)
    A("s_cmp_ge_u32 s4, 7\ns_cbranch_scc1 L_G7")
    Z2 = 192
    XZ, WZ = (16, 64), (32, 80)
    A("s_lshl_b32 s32, s22, 13\ns_add_u32 s32, s32, %d" % L_WQ)
    wr_setup(16, "s32")
    A("v_mov_b32 v5, v%d" % VW[0])
    A("s_lshl_b32 s20, s23, 12\ns_add_u32 s20, s20, %d" % L_X)
    zero(Z2, 32); zero(XZ[1], 48)
    A("s_mov_b32 s33, %d\ns_mov_b32 s5, 0\ns_mov_b32 s21, s6" % SLOT)
    def z_mfma(b, k):
        m, nn, p = k >> 2, (k >> 1) & 1, k & 1
        c = v(Z2 + 8*m + 4*nn, 4)
        A("v_mfma_f32_16x16x32_bf16 %s, %s, %s, %s" % (c, v(WZ[b] + 8*m + 4*p, 4), v(XZ[b] + 8*nn + 4*p, 4), c))
    A("s_waitcnt lgkmcnt(0)")
    A("L_ZLOOP:")
    for b in range(2):
        A("s_lshl_b32 s32, s21, 13\ns_add_u32 s32, s32, s20")
        A("v_add_u32 v%d, s32, v%d\nv_xor_b32 v%d, 64, v%d\nv_add_u32 v%d, s33, v5" % (VX[0], VXB, VX[1], VX[0], VW[0]))
        for m in range(1, 4): A("v_xor_b32 v%d, %d, v%d" % (VW[m], 32*m, VW[0]))
        A("s_add_u32 s21, s21, 1\ns_and_b32 s21, s21, 7")
        A("s_add_u32 s33, s33, %d\ns_cmp_eq_u32 s33, %d\ns_cselect_b32 s33, 0, s33" % (SLOT, 3*SLOT))
        A("s_barrier")
        rd = ["ds_read_b128 %s, v%d offset:%d" % (v(XZ[b] + 8*nn + 4*p, 4), VX[p], 2048*nn) for nn in range(2) for p in range(2)]
        rd += ["ds_read_b64_tr_b16 %s, v%d offset:%d" % (v(WZ[b] + 8*m + 4*p + 2*h, 2), VW[m], 4096*p + 512*h) for m in range(4) for p in range(2) for h in range(2)]
        A(".p2align 3")
        for k in range(16):
            if k < 10:
                if k == 7: A("s_waitcnt lgkmcnt(8)\ns_nop 0")
                A(rd[2*k]); A(rd[2*k + 1])
            z_mfma(b ^ 1, k)
        A("s_waitcnt lgkmcnt(0)")
    A("s_add_u32 s5, s5, 1\ns_cmp_lt_u32 s5, 4\ns_cbranch_scc1 L_ZLOOP")
    A("s_barrier")
    ST(1)
    nonce_load(28)
    for k in range(16): z_mfma(1, k)
    A("s_mov_b32 s20, %s\ns_mov_b32 s21, %s" % (f32(GC2), f32(GC2)))
    A("v_mov_b32 v24, %s\nv_mov_b32 v25, %s\nv_mov_b32 v26, 1.0\nv_mov_b32 v27, 1.0" % (f32(GC1), f32(GC1)))
    A("s_mov_b32 s28, 3584")
    A("s_lshl_b32 s29, s4, 8\ns_lshl_b32 s32, s22, 7\ns_add_u32 s29, s29, s32")
    w_setup(16)
    for blk in range(4):
        A("s_barrier")
        emit_gelu(A, Z2 + 8*blk, 8, 16, 24, 20, 26)
    A("s_barrier")
    for nn in range(2):
        sA, sB = 16 + 2*nn, 20 + 2*nn
        for m in range(4):
            for h in range(2):
                c = Z2 + 8*m + 4*nn + 2*h
                if m == 0 and h == 0:
                    A("v_pk_mul_f32 %s, %s, %s" % (v(sB, 2), v(c, 2), v(c, 2)))
                    A("v_pk_add_f32 %s, %s, %s" % (v(sA, 2), v(c, 2), v(c + 2, 2)))
                else:
                    A("v_pk_fma_f32 %s, %s, %s, %s" % (v(sB, 2), v(c, 2), v(c, 2), v(sB, 2)))
                    if m > 0: A("v_pk_add_f32 %s, %s, %s" % (v(sA, 2), v(sA, 2), v(c, 2)))
    for i in range(4): A("v_add_f32 v%d, v%d, v%d" % (16 + 2*i, 16 + 2*i, 17 + 2*i))
    A("s_nop 1")
    A("v_permlane16_swap_b32 v16, v18\nv_permlane16_swap_b32 v20, v22\ns_nop 1")
    A("v_add_f32 v16, v16, v18\nv_add_f32 v18, v20, v22\nv_mov_b32 v17, v16\nv_mov_b32 v19, v18\ns_nop 1")
    A("v_permlane32_swap_b32 v16, v17\nv_permlane32_swap_b32 v18, v19\ns_nop 1")
    A("v_add_f32 v16, v16, v17\nv_add_f32 v18, v18, v19")
    nonce_get(28)
    A("v_mov_b32 v17, s27\nv_mov_b32 v19, s27")
    A("s_lshl_b32 s32, s25, 1\ns_add_u32 s32, s32, s23\ns_mul_i32 s0, s32, 7168\ns_add_u32 s0, s0, 0x%x" % WS_ST)
    A("s_lshl_b32 s32, s4, 1\ns_add_u32 s32, s32, s22\ns_lshl_b32 s32, s32, 9\ns_add_u32 s32, s32, s0")
    A("s_mov_b32 exec_hi, 0")
    A("buffer_store_dwordx4 v[16:19], v%d, s[16:19], s32 offen sc0 sc1" % VL16)
    A("s_mov_b32 exec_hi, -1")
    A("s_barrier")
    A("s_lshl_b32 s29, s28, 5\ns_lshl_b32 s3, s23, 3\ns_mul_i32 s3, s3, s29\ns_lshl_b32 s33, s29, 3\ns_add_u32 s33, s33, s3")
    A("s_bfe_u32 s6, s25, 0x10001\ns_lshl_b32 s32, s6, 2\ns_mul_i32 s31, s32, s29\ns_add_u32 s31, s31, s3")
    A("s_lshl_b32 s32, s23, 1\ns_add_u32 s6, s6, s32")
    w_dma(0); w_dma(1)
    A("s_sub_u32 s32, s30, 32768")
    wr_setup(20, "s32")
    A("s_lshl_b32 s32, s23, 6")
    for m in range(4): A("v_xor_b32 v%d, s32, v%d" % (VW[m], VW[m]))
    XF, WF = (16, 32), (48, 64)
    def x_reads(dst, st):
        return ["ds_read_b128 %s, v%d offset:%d" % (v(dst + 4*n, 4), VX[st & 1], 2048*n + 8192*(st >> 1)) for n in range(4)]
    def x_addr():
        A("s_lshl_b32 s32, s6, 14\ns_add_u32 s32, s32, %d" % L_X)
        A("v_add_u32 v%d, s32, v%d\nv_xor_b32 v%d, 64, v%d" % (VX[0], VXB, VX[1], VX[0]))
        A("s_xor_b32 s6, s6, 1")
    x_addr()
    A("s_barrier")
    zero(ACC, 64)
    A("s_barrier")
    ST(2)
    w_dma(2); w_dma(3)
    R = 4
    A("s_waitcnt vmcnt(%d)" % (4*(R - 1)))
    for l in x_reads(XF[0], 0) + w_reads(WF[0], 0): A(l)
    A("s_waitcnt lgkmcnt(0)")
    w_dma(0)
    A("s_mov_b32 s5, 0")
    A("L_EG:")
    for st in range(4):
        b, nb = st & 1, (st + 1) & 1
        if st == 3:
            A("s_mov_b32 s10, 0")
            x_addr()
        A("s_waitcnt vmcnt(%d)" % (4*(R - 1)))
        rd = w_reads(WF[nb], (st + 1) % R)
        xr = x_reads(XF[nb], (st + 1) & 3)
        rd = xr[:2] + rd[:2] + xr[2:] + rd[2:]
        dm = w_dma_list((st + 1) % R)
        A(".p2align 3")
        for k in range(16):
            m, n = k >> 2, k & 3
            c = v(ACC + 16*m + 4*n, 4)
            A("v_mfma_f32_16x16x32_bf16 %s, %s, %s, %s" % (c, v(WF[b] + 4*m, 4), v(XF[b] + 4*n, 4), c))
            if k < 6:
                A(rd[2*k]); A(rd[2*k + 1])
            if k == 10:
                A("s_add_u32 m0, s30, %d" % (soff((st + 1) % R) - 32768))
                A(".p2align 3")
            if k == 11:
                A("s_waitcnt lgkmcnt(0)\ns_nop 0")
            if k >= 12:
                A(dm[k - 12])
        w_adv()
    A("s_add_u32 s5, s5, 1\ns_cmp_lt_u32 s5, 2\ns_cbranch_scc1 L_EG")
    ST(3)
    def st_loads():
        A("s_add_u32 s1, s0, 4096")
        for j in range(7):
            A("buffer_load_dwordx4 %s, v%d, s[16:19], s%d offen offset:%d sc0 sc1" % (v(32 + 4*j, 4), VL16, j >> 2, 1024*(j & 3)))
        A("buffer_load_dword v60, v%d, s[16:19], s28 offen sc0 sc1" % VZ)
    A("s_lshl_b32 s28, s25, 7\ns_add_u32 s28, s28, 0x%x" % FL_F0)
    st_loads()
    A("v_add_u32 v16, s30, v%d\nv_xor_b32 v17, 0x2000, v16" % VL16)
    A("s_waitcnt vmcnt(8)")
    for q in range(8):
        A("ds_write_b128 v16, %s offset:%d" % (v(ACC + 32 + 4*q, 4), 1024*q))
    A("v_and_b32 v64, 15, v1\nv_lshlrev_b32 v64, 7, v64\nv_bfe_u32 v65, v1, 1, 1\nv_lshl_add_u32 v64, v65, 5, v64")
    A("v_bfe_u32 v65, v1, 3, 1\nv_xor_b32 v65, s23, v65\nv_lshl_add_u32 v64, v65, 6, v64\nv_lshrrev_b32 v65, 4, v1\nv_lshl_add_u32 v64, v65, 3, v64")
    A("s_sub_u32 s32, s30, 32768\nv_add_u32 v64, s32, v64")
    for m in range(1, 4): A("v_xor_b32 v%d, %d, v64" % (64 + m, 32*m))
    A("s_waitcnt lgkmcnt(0)")
    arrive(L_CNTR)
    Lp = A.newlabel("SP")
    A("s_mov_b32 s34, 0")
    A(Lp + ":")
    A("s_waitcnt vmcnt(0)")
    A("v_xor_b32 v20, s27, v60")
    for j in range(7):
        for q in (1, 3):
            A("v_xor_b32 v21, s27, v%d\nv_or_b32 v20, v20, v21" % (32 + 4*j + q))
    A("v_cmp_ne_u32 vcc, 0, v20")
    A("s_add_u32 s34, s34, 1\ns_cmp_ge_u32 s34, %d\ns_cbranch_scc1 %s_x" % (SPIN_MAX // 16, Lp))
    A("s_cbranch_vccz %s_x" % Lp)
    A("s_sleep 4")
    st_loads()
    A("s_branch %s" % Lp)
    A(Lp + "_x:")
    ST(4)
    srd(A, 8, P_BSP, P_BSP + 1, 4096)
    A("v_and_b32 v5, 15, v1\nv_lshlrev_b32 v6, 1, v5\nv_lshlrev_b32 v5, 2, v5")
    A("s_lshl_b32 s28, s25, 7\ns_lshl_b32 s29, s25, 8\ns_add_u32 s29, s29, 0x%x" % WS_G)
    for n in range(4):
        A("buffer_load_ushort v%d, v6, s[8:11], s28 offen offset:%d" % (112 + 2*n, 32*n))
        A("buffer_load_dword v%d, v5, s[16:19], s29 offen offset:%d sc1" % (120 + 2*n, 64*n))
    for j in range(1, 7):
        A("v_add_f32 v32, v32, v%d\nv_add_f32 v34, v34, v%d" % (32 + 4*j, 34 + 4*j))
    A("v_mov_b32 v33, v32\nv_mov_b32 v35, v34\ns_nop 1")
    A("v_permlane32_swap_b32 v32, v33\nv_permlane32_swap_b32 v34, v35\ns_nop 1")
    A("v_add_f32 v32, v32, v33\nv_add_f32 v34, v34, v35")
    A("v_mul_f32 v32, %s, v32\nv_mul_f32 v34, %s, v34" % (f32(1.0/896), f32(1.0/896)))
    A("v_fma_f32 v34, -v32, v32, v34\nv_max_f32 v34, 0, v34\nv_add_f32 v34, %s, v34" % f32(1e-5))
    A("v_rsq_f32 v36, v34\ns_nop 0\nv_mul_f32 v40, v32, v36\nv_sub_f32 v40, 0, v40")
    A("v_mov_b32 v38, v36\nv_mov_b32 v42, v40\ns_nop 1")
    A("v_permlane16_swap_b32 v36, v38\nv_permlane16_swap_b32 v40, v42\ns_nop 1")
    for m in range(4):
        for nn in range(2):
            c = Z2 + 8*m + 4*nn
            T = 44 + 2*(2*m + nn)
            for h in range(2):
                A("v_pk_fma_f32 %s, %s, %s, %s op_sel_hi:[1,0,0]" % (v(c + 2*h, 2), v(c + 2*h, 2), v(36 + 2*nn, 2), v(40 + 2*nn, 2)))
            A("v_cvt_pk_bf16_f32 v%d, v%d, v%d\nv_cvt_pk_bf16_f32 v%d, v%d, v%d" % (T, c, c + 1, T + 1, c + 2, c + 3))
            A("ds_write_b64 v%d, %s offset:%d" % (64 + m, v(T, 2), 2048*nn))
    A("s_lshl_b32 s31, s4, 5\ns_add_u32 s31, s31, s25\ns_lshl_b32 s31, s31, 14\ns_lshl_b32 s32, s22, 13\ns_add_u32 s31, s31, s32")
    A("s_lshl_b32 s32, s23, 10\ns_add_u32 s31, s31, s32\ns_add_u32 s31, s31, 0x%x\ns_add_u32 s32, s31, 4096" % WS_Z2N)
    A("s_waitcnt lgkmcnt(0)")
    for l in w_reads(68, 2): A(l)
    A("s_waitcnt lgkmcnt(0)")
    for m in range(4):
        A("buffer_store_dwordx4 %s, v%d, s[16:19], s%d offen offset:%d sc1" % (v(68 + 4*m, 4), VL16, 31 + (m >> 1), 2048*(m & 1)))
    arrive(L_CNTG)
    lds_wait(L_CNTR, 4, 18)
    for q in range(8):
        A("ds_read_b128 %s, v17 offset:%d" % (v(32 + 4*q, 4), 1024*q))
    A("v_mov_b32 v24, %s\nv_mov_b32 v25, %s\nv_mov_b32 v26, 1.0\nv_mov_b32 v27, 1.0" % (f32(GC1), f32(GC1)))
    A("s_lshl_b32 s31, s4, 7\ns_lshl_b32 s32, s25, 2\ns_add_u32 s31, s31, s32\ns_add_u32 s31, s31, s7\ns_lshl_b32 s31, s31, 7\ns_add_u32 s31, s31, 0x%x" % FL_F3)
    A("s_waitcnt lgkmcnt(0)")
    arrive(L_CNTR)
    for i in range(16):
        A("v_pk_add_f32 %s, %s, %s" % (v(ACC + 2*i, 2), v(ACC + 2*i, 2), v(32 + 2*i, 2)))
    emit_gelu(A, ACC, 24, 16, 24, 20, 26)
    A("s_waitcnt vmcnt(0)")
    set_flag("s31", 28)
    emit_gelu(A, ACC + 24, 8, 16, 24, 20, 26)
    for n in range(4):
        A("v_lshlrev_b32 v%d, 16, v%d\nv_sub_f32 v%d, 1.0, v%d\nv_mov_b32 v%d, v%d" % (112 + 2*n, 112 + 2*n, 120 + 2*n, 120 + 2*n, 113 + 2*n, 112 + 2*n))
    for n in range(4):
        for mm in range(2):
            c = ACC + 16*mm + 4*n
            for h in range(2):
                A("v_pk_mul_f32 %s, %s, %s op_sel_hi:[1,0]" % (v(c + 2*h, 2), v(c + 2*h, 2), v(120 + 2*n, 2)))
            A("v_cvt_pk_bf16_f32 v%d, v%d, v%d\nv_cvt_pk_bf16_f32 v%d, v%d, v%d" % (16 + 4*n + 2*mm, c, c + 1, 17 + 4*n + 2*mm, c + 2, c + 3))
            A("v_mov_b64 %s, %s\nv_mov_b64 %s, %s" % (v(c, 2), v(112 + 2*n, 2), v(c + 2, 2), v(112 + 2*n, 2)))
    ST(5)
    WSP, ZR = 32, 64
    srd(A, 12, P_WSP, P_WSP + 1, 2048*2048*2)
    A("v_lshrrev_b32 v5, 3, v1\nv_and_b32 v6, 7, v1\nv_lshrrev_b32 v7, 4, v1\nv_xor_b32 v6, v6, v7")
    A("s_lshl_b32 s28, s25, 6\nv_add_u32 v5, s28, v5\nv_lshlrev_b32 v5, 12, v5\nv_lshl_add_u32 v5, v6, 4, v5")
    A("v_xor_b32 v6, 64, v5\nv_add_u32 v6, %d, v6" % (32768 - 1024))
    A("v_add_u32 v7, %d, v5\nv_add_u32 v8, %d, v6" % (2*(32768 - 1024), 2*(32768 - 1024)))
    A("s_lshl_b32 s31, s7, 10")
    def sp_dma():
        for hf in range(2):
            A("s_add_u32 m0, s30, %d" % (4096*hf))
            A("s_add_u32 s32, s31, %d" % (131072*hf))
            for q in range(4):
                A("buffer_load_dwordx4 v%d, s[12:15], s32 offen offset:%d lds" % (5 + q, 1024*q))
        A("s_add_u32 s31, s31, 128")
    lds_wait(L_CNTR, 8, 32)
    sp_dma()
    A("v_add_u32 v%d, s30, v%d\nv_xor_b32 v%d, 64, v%d" % (VX[0], VXB, VX[1], VX[0]))
    for mu in range(4):
        A("s_add_u32 s32, s7, %d\ns_and_b32 s32, s32, 3\ns_lshl_b32 s32, s32, 12\nv_add_u32 v%d, s32, v%d" % (mu, 9 + mu, VL16))
    A("s_lshl_b32 s33, s4, 5\ns_lshl_b32 s32, s7, 3\ns_add_u32 s33, s33, s32\ns_lshl_b32 s33, s33, 14\ns_add_u32 s33, s33, 0x%x" % WS_Z2N)
    zero(ACC + 32, 96)
    A("s_lshl_b32 s28, s4, 2\ns_add_u32 s28, s28, s7\ns_lshl_b32 s28, s28, 12\ns_add_u32 s28, s28, 0x%x" % FL_F3)
    A("v_lshl_add_u32 v32, v1, 7, s28")
    A("s_lshl_b32 s28, s26, 11\ns_add_u32 s28, s28, 0x%x" % FL_F6)
    A("s_mov_b32 exec_lo, 0\nv_and_b32 v32, 15, v1\nv_lshl_add_u32 v32, v32, 7, s28\ns_mov_b32 exec_lo, -1")
    poll(32, "0", 33, sleep=opt.get("sl3", 6))
    ST(6)
    def z_load(m):
        for p in range(2):
            A("buffer_load_dwordx4 %s, v%d, s[16:19], s33 offen offset:%d sc1" % (v(ZR + 8*m + 4*p, 4), 9 + (m >> 1), 2048*(m & 1) + 1024*p))
    for m in range(8): z_load(m)
    A("s_mov_b32 s5, 0")
    A("s_setprio %d" % opt.get("gprio", 0))
    A("L_SLOOP:")
    A("s_add_u32 s33, s33, 16384")
    A("s_cmp_eq_u32 s5, 7\ns_cselect_b32 s14, 0, s14\ns_cselect_b32 s33, 0x%x, s33" % 0x7ff00000)
    A("s_waitcnt vmcnt(16)")
    for n in range(4):
        for p in range(2):
            A("ds_read_b128 %s, v%d offset:%d" % (v(WSP + 8*n + 4*p, 4), VX[p], 2048*n))
    A("s_waitcnt lgkmcnt(0)")
    sp_dma()
    for m in range(8):
        A("s_waitcnt vmcnt(22)")
        A(".p2align 3")
        for n in range(4):
            c = v(ACC + 16*m + 4*n, 4)
            for p in range(2):
                A("v_mfma_f32_16x16x32_bf16 %s, %s, %s, %s" % (c, v(ZR + 8*m + 4*p, 4), v(WSP + 8*n + 4*p, 4), c))
        z_load(m)
    A("s_add_u32 s5, s5, 1\ns_cmp_lt_u32 s5, 8\ns_cbranch_scc1 L_SLOOP")
    A("s_setprio %d" % opt.get("gprio2", 2))
    ST(7)
    WHR = (96, 112, 160, 176, 192, 208, 224)
    def wc_base(first_step_expr):
        A("s_mul_i32 s29, s26, 44\n%s\ns_add_u32 s29, s29, s32\ns_lshl_b32 s29, s29, 12\ns_add_u32 s29, s29, 0x%x" % (first_step_expr, WS_WC))
    def wc_load(dst):
        for m in range(4):
            A("buffer_load_dwordx4 %s, v%d, s[16:19], s29 offen offset:%d sc1" % (v(dst + 4*m, 4), VL16, 1024*m))
        A("s_add_u32 s29, s29, 4096")
    wc_base("s_mul_i32 s32, s7, 7")
    A("v_add_u32 v5, s30, v%d" % VL16)
    A("s_waitcnt vmcnt(0)")
    wc_load(WHR[0]); wc_load(WHR[1])
    for r in range(1, 4):
        for q in range(8):
            A("ds_write_b128 v5, %s offset:%d" % (v(ACC + 32*r + 4*q, 4), 1024*q))
        A("s_sub_u32 s32, s7, %d\ns_and_b32 s32, s32, 3\ns_lshl_b32 s32, s32, 13\ns_add_u32 s32, s32, %d" % (r, L_G))
        A("v_add_u32 v6, s32, v%d" % VL16)
        A("s_waitcnt lgkmcnt(0)")
        arrive(L_CNTR)
        for k in range(2*r, min(2*r + 2, 7)): wc_load(WHR[k])
        lds_wait(L_CNTR, 8*r + 4, 7)
        for q in range(8):
            A("ds_read_b128 %s, v6 offset:%d" % (v(ZR + 4*q, 4), 1024*q))
        A("s_waitcnt lgkmcnt(0)")
        if r < 3: arrive(L_CNTR)
        for i in range(16):
            A("v_pk_add_f32 %s, %s, %s" % (v(ACC + 2*i, 2), v(ACC + 2*i, 2), v(ZR + 2*i, 2)))
        if r < 3:
            lds_wait(L_CNTR, 8*r + 8, 7)
    ST(8)
    A("v_and_b32 v5, 15, v1\nv_lshlrev_b32 v5, 4, v5\nv_bfe_u32 v6, v1, 4, 1\nv_lshl_add_u32 v5, v6, 9, v5\nv_lshrrev_b32 v6, 5, v1\nv_lshl_add_u32 v5, v6, 8, v5")
    A("s_mul_i32 s31, s25, 44\ns_lshl_b32 s32, s4, 2\ns_add_u32 s32, s32, s7\ns_add_u32 s31, s31, s32\ns_lshl_b32 s31, s31, 12\ns_add_u32 s31, s31, 0x%x" % WS_ACT)
    for n in range(4):
        T = 48 + 4*n
        for i in range(4): A("v_lshlrev_b32 v%d, 16, v%d\nv_and_b32 v%d, 0xffff0000, v%d" % (32 + 2*i, 16 + 4*n + i, 33 + 2*i, 16 + 4*n + i))
        for mm in range(2):
            c = ACC + 16*mm + 4*n
            for i in range(2): A("v_pk_mul_f32 %s, %s, %s" % (v(c + 2*i, 2), v(c + 2*i, 2), v(32 + 4*mm + 2*i, 2)))
        for mm in range(2):
            c = ACC + 16*mm + 4*n
            A("v_cvt_pk_bf16_f32 v%d, v%d, v%d\nv_cvt_pk_bf16_f32 v%d, v%d, v%d" % (T + 2*mm, c, c + 1, T + 2*mm + 1, c + 2, c + 3))
        A("s_nop 1")
        A("v_permlane16_swap_b32 v%d, v%d\nv_permlane16_swap_b32 v%d, v%d" % (T, T + 2, T + 1, T + 3))
        A("buffer_store_dwordx4 %s, v5, s[16:19], s31 offen offset:%d sc1" % (v(T, 4), 1024*n))
    A("s_lshl_b32 s31, s25, 12\ns_lshl_b32 s32, s32, 7\ns_add_u32 s31, s31, s32\ns_add_u32 s31, s31, 0x%x" % FL_F4)
    A("s_waitcnt vmcnt(0)")
    set_flag("s31", 6)
    A("s_branch L_OUT")
    A("L_G7:")
    A("s_sub_u32 s32, s30, 32768")
    wr_setup(16, "s32")
    A("s_cmp_eq_u32 s7, 0\ns_cbranch_scc1 L_GATE")
    A("s_waitcnt lgkmcnt(0)")
    for i in range(17): A("s_barrier")
    nonce_load(16)
    nonce_get(16)
    A("s_branch L_G7X")
    A("L_GATE:")
    srd(A, 12, P_GW, P_GW + 1, 1024)
    A("v_lshrrev_b32 v16, 4, v1\nv_lshlrev_b32 v16, 4, v16")
    for st in range(16):
        A("buffer_load_dwordx4 %s, v16, s[12:15], 0 offen offset:%d" % (v(64 + 4*st, 4), 64*st))
    A("v_add_u32 v%d, %d, v%d\nv_xor_b32 v%d, 64, v%d" % (VX[0], L_X, VXB, VX[1], VX[0]))
    zero(ACC, 16)
    for i in range(8): A("s_barrier")
    A("s_waitcnt vmcnt(0)")
    nonce_load(20)
    for sb in range(8):
        for p in range(2):
            for n in range(4):
                A("ds_read_b128 %s, v%d offset:%d" % (v(32 + 16*p + 4*n, 4), VX[p], 2048*n + 8192*sb))
        A("s_barrier")
        A("s_waitcnt lgkmcnt(0)")
        for n in range(4):
            for p in range(2):
                A("v_mfma_f32_16x16x32_bf16 %s, %s, %s, %s" % (v(ACC + 4*n, 4), v(64 + 8*sb + 4*p, 4), v(32 + 16*p + 4*n, 4), v(ACC + 4*n, 4)))
    nonce_get(20)
    A("s_nop 3")
    for n in range(4): A("v_mul_f32 v%d, %s, v%d" % (16 + n, f32(-LOG2E), ACC + 4*n))
    for n in range(4): A("v_exp_f32 v%d, v%d" % (16 + n, 16 + n))
    for n in range(4): A("v_add_f32 v%d, 1.0, v%d" % (16 + n, 16 + n))
    for n in range(4): A("v_rcp_f32 v%d, v%d" % (16 + n, 16 + n))
    A("v_lshlrev_b32 v20, 2, v1\ns_lshl_b32 s29, s25, 8\ns_add_u32 s29, s29, 0x%x" % WS_G)
    A("s_mov_b32 exec_lo, 0xffff\ns_mov_b32 exec_hi, 0")
    for n in range(4):
        A("buffer_store_dword v%d, v20, s[16:19], s29 offen offset:%d sc1" % (16 + n, 64*n))
    A("s_mov_b64 exec, -1")
    A("s_barrier")
    A("s_lshl_b32 s28, s25, 7\ns_add_u32 s28, s28, 0x%x" % FL_F0)
    A("s_waitcnt vmcnt(0)")
    set_flag("s28", 16)
    A("L_G7X:")
    arrive(L_CNTG)
    A("s_lshl_b32 s20, s25, 2\ns_add_u32 s20, s20, s7\ns_and_b32 s21, s20, 7\ns_lshr_b32 s20, s20, 3\ns_mov_b32 s22, s20")
    A("s_mov_b32 s28, 1024\ns_lshl_b32 s29, s21, 7")
    w_setup(16)
    A("L_WT:")
    srd(A, 8, P_WOUT, P_WOUT + 1, 896*512*2)
    A("s_lshl_b32 s31, s22, 15")
    A("s_cmp_lt_u32 s22, 28\ns_cbranch_scc1 L_WT2")
    srd(A, 8, P_WO, P_WO + 1, 512*512*2)
    A("s_sub_u32 s31, s31, %d" % (28*32768))
    A("L_WT2:")
    w_dma(0, False)
    A("s_mul_i32 s31, s21, 44\ns_add_u32 s31, s31, s22\ns_lshl_b32 s31, s31, 12\ns_add_u32 s31, s31, 0x%x" % WS_WC)
    A("s_waitcnt vmcnt(0)")
    for l in w_reads(32, 0): A(l)
    A("s_waitcnt lgkmcnt(0)")
    for m in range(4):
        A("buffer_store_dwordx4 %s, v%d, s[16:19], s31 offen offset:%d sc1" % (v(32 + 4*m, 4), VL16, 1024*m))
    A("s_add_u32 s22, s22, 16\ns_cmp_lt_u32 s22, 44\ns_cbranch_scc1 L_WT")
    A("s_lshl_b32 s31, s21, 11\ns_lshl_b32 s32, s20, 7\ns_add_u32 s31, s31, s32\ns_add_u32 s31, s31, 0x%x" % FL_F6)
    A("s_waitcnt vmcnt(0)")
    set_flag("s31", 16)
    A("v_and_b32 v24, 15, v1\nv_lshlrev_b32 v24, 7, v24")
    A("s_lshl_b32 s28, s26, 11\ns_add_u32 s28, s28, 0x%x" % FL_F6)
    poll(24, "s28", 25, sleep=32)
    wc_base("s_mul_i32 s32, s7, 7")
    for k in range(7): wc_load(WHR[k])
    A("L_OUT:")
    ST(9)
    OA = (128, 144, 64, 80)
    HRR = [24 + 4*k for k in range(10)] + [240 + 4*k for k in range(4)]
    NR = 14
    for nu in range(4):
        A("s_add_u32 s32, s7, %d\ns_and_b32 s32, s32, 3\ns_lshl_b32 s32, s32, 10\nv_add_u32 v%d, s32, v%d" % (nu, 16 + nu, VL16))
    A("s_mul_i32 s33, s25, 44\ns_mul_i32 s32, s7, 7\ns_add_u32 s33, s33, s32\ns_lshl_b32 s33, s33, 12\ns_add_u32 s33, s33, 0x%x" % WS_ACT)
    A("v_min_u32 v20, 6, v1\nv_add_u32 v20, s32, v20\nv_lshlrev_b32 v20, 7, v20")
    A("s_lshl_b32 s28, s25, 12\ns_add_u32 s28, s28, 0x%x" % FL_F4)
    poll(20, "s28", 21, sleep=6)
    ST(10)
    vq2 = []
    def vw2(tag):
        last = max(i for i, x in enumerate(vq2) if x == tag)
        A("s_waitcnt vmcnt(%d)" % (len(vq2) - 1 - last))
    def a_load(f, dst):
        vq2.append(("a", f))
        A("buffer_load_dwordx4 %s, v%d, s[16:19], s33 offen sc1" % (v(dst, 4), 16 + (f & 3)))
        if (f & 3) == 3: A("s_add_u32 s33, s33, 4096")
    for f in range(NR): a_load(f, HRR[f])
    wc_base("s_lshl_b32 s32, s7, 2\ns_add_u32 s32, s32, 28")
    for f in range(28):
        st, nu = f >> 2, f & 3
        vw2(("a", f))
        for m in range(4):
            c = v(OA[nu] + 4*m, 4)
            A("v_mfma_f32_16x16x32_bf16 %s, %s, %s, %s" % (c, v(WHR[st] + 4*m, 4), v(HRR[f % NR], 4), c if st else "0"))
        if f + NR < 28: a_load(f + NR, HRR[f % NR])
        if f >= 14 and (f & 1) and (f - 15)//2 < 4:
            wc_load(WHR[(f - 15)//2]); vq2.extend([("w", 0)]*4)
    A("s_mul_i32 s33, s25, 44\ns_lshl_b32 s32, s7, 2\ns_add_u32 s33, s33, s32\ns_add_u32 s33, s33, 28\ns_lshl_b32 s33, s33, 12\ns_add_u32 s33, s33, 0x%x" % WS_ACT)
    A("v_and_b32 v20, 7, v1\ns_lshl_b32 s32, s7, 3\nv_add_u32 v20, s32, v20\nv_lshlrev_b32 v20, 7, v20")
    A("s_lshl_b32 s28, s25, 12\ns_add_u32 s28, s28, 0x%x" % FL_F5)
    srd(A, 12, P_OUT, P_OUT + 1, 2048*512*2)
    for nu in range(1, 4):
        A("s_add_u32 s32, s7, %d\ns_and_b32 s32, s32, 3\ns_mul_i32 s32, s32, 12288\ns_add_u32 s32, s32, %d\nv_add_u32 v%d, s32, v%d" % (nu, 4096*(nu - 1), 8 + nu, VL16))
    A("s_mul_i32 s32, s7, 12288\nv_add_u32 v8, s32, v%d" % VL16)
    A("v_and_b32 v5, 15, v1\nv_lshlrev_b32 v5, 10, v5\nv_bfe_u32 v6, v1, 4, 1\nv_lshl_add_u32 v5, v6, 5, v5\nv_lshrrev_b32 v6, 5, v1\nv_lshl_add_u32 v5, v6, 4, v5")
    A("s_lshl_b32 s31, s25, 16\ns_lshl_b32 s32, s7, 14\ns_add_u32 s31, s31, s32\ns_lshl_b32 s32, s26, 7\ns_add_u32 s31, s31, s32")
    if opt.get("tlb2", 1):
        A("s_mov_b64 exec, 1\nbuffer_load_dword v0, v5, s[12:15], s31 offen\ns_mov_b64 exec, -1")
    ST(11)
    A("s_barrier")
    poll(20, "s28", 21, sleep=2)
    ST(12)
    for f in range(16): a_load(f, 192 + 4*f)
    for f in range(16):
        st, nu = f >> 2, f & 3
        A("s_waitcnt vmcnt(%d)" % (15 - f))
        for m in range(4):
            c = v(OA[nu] + 4*m, 4)
            A("v_mfma_f32_16x16x32_bf16 %s, %s, %s, %s" % (c, v(WHR[st] + 4*m, 4), v(192 + 4*f, 4), c))
    A("s_nop 3")
    for nu in range(1, 4):
        for m in range(4):
            A("ds_write_b128 v%d, %s offset:%d" % (8 + nu, v(OA[nu] + 4*m, 4), 1024*m))
    A("s_waitcnt lgkmcnt(0)")
    A("s_barrier")
    for j in range(12):
        A("ds_read_b128 %s, v8 offset:%d" % (v(192 + 4*j, 4), 1024*j))
    for j in range(3):
        A("s_waitcnt lgkmcnt(%d)" % (8 - 4*j))
        for i in range(8):
            A("v_pk_add_f32 %s, %s, %s" % (v(OA[0] + 2*i, 2), v(OA[0] + 2*i, 2), v(192 + 16*j + 2*i, 2)))
    for i in range(8): A("v_cvt_pk_bf16_f32 v%d, v%d, v%d" % (24 + i, OA[0] + 2*i, OA[0] + 2*i + 1))
    A("s_nop 1")
    for mp in range(2):
        T = 24 + 4*mp
        A("v_permlane16_swap_b32 v%d, v%d\nv_permlane16_swap_b32 v%d, v%d" % (T, T + 2, T + 1, T + 3))
        A("buffer_store_dwordx4 %s, v5, s[12:15], s31 offen offset:%d" % (v(T, 4), 64*mp))
    A("L_FIN:")
    ST.end(24)
    A("L_END:")
    A("s_endpgm")

def build(stamps=False, opt=None):
    ref = open("gated_mix__softmax_full_mha__mixer_gmlp__prompt.s.ref").read().split("\n")
    hdr = [l for l in ref if l.startswith(";") and "@launch" not in l]
    out = "\n".join(hdr) + "\n; @launch grid=(256,1,1) block=(512,1,1) lds=163840\n"
    out += '.amdgcn_target "amdgcn-amd-amdhsa--gfx950"\n.text\n.globl %s\n' % KNAME
    A = Asm()
    gen(A, stamps, opt)
    txt = A.text()
    if (opt or {}).get("sc1only", 1): txt = txt.replace("sc0 sc1", "sc1")
    out += txt + '.section .rodata,"a"\n' + kdesc(KNAME, 256, 100, 256)
    return out
if __name__ == "__main__":
    import sys
    opt = dict((a_.split("=")[0], int(a_.split("=")[1])) for a_ in sys.argv[2:] if "=" in a_)
    open(sys.argv[1], "w").write(build("--stamps" in sys.argv, opt))
```

```python
from asmlib2 import *
from p1 import emit_gelu, LOG2E, QSCALE, GC1, GC2

KNAME = "gated_mix__softmax_full_mha__mixer_gmlp__prompt_kernel"
L_CNTG, L_CNTR, L_CNTKV = 0, 16, 32
L_X = 16384
L_WQ = 81920
L_G = 131072
P_X, P_WQKV, P_WO, P_WIN, P_WSP, P_BSP, P_WOUT = 36, 38, 40, 44, 46, 48, 50
P_GW, P_OUT, P_DBG, P_WS = 52, 54, 56, 58
SPIN_MAX = 0x20000

def gen(A, stamps=False, opt=None):
    opt = opt or {}
    ST = Stamps(A, stamps)
    VZ, VONE = 2, 3
    VL16 = 4
    def arrive(off, va=VZ):
        A("s_mov_b64 exec, 1")
        A("ds_add_u32 v%d, v%d offset:%d" % (va, VONE, off))
        A("s_mov_b64 exec, -1")
    def zero(base, n):
        for i in range(0, n, 2): A("v_mov_b64 %s, 0" % v(base + i, 2))
    def lds_wait(off, thr, vt, sleep=0, va=VZ):
        L = A.newlabel("LW")
        A("s_mov_b32 s34, 0")
        A(L + ":")
        if sleep: A("s_sleep %d" % sleep)
        A("ds_read_b32 v%d, v%d offset:%d" % (vt, va, off))
        A("s_waitcnt lgkmcnt(0)")
        A("v_readfirstlane_b32 s35, v%d" % vt)
        A("s_add_u32 s34, s34, 1\ns_cmp_ge_u32 s34, %d\ns_cbranch_scc1 %s_x" % (SPIN_MAX, L))
        A("s_cmp_lt_u32 s35, %s\ns_cbranch_scc1 %s" % (thr, L))
        A(L + "_x:")
    def set_flag(soff, vt):
        A("v_mov_b32 v%d, s27" % vt)
        A("s_mov_b64 exec, 1")
        A("buffer_store_dword v%d, v%d, s[16:19], %s offen sc0 sc1" % (vt, VZ, soff))
        A("s_mov_b64 exec, -1")
    def poll(vaddr, soff, vt, sleep=4, second=None):
        L = A.newlabel("PL")
        A("s_mov_b32 s34, 0")
        A(L + ":")
        A("buffer_load_dword v%d, v%d, s[16:19], %s offen sc0 sc1" % (vt, vaddr, soff))
        if second is not None:
            A("buffer_load_dword v%d, v%d, s[16:19], %s offen sc0 sc1" % (vt + 1, second, soff))
        A("s_waitcnt vmcnt(0)")
        A("v_xor_b32 v%d, s27, v%d" % (vt, vt))
        if second is not None:
            A("v_xor_b32 v%d, s27, v%d\nv_or_b32 v%d, v%d, v%d" % (vt + 1, vt + 1, vt, vt, vt + 1))
        A("v_cmp_ne_u32 vcc, 0, v%d" % vt)
        A("s_add_u32 s34, s34, 1\ns_cmp_ge_u32 s34, %d\ns_cbranch_scc1 %s_x" % (SPIN_MAX // 8, L))
        A("s_cbranch_vccz %s_x" % L)
        A("s_sleep %d" % sleep)
        A("s_branch %s" % L)
        A(L + "_x:")
    def nonce_load(vt):
        A("buffer_load_dword v%d, v%d, s[60:63], 0 offen sc0 sc1" % (vt, VZ))
    def nonce_get(vt, cnt=0):
        L = A.newlabel("NG")
        A("s_waitcnt vmcnt(%d)" % cnt)
        A("v_readfirstlane_b32 s27, v%d" % vt)
        A("s_mov_b32 s34, 0")
        A(L + ":")
        A("s_cmp_lg_u32 s27, 0\ns_cbranch_scc1 %s_x" % L)
        A("s_add_u32 s34, s34, 1\ns_cmp_ge_u32 s34, %d\ns_cbranch_scc1 %s_x" % (SPIN_MAX // 8, L))
        nonce_load(vt)
        A("s_waitcnt vmcnt(0)")
        A("v_readfirstlane_b32 s27, v%d" % vt)
        A("s_branch %s" % L)
        A(L + "_x:")

    VD = (5, 6, 7, 8)
    VW = (9, 10, 11, 12)
    VX = (13, 14)
    VXB = 15
    def w_setup(t0):
        A("v_lshrrev_b32 v%d, 3, v1\nv_mul_lo_u32 v%d, v%d, s28" % (t0, t0, t0))
        A("v_bfe_u32 v%d, v1, 4, 1\nv_lshlrev_b32 v%d, 1, v%d\nv_and_b32 v%d, 7, v1\nv_xor_b32 v%d, v%d, v%d" % (t0+1, t0+1, t0+1, t0+2, t0+1, t0+1, t0+2))
        A("v_lshl_add_u32 v%d, v%d, 4, v%d\nv_add_u32 v%d, s29, v%d" % (t0, t0+1, t0, VD[0], t0))
        A("s_lshl_b32 s32, s28, 3\ns_sub_u32 s32, s32, 1024")
        A("v_xor_b32 v%d, 64, v%d\nv_add_u32 v%d, s32, v%d" % (VD[1], VD[0], VD[1], VD[1]))
        A("s_lshl_b32 s32, s32, 1")
        A("v_add_u32 v%d, s32, v%d\nv_add_u32 v%d, s32, v%d" % (VD[2], VD[0], VD[3], VD[1]))
    def wr_setup(t0, sbase):
        A("v_lshrrev_b32 v%d, 4, v1\nv_bfe_u32 v%d, v1, 2, 2\nv_lshl_add_u32 v%d, v%d, 3, v%d\nv_lshlrev_b32 v%d, 7, v%d" % (t0, t0+1, t0, t0, t0+1, t0, t0))
        A("v_bfe_u32 v%d, v1, 3, 2\nv_lshl_add_u32 v%d, v%d, 5, v%d" % (t0+1, t0, t0+1, t0))
        A("v_and_b32 v%d, 3, v1\nv_lshl_add_u32 v%d, v%d, 3, v%d\nv_add_u32 v%d, %s, v%d" % (t0+1, t0, t0+1, t0, VW[0], sbase, t0))
        for m in range(1, 4):
            A("v_xor_b32 v%d, %d, v%d" % (VW[m], 32*m, VW[0]))
    def xr_setup(t0):
        A("v_and_b32 v%d, 15, v1\nv_lshrrev_b32 v%d, 4, v1\nv_bfe_u32 v%d, v1, 1, 3\nv_xor_b32 v%d, v%d, v%d" % (t0, t0+1, t0+2, t0+1, t0+1, t0+2))
        A("v_lshlrev_b32 v%d, 4, v%d\nv_lshl_add_u32 v%d, v%d, 7, v%d" % (t0+1, t0+1, VXB, t0, t0+1))
    def w_dma_list(slot):
        return ["buffer_load_dwordx4 v%d, s[8:11], s31 offen offset:%d lds" % (VD[q], 1024*q) for q in range(4)]
    def soff(slot):
        return 4096*(slot & 1) + (32768 if slot < 2 else 0)
    def w_dma(slot, wrap=True):
        A("s_add_u32 m0, s30, %d" % (soff(slot) - 32768))
        A("s_nop 0")
        for l in w_dma_list(slot): A(l)
        w_adv(wrap)
    def w_adv(wrap=True):
        A("s_add_u32 s31, s31, s29")
        if wrap:
            A("s_cmp_ge_u32 s31, s33\ns_cselect_b32 s31, s3, s31")
    def w_reads(dst, slot):
        return ["ds_read_b64_tr_b16 %s, v%d offset:%d" % (v(dst + 4*m + 2*b, 2), VW[m], soff(slot) + 512*b) for m in range(4) for b in range(2)]

    ACC = 128
    SLOT = 24576
    A(".p2align 8\n.type %s,@function\n%s:" % (KNAME, KNAME))
    A("s_cmp_ge_u32 s2, 256\ns_cbranch_scc1 L_END")
    ST.begin()
    A("s_load_dwordx16 s[36:51], s[0:1], 0")
    A("s_load_dwordx8 s[52:59], s[0:1], 64")
    A("v_lshrrev_b32 v5, 6, v0")
    A("v_and_b32 v1, 63, v0")
    A("v_readfirstlane_b32 s24, v5")
    def common():
        A("s_and_b32 s3, s2, 7\ns_lshr_b32 s4, s2, 3")
        A("s_lshr_b32 s25, s3, 1\ns_lshl_b32 s25, s25, 3\ns_lshr_b32 s6, s4, 2\ns_add_u32 s25, s25, s6")
        A("s_and_b32 s26, s3, 1\ns_lshl_b32 s26, s26, 2\ns_and_b32 s5, s4, 3\ns_add_u32 s26, s26, s5")
        A("s_lshl_b32 s5, s5, 1\ns_add_u32 s6, s6, s5\ns_and_b32 s6, s6, 7")
        A("s_mov_b32 s4, s26")
        A("v_mov_b32 v%d, 0\nv_mov_b32 v%d, 1\nv_lshlrev_b32 v%d, 4, v1" % (VZ, VONE, VL16))
        A("s_mov_b32 s27, 0")
    A("s_cmp_ge_u32 s24, 4\ns_cbranch_scc1 L_GSTART")
    A("s_cmp_lg_u32 s24, 3\ns_cbranch_scc1 L_NOPF")
    A("s_getpc_b64 s[22:23]")
    A("L_PC:")
    A("s_and_b32 s32, s2, 0xf8\nv_and_b32 v20, 7, v1\nv_add_u32 v20, s32, v20\nv_lshlrev_b32 v20, 7, v20")
    A("v_min_u32 v20, L_END-L_PC, v20")
    A("global_load_dword v0, v20, s[22:23]")
    A("L_NOPF:")
    common()
    A("v_lshrrev_b32 v20, 3, v1\nv_and_b32 v21, 7, v1\nv_lshrrev_b32 v22, 4, v1")
    LX, LZ, LQ = (176, 177), (178, 179), (180, 181)
    A("s_setprio 3")
    A("v_xor_b32 v23, v21, v22")
    A("s_lshl_b32 s28, s25, 6\ns_lshl_b32 s29, s24, 4\ns_add_u32 s28, s28, s29")
    A("v_add_u32 v24, s28, v20\nv_lshlrev_b32 v24, 10, v24\nv_lshl_add_u32 v%d, v23, 4, v24" % LX[0])
    A("v_xor_b32 v%d, 64, v%d\nv_add_u32 v%d, %d, v%d" % (LX[1], LX[0], LX[1], 8192 - 1024, LX[1]))
    A("v_add_u32 v20, s29, v20\nv_and_b32 v22, 1, v22\nv_lshlrev_b32 v22, 1, v22\nv_xor_b32 v21, v21, v22\nv_lshlrev_b32 v21, 4, v21")
    A("v_mul_u32_u24 v24, 3584, v20\ns_lshl_b32 s28, s4, 8\ns_add_u32 s28, s28, 1792\nv_add3_u32 v%d, v24, v21, s28" % LZ[0])
    A("v_xor_b32 v%d, 64, v%d\nv_add_u32 v%d, %d, v%d" % (LZ[1], LZ[0], LZ[1], 8*3584 - 1024, LZ[1]))
    A("s_lshl_b32 s22, s24, 11\ns_add_u32 s23, s22, %d\ns_add_u32 s22, s22, %d" % (L_WQ, L_X))
    A("s_mov_b32 s20, s6\ns_mov_b32 s21, s6")
    A("s_mov_b32 s18, 0x%x\ns_mov_b32 s19, 0x20000\ns_mov_b32 s11, 0x20000" % (2048*512*2))
    A("s_mov_b32 s14, 0x%x\ns_mov_b32 s15, 0x20000\ns_mov_b32 s7, s6" % (512*1536*2))
    A("v_mul_u32_u24 v24, 3072, v20\ns_lshl_b32 s28, s26, 7\nv_add3_u32 v%d, v24, v21, s28" % LQ[0])
    A("v_xor_b32 v%d, 64, v%d\nv_add_u32 v%d, %d, v%d" % (LQ[1], LQ[0], LQ[1], 8*3072 - 1024, LQ[1]))
    A("s_cmp_ge_u32 s4, 7\ns_cselect_b32 s10, 0, 0x%x" % (512*1792*2))
    A("s_waitcnt lgkmcnt(0)")
    A("s_mov_b64 s[16:17], s[%d:%d]\ns_mov_b64 s[8:9], s[%d:%d]\ns_mov_b64 s[12:13], s[%d:%d]" % (P_X, P_X + 1, P_WIN, P_WIN + 1, P_WQKV, P_WQKV + 1))
    vq = []
    def ld_x(i):
        vq.extend([("x", i)]*2)
        A("s_lshl_b32 s31, s20, 13\ns_add_u32 m0, s31, s22\ns_lshl_b32 s31, s20, 7")
        A("buffer_load_dwordx4 v%d, s[16:19], s31 offen lds" % LX[0])
        A("buffer_load_dwordx4 v%d, s[16:19], s31 offen offset:1024 lds" % LX[1])
        A("s_add_u32 s20, s20, 1\ns_and_b32 s20, s20, 7")
    def ld_z(i):
        vq.extend([("w", i)]*4)
        A("s_mul_i32 s31, s21, %d" % (64*3584))
        for d in range(2):
            A("s_add_u32 m0, s23, %d" % (SLOT + 16384*((i + 1) % 3) + (8192 - 128)*d))
            A("s_add_u32 s21, s21, 1" if d == 0 else "s_and_b32 s21, s21, 7")
            A("buffer_load_dwordx4 v%d, s[8:11], s31 offen offset:%d lds" % (LZ[0], 128*d))
            A("buffer_load_dwordx4 v%d, s[8:11], s31 offen offset:%d lds" % (LZ[1], 128*d + 1024))
    def q_dma_groups(sbase, imm):
        g = []
        for mat in range(3):
            pre = "s_mul_i32 s31, s7, %d\n" % (64*3072) if mat == 0 else ""
            g.append(pre + "s_add_u32 m0, %s, %d\n" % (sbase, imm + 7168*mat) + ("s_add_u32 s7, s7, 1", "s_and_b32 s7, s7, 7", "s_nop 0")[mat])
            g.append("buffer_load_dwordx4 v%d, s[12:15], s31 offen offset:%d lds" % (LQ[0], 1024*mat))
            g.append("buffer_load_dwordx4 v%d, s[12:15], s31 offen offset:%d lds" % (LQ[1], 1024*mat + 1024))
        return g
    def ld_q(i):
        vq.extend([("w", i)]*6)
        for l in q_dma_groups("s23", SLOT*((i + 1) % 3)): A(l)
    def vwait(*tags):
        last = max(i for i, x in enumerate(vq) if x in tags)
        A("s_waitcnt vmcnt(%d)" % (len(vq) - 1 - last))
    Q8 = opt.get("q8", 5)
    ld_x(0); ld_z(0); ld_x(1)
    if Q8 == -2: ld_q(8)
    ld_z(1)
    if Q8 == -1: ld_q(8)
    srd(A, 60, P_DBG, P_DBG + 1, 256)
    QA = 128
    XQ, WQ = (16, 72), (48, 104)
    def asetup(part):
        if part == 0:
            A("s_mov_b32 s30, %d" % L_WQ)
            wr_setup(16, "s30"); xr_setup(16)
            A("s_lshl_b32 s32, s24, 5\nv_xor_b32 v%d, s32, v%d" % (VW[1], VW[0]))
        if part == 1: zero(QA, 48)
        if part == 2: zero(XQ[1], 56)
        if part == 3:
            A("v_and_b32 v16, 15, v1\nv_lshlrev_b32 v16, 4, v16\nv_bfe_u32 v18, v1, 4, 1\nv_lshl_add_u32 v16, v18, 21, v16")
            A("v_lshrrev_b32 v19, 5, v1\nv_lshl_add_u32 v182, v19, 9, v16")
            A("v_and_b32 v17, 3, v1\nv_bfe_u32 v16, v1, 2, 1\nv_lshl_or_b32 v17, v16, 3, v17\nv_bfe_u32 v16, v1, 3, 1\nv_lshl_or_b32 v17, v16, 2, v17")
            A("v_lshlrev_b32 v17, 4, v17\nv_lshl_add_u32 v17, v18, 9, v17\nv_lshl_add_u32 v183, v19, 8, v17")
    XS = {0: {0: [2], 1: [3], 2: [4], 3: [5], 4: [6], 5: [7]}, 1: {0: [2, 3], 1: [4], 2: [5], 3: [6], 4: [7]}}[opt.get("xs", 0)]
    def tlb_touch():
        A("s_lshl_b32 s32, s24, 21")
        A("s_load_dword s97, s[%d:%d], s32" % (P_WSP, P_WSP + 1))
        for k in range(3):
            A("s_load_dword s97, s[%d:%d], s32" % (P_WS, P_WS + 1))
            A("s_add_u32 s32, s32, 0x800000")
        for p in (P_OUT, P_BSP):
            A("s_load_dword s97, s[%d:%d], 0" % (p, p + 1))
    if opt.get("tlb", 2) == 1: tlb_touch()
    for i in range(8):
        vwait(("x", i), ("w", i))
        A("s_barrier")
        if i == 0: ST(1)
        for k in XS.get(i, [])[:1]: ld_x(k)
        if i + 2 < 8: ld_z(i + 2)
        for k in XS.get(i, [])[1:]: ld_x(k)
        if i == Q8: ld_q(8)
        if i == 7: ld_q(9)
        if i == 3 and opt.get("tlb", 2) == 2: tlb_touch()
        if 1 <= i <= 4: asetup(i - 1)
        if i == 6: srd(A, 16, P_WS, P_WS + 1, WS_USED)
    A("s_mov_b32 s33, 0\ns_mov_b32 s29, %d\ns_mov_b32 s5, 0" % (2*SLOT))
    def q_mfma(b, k):
        mat, n, p = k >> 3, (k >> 1) & 3, k & 1
        c = v(QA + 16*mat + 4*n, 4)
        xf, wf = v(XQ[b] + 8*n + 4*p, 4), v(WQ[b] + 8*mat + 4*p, 4)
        A("v_mfma_f32_16x16x32_bf16 %s, %s, %s, %s" % ((c, xf, wf, c) if mat == 2 else (c, wf, xf, c)))
    def q_stage(b, dma, wait):
        A("s_lshl_b32 s32, s6, 13\ns_add_u32 s32, s32, %d" % L_X)
        A("v_add_u32 v%d, s32, v%d\nv_xor_b32 v%d, 64, v%d\nv_add_u32 v%d, s33, v%d" % (VX[0], VXB, VX[1], VX[0], VW[0], VW[1]))
        A("s_add_u32 s6, s6, 1\ns_and_b32 s6, s6, 7")
        A("s_add_u32 s28, s29, s23\ns_mov_b32 s29, s33")
        A("s_add_u32 s33, s33, %d\ns_cmp_eq_u32 s33, %d\ns_cselect_b32 s33, 0, s33" % (SLOT, 3*SLOT))
        A("s_waitcnt vmcnt(%d)" % wait)
        A("s_barrier")
        rd = ["ds_read_b64_tr_b16 %s, v%d offset:%d" % (v(WQ[b] + 8*mat + 4*p + 2*h, 2), VW[0], 8192*mat + 4096*p + 512*h) for mat in range(3) for p in range(2) for h in range(2)]
        rd += ["ds_read_b128 %s, v%d offset:%d" % (v(XQ[b] + 8*n + 4*p, 4), VX[p], 2048*n) for n in range(4) for p in range(2)]
        dm = q_dma_groups("s28", 0) if dma else []
        for k in range(24):
            if k < 9 and dm: A(dm[k])
            if k < 20:
                if k == 14: A("s_waitcnt lgkmcnt(8)")
                A(".p2align 3")
                A(rd[k])
            q_mfma(b ^ 1, k)
        A("s_waitcnt lgkmcnt(0)")
    A("L_QLOOP:")
    q_stage(0, True, 6); q_stage(1, True, 6)
    A("s_add_u32 s5, s5, 1\ns_cmp_lt_u32 s5, 3\ns_cbranch_scc1 L_QLOOP")
    q_stage(0, False, 6); q_stage(1, False, 0)
    nonce_load(5)
    A("s_barrier")
    for k in range(24): q_mfma(1, k)
    ST(2)
    A("s_lshl_b32 s7, s26, 2\ns_add_u32 s7, s7, s24")
    A("s_lshl_b32 s31, s7, 16\ns_lshl_b32 s32, s25, 11\ns_add_u32 s31, s31, s32\ns_add_u32 s32, s31, 0x%x" % WS_V)
    A("s_mov_b32 s20, %s\ns_mov_b32 s21, s20" % f32(QSCALE))
    for n in range(4):
        T = 152 + 4*n if False else 184 + 4*n
        c, d = QA + 4*n, QA + 16 + 4*n
        A("v_pk_mul_f32 %s, %s, s[20:21]\nv_pk_mul_f32 %s, %s, s[20:21]" % (v(c, 2), v(c, 2), v(c + 2, 2), v(c + 2, 2)))
        A("v_cvt_pk_bf16_f32 v%d, v%d, v%d\nv_cvt_pk_bf16_f32 v%d, v%d, v%d" % (T + 2, d, d + 1, T + 3, d + 2, d + 3))
        A("v_cvt_pk_bf16_f32 v%d, v%d, v%d\nv_cvt_pk_bf16_f32 v%d, v%d, v%d" % (T, c, c + 1, T + 1, c + 2, c + 3))
        A("s_nop 1")
        A("v_permlane16_swap_b32 v%d, v%d\nv_permlane16_swap_b32 v%d, v%d" % (T, T + 2, T + 1, T + 3))
        A("buffer_store_dwordx4 %s, v182, s[16:19], s31 offen offset:%d sc1" % (v(T, 4), 1024*(n >> 1) + 256*(n & 1)))
    for mp in range(2):
        T = 200 + 4*mp
        c = QA + 32 + 8*mp
        for i in range(4): A("v_cvt_pk_bf16_f32 v%d, v%d, v%d" % (T + i, c + 2*i, c + 2*i + 1))
        A("s_nop 1")
        A("v_permlane16_swap_b32 v%d, v%d\nv_permlane16_swap_b32 v%d, v%d" % (T, T + 2, T + 1, T + 3))
        A("buffer_store_dwordx4 %s, v183, s[16:19], s32 offen offset:%d sc1" % (v(T, 4), 1024*mp))
    A("s_lshl_b32 s21, s7, 7\ns_lshl_b32 s32, s25, 2\ns_add_u32 s21, s21, s32\ns_add_u32 s21, s21, 0x%x" % FL_F1)
    S = (16, 32); O = (48, 64); NM = (80, 96)
    Q = (112, 116); KF = (120, 124); K0 = 128; VF = (132, 140)
    IDX, KA, VA, VC, VAB, VCW = 148, 149, 150, 151, 12, 13
    ALL4 = 0x01010101
    A("s_and_b32 s25, s3, 1\ns_xor_b32 s25, s25, 1\ns_lshl_b32 s25, s25, 2\ns_lshr_b32 s5, s3, 1\ns_add_u32 s25, s25, s5")
    A("s_lshl_b32 s25, s25, 2\ns_lshr_b32 s5, s2, 6\ns_add_u32 s25, s25, s5\ns_bfe_u32 s26, s2, 0x30003")
    A("s_lshl_b32 s7, s26, 2\ns_add_u32 s7, s7, s24")
    A("v_mov_b32 v%d, 0xdddddddd" % IDX)
    zero(VF[0], 16)
    A("s_mov_b32 exec_lo, 0x00110000\ns_mov_b32 exec_hi, 0x00110000")
    A("v_mov_b32 v6, 0x3f803f80\nv_mov_b32 v7, 0x3f803f80")
    for i in range(0, 16, 2): A("v_mov_b64 %s, v[6:7]" % v(VF[0] + i, 2))
    A("s_mov_b64 exec, -1")
    A("s_mov_b32 s22, 0x0000ffff\ns_mov_b32 s23, 0x0000ffff")
    A("v_and_b32 v8, 15, v1\nv_lshlrev_b32 v8, 4, v8\nv_lshrrev_b32 v9, 5, v1\nv_lshl_add_u32 v8, v9, 8, v8")
    A("v_add_u32 v%d, 0x2000, v8" % VAB)
    def att_reset():
        zero(O[0], 32)
        A("v_mov_b32 v%d, v%d\nv_mov_b32 v%d, v%d\nv_mov_b32 v%d, 0\nv_mov_b32 v%d, s24" % (KA, VL16, VA, VAB, VC, VCW))
    att_reset()
    A("s_lshl_b32 s28, s25, 16")
    A("s_lshl_b32 s29, s7, 11\ns_add_u32 s29, s29, s28")
    A("s_add_u32 s28, s28, 0x%x" % WS_K)
    A("s_lshl_b32 s33, s24, 11")
    A("s_add_u32 s30, s28, s33\ns_add_u32 s31, s30, 0x%x" % (WS_V - WS_K))
    A("s_mov_b32 s20, 0\ns_mov_b32 s6, 1")
    A("v_and_b32 v18, 31, v1\nv_lshlrev_b32 v18, 2, v18")
    nonce_get(5, 6)
    A("s_waitcnt vmcnt(0)")
    set_flag("s21", 17)
    ST(3)
    A("s_lshl_b32 s21, s25, 7\ns_add_u32 s21, s21, 0x%x" % FL_F1)
    poll(18, "s21", 20, sleep=opt.get("sl1", 3))
    ST(4)
    A("buffer_load_dwordx4 %s, v%d, s[16:19], s28 offen sc1" % (v(K0, 4), VL16))
    A("buffer_load_dwordx4 %s, v%d, s[16:19], s29 offen sc1" % (v(Q[0], 4), VL16))
    A("buffer_load_dwordx4 %s, v%d, s[16:19], s29 offen offset:1024 sc1" % (v(Q[1], 4), VL16))
    def kv_dma(first=False):
        if first:
            A("s_cmp_eq_u32 s24, 0\ns_cselect_b32 s32, 1024, 0\ns_add_u32 m0, s33, s32\ns_add_u32 s32, s32, s30")
            A("buffer_load_dwordx4 v%d, s[16:19], s32 offen sc1 lds" % VL16)
            A("s_mov_b32 m0, s33\ns_nop 0")
        else:
            A("s_mov_b32 m0, s33\ns_add_u32 s6, s6, 1")
            A("buffer_load_dwordx4 v%d, s[16:19], s30 offen sc1 lds" % VL16)
        A("buffer_load_dwordx4 v%d, s[16:19], s30 offen offset:1024 sc1 lds" % VL16)
        A("s_add_u32 m0, s33, 8192\ns_add_u32 s30, s30, 8192")
        A("buffer_load_dwordx4 v%d, s[16:19], s31 offen sc1 lds" % VL16)
        A("buffer_load_dwordx4 v%d, s[16:19], s31 offen offset:1024 sc1 lds" % VL16)
        A("s_add_u32 s31, s31, 8192\ns_add_u32 s33, s33, 16384")
    kv_dma(True)
    A("s_lshl_b32 s28, s7, 7\ns_add_u32 s28, s28, 0x%x" % FL_F0)
    A("s_waitcnt vmcnt(4)")
    for sd in range(2):
        A("v_mfma_f32_32x32x16_bf16 %s, %s, %s, 0" % (v(S[sd], 16), v(K0, 4), v(Q[sd], 4)))
    A("s_waitcnt vmcnt(0)")
    A("ds_write_b8 v%d, v%d offset:%d" % (VCW, VONE, L_CNTKV))
    A("s_nop 9")
    for sd in range(2):
        A("v_max3_f32 v%d, v%d, v%d, v%d" % (6 + 2*sd, S[sd], S[sd] + 1, S[sd] + 2))
        for i in range(3, 15, 2):
            A("v_max3_f32 v%d, v%d, v%d, v%d" % (6 + 2*sd, 6 + 2*sd, S[sd] + i, S[sd] + i + 1))
        A("v_max_f32 v%d, v%d, v%d" % (6 + 2*sd, 6 + 2*sd, S[sd] + 15))
    A("L_SETMAX:")
    A("v_mov_b32 v7, v6\nv_mov_b32 v9, v8\ns_nop 1")
    A("v_permlane32_swap_b32 v6, v7\nv_permlane32_swap_b32 v8, v9\ns_nop 1")
    A("v_max_f32 v6, v6, v7\nv_max_f32 v8, v8, v9\nv_sub_f32 v6, 0, v6\nv_sub_f32 v8, 0, v8\nv_mov_b32 v7, v6\nv_mov_b32 v9, v8")
    for i in range(0, 16, 2): A("v_mov_b64 %s, v[6:7]" % v(NM[0] + i, 2))
    A("v_mov_b64 %s, %s\nv_mov_b64 %s, %s" % (v(KF[0], 2), v(K0, 2), v(KF[0] + 2, 2), v(K0 + 2, 2)))
    A("v_mfma_f32_32x32x16_bf16 %s, %s, %s, %s" % (v(S[0], 16), v(K0, 4), v(Q[0], 4), v(NM[0], 16)))
    for i in range(0, 16, 2): A("v_mov_b64 %s, v[8:9]" % v(NM[1] + i, 2))
    zero(S[1] + 8, 8)
    lds_wait(L_CNTKV, ALL4, 5)
    A("s_mov_b64 exec, s[22:23]")
    A("ds_read_b128 %s, v%d" % (v(VF[0], 4), VA))
    A("ds_read_b128 %s, v%d offset:512" % (v(VF[0] + 4, 4), VA))
    A("s_mov_b64 exec, -1")
    A("ds_read_b128 %s, v%d offset:1024" % (v(KF[1], 4), KA))
    ST(5)
    A("s_waitcnt lgkmcnt(0)")
    A("s_setprio 1")
    A("s_mov_b32 s5, 0")
    A(".p2align 3")
    A("L_ALOOP:")
    def ex(sd, a_, b_):
        for i in range(a_, b_): A("v_exp_f32 v%d, v%d" % (S[sd] + i, S[sd] + i))
    def sm(sd, vf, half):
        A("v_smfmac_f32_32x32x32_bf16 %s, %s, %s, v%d" % (v(O[sd], 16), v(vf + 4*half, 4), v(S[sd] + 8*half, 8), IDX))
    toff = lambda t: t*1024 if t < 8 else 16384 + (t - 8)*1024
    for t in range(8):
        kc, kn = KF[t & 1], KF[(t + 1) & 1]
        vc, vn = VF[t & 1], VF[(t + 1) & 1]
        ex(0, 0, 2)
        sm(1, vn, 1)
        A("s_add_u32 s5, s5, 1" if t == 7 else "s_nop 0")
        A("s_mov_b64 exec, s[22:23]")
        A("ds_read_b128 %s, v%d offset:%d" % (v(vn, 4), VA, toff(t + 1)))
        A("ds_read_b128 %s, v%d offset:%d" % (v(vn + 4, 4), VA, toff(t + 1) + 512))
        A("s_mov_b64 exec, -1")
        ex(0, 2, 5)
        A("v_mfma_f32_32x32x16_bf16 %s, %s, %s, %s" % (v(S[1], 16), v(kc, 4), v(Q[1], 4), v(NM[1], 16)))
        ex(0, 5, 11)
        sm(0, vc, 0)
        if t == 0:
            A("s_cmp_ge_u32 s6, 8\ns_cbranch_scc1 L_NODMA")
            A("s_cmp_eq_u32 s6, 1\ns_cbranch_scc1 L_FIRST")
            A("L_XFREE:")
            kv_dma()
            A(".p2align 3")
            A("L_NODMA:")
            A("v_exp_f32_e64 v%d, v%d" % (S[0] + 11, S[0] + 11))
            ex(0, 12, 16)
        elif t == 4:
            A("s_waitcnt vmcnt(0)")
            A("s_cmp_eq_u32 s6, 3")
            A("ds_write_b8 v%d, v%d offset:%d" % (VCW, VONE, L_CNTKV + 8))
            A("s_cbranch_scc1 L_FIRST2")
            A("L_NOG:")
            ex(0, 11, 16)
        elif t == 6:
            A("ds_read_b32 v5, v%d offset:%d" % (VC, L_CNTKV + 4))
            A("v_exp_f32_e64 v%d, v%d" % (S[0] + 11, S[0] + 11))
            ex(0, 12, 16)
        else:
            A("s_nop 0")
            ex(0, 11, 16)
        ex(1, 0, 2)
        sm(0, vc, 1)
        A("s_waitcnt lgkmcnt(%d)" % (3 if t in (4, 6) else 2))
        ex(1, 2, 5)
        A("v_mfma_f32_32x32x16_bf16 %s, %s, %s, %s" % (v(S[0], 16), v(kn, 4), v(Q[0], 4), v(NM[0], 16)))
        ex(1, 5, 11)
        sm(1, vc, 0)
        A("s_waitcnt lgkmcnt(0)")
        if t == 6:
            A("v_readfirstlane_b32 s35, v5")
            A("v_add_u32 v%d, 4, v%d" % (VCW, VCW))
            A("s_cmp_lg_u32 s35, 0x%x\ns_cbranch_scc1 L_KVWAIT" % ALL4)
            A("L_KVOK:")
            A("ds_read_b128 %s, v%d offset:%d" % (v(kc, 4), KA, toff(t + 2)))
            A("v_add_u32 v%d, 4, v%d" % (VC, VC))
        else:
            A("s_cmp_lt_u32 s5, 8" if t == 7 else "s_nop 0")
            A("ds_read_b128 %s, v%d offset:%d" % (v(kc, 4), KA, toff(t + 2)))
        if t == 7:
            A("v_add_u32 v%d, 0x4000, v%d\nv_add_u32 v%d, 0x4000, v%d" % (KA, KA, VA, VA))
        if t >= 6:
            ex(1, 11, 16)
        else:
            A("v_exp_f32_e64 v%d, v%d" % (S[1] + 11, S[1] + 11))
            ex(1, 12, 16)
    A("s_cbranch_scc1 L_ALOOP")
    A("s_nop 0")
    sm(1, VF[1], 1)
    A("s_setprio 3")
    ST(6)
    A("v_and_b32 v7, 15, v1\nv_lshlrev_b32 v7, 4, v7\nv_bfe_u32 v8, v1, 4, 1\nv_lshl_add_u32 v7, v8, 10, v7\nv_lshrrev_b32 v8, 5, v1\nv_lshl_add_u32 v7, v8, 8, v7")
    A("s_mul_i32 s31, s7, 44\ns_lshr_b32 s32, s25, 1\ns_add_u32 s31, s31, s32\ns_add_u32 s31, s31, 28\ns_lshl_b32 s31, s31, 12")
    A("s_and_b32 s32, s25, 1\ns_lshl_b32 s32, s32, 9\ns_add_u32 s31, s31, s32\ns_add_u32 s31, s31, 0x%x" % WS_ACT)
    A(".p2align 3")
    for sd in range(2):
        A("v_rcp_f32 v%d, v%d" % (8, O[sd] + 8))
        A("s_nop 0")
        A("v_mul_f32 v8, v8, v%d" % (10 + sd))
        A("s_nop 0")
        for i in range(4): A("v_pk_mul_f32 %s, %s, v[8:9] op_sel_hi:[1,0]" % (v(160 + 2*i, 2), v(O[sd] + 2*i, 2)))
        for i in range(4): A("v_cvt_pk_bf16_f32 v%d, v%d, v%d" % (152 + 4*sd + i, 160 + 2*i, 161 + 2*i))
        A("buffer_store_dwordx4 %s, v7, s[16:19], s31 offen offset:%d sc1" % (v(152 + 4*sd, 4), 2048*sd))
    A("v_add_f32 v5, abs(v%d), abs(v%d)" % (O[0] + 8, O[0]))
    for i in range(1, 8): A("v_add_f32 v5, v5, abs(v%d)" % (O[0] + i))
    for i in range(9): A("v_add_f32 v5, v5, abs(v%d)" % (O[1] + i))
    A("v_mov_b32 v6, 0x207")
    A("v_cmp_class_f32 vcc, v5, v6")
    A("s_lshl_b32 s31, s7, 12\ns_lshl_b32 s32, s25, 7\ns_add_u32 s31, s31, s32\ns_add_u32 s31, s31, 0x%x" % FL_F5)
    A("s_cmp_lg_u32 s20, 0\ns_cbranch_scc1 L_AFIN")
    A("s_cbranch_vccnz L_REDO")
    A("L_AFIN:")
    A("s_waitcnt vmcnt(0)")
    set_flag("s31", 5)
    A("s_branch L_FIN")
    A("L_FIRST:")
    lds_wait(L_CNTG, 4, 5)
    kv_dma()
    A("buffer_load_dword v10, v%d, s[16:19], s28 offen sc1" % VZ)
    A("s_branch L_XFREE")
    A("L_FIRST2:")
    A("ds_write_b8 v%d, v%d offset:%d" % (VCW, VONE, L_CNTKV + 4))
    A("v_cmp_ne_u32 vcc, s27, v10")
    A("s_nop 4\ns_cbranch_vccz L_GOK")
    poll(VZ, "s28", 10)
    A("L_GOK:")
    A("v_and_b32 v5, 31, v1\nv_lshlrev_b32 v5, 2, v5\ns_lshl_b32 s29, s7, 8\ns_add_u32 s29, s29, 0x%x" % WS_G)
    A("buffer_load_dword v10, v5, s[16:19], s29 offen sc1")
    A("buffer_load_dword v11, v5, s[16:19], s29 offen offset:128 sc1")
    A("s_waitcnt lgkmcnt(0)")
    A("s_branch L_NOG")
    A("L_KVWAIT:")
    lds_wait(L_CNTKV + 4, ALL4, 5, va=VC)
    A("s_branch L_KVOK")
    A("L_REDO:")
    A("s_waitcnt lgkmcnt(0)")
    A("s_mov_b32 s20, 1")
    A("s_mov_b64 exec, s[22:23]")
    zero(VF[1] + 4, 4)
    A("s_mov_b64 exec, -1")
    A("v_mov_b32 v6, 0xff800000\nv_mov_b32 v8, 0xff800000")
    A("v_mov_b64 %s, %s\nv_mov_b64 %s, %s" % (v(KF[0], 2), v(K0, 2), v(KF[0] + 2, 2), v(K0 + 2, 2)))
    A("s_mov_b32 s5, 1\ns_nop 1")
    A("L_MAXL:")
    for sd in range(2):
        A("v_mfma_f32_32x32x16_bf16 %s, %s, %s, 0" % (v(S[sd], 16), v(KF[0], 4), v(Q[sd], 4)))
    A("s_lshr_b32 s32, s5, 3\ns_lshl_b32 s32, s32, 14\ns_and_b32 s35, s5, 7\ns_lshl_b32 s35, s35, 10\ns_add_u32 s32, s32, s35")
    A("v_add_u32 v%d, s32, v%d" % (KA, VL16))
    A("ds_read_b128 %s, v%d" % (v(KF[0], 4), KA))
    A("s_nop 15")
    for sd in range(2):
        for i in range(0, 16, 2):
            A("v_max3_f32 v%d, v%d, v%d, v%d" % (6 + 2*sd, 6 + 2*sd, S[sd] + i, S[sd] + i + 1))
    A("s_waitcnt lgkmcnt(0)")
    A("s_add_u32 s5, s5, 1\ns_cmp_lt_u32 s5, 65\ns_cbranch_scc1 L_MAXL")
    att_reset()
    A("s_branch L_SETMAX")

    A("L_GSTART:")
    A("s_setprio 2")
    common()
    A("s_sub_u32 s7, s24, 4")
    A("s_waitcnt lgkmcnt(0)")
    srd(A, 8, P_WIN, P_WIN + 1, 512*1792*2)
    srd(A, 16, P_WS, P_WS + 1, WS_USED)
    srd(A, 60, P_DBG, P_DBG + 1, 256)
    A("s_cmp_lg_u32 s7, 3\ns_cbranch_scc1 L_NOLEAD")
    zero(16, 4)
    A("ds_write_b128 v%d, v[16:19]" % VL16)
    A("s_cmp_lg_u32 s2, 0\ns_cbranch_scc1 L_NOLEAD")
    A("s_mov_b32 s31, 0x%x" % FL_EPOCH)
    A("buffer_load_dword v16, v%d, s[16:19], s31 offen sc0 sc1" % VZ)
    A("s_mov_b32 s32, 0x9e3779b1")
    A("s_waitcnt vmcnt(0)")
    A("v_mul_lo_u32 v16, v16, s32")
    A("v_add_u32 v16, 0x7f4a7c15, v16")
    A("v_max_u32 v16, 1, v16")
    A("s_mov_b64 exec, 1")
    A("buffer_store_dword v16, v%d, s[60:63], 0 offen sc0 sc1" % VZ)
    A("buffer_store_dword v16, v%d, s[16:19], s31 offen sc0 sc1" % VZ)
    A("s_mov_b64 exec, -1")
    A("L_NOLEAD:")
    A("s_lshr_b32 s22, s7, 1\ns_and_b32 s23, s7, 1")
    A("s_lshl_b32 s30, s7, 13\ns_add_u32 s30, s30, %d" % L_G)
    xr_setup(16)
    A("s_cmp_ge_u32 s4, 7\ns_cbranch_scc1 L_G7")
    Z2 = 192
    XZ, WZ = (16, 64), (32, 80)
    A("s_lshl_b32 s32, s22, 13\ns_add_u32 s32, s32, %d" % (L_WQ + SLOT))
    wr_setup(16, "s32")
    A("v_mov_b32 v5, v%d" % VW[0])
    A("s_lshl_b32 s20, s23, 12\ns_add_u32 s20, s20, %d" % L_X)
    zero(Z2, 32); zero(XZ[1], 48)
    A("s_mov_b32 s33, 16384\ns_mov_b32 s5, 0\ns_mov_b32 s21, s6")
    def z_mfma(b, k):
        m, nn, p = k >> 2, (k >> 1) & 1, k & 1
        c = v(Z2 + 8*m + 4*nn, 4)
        A("v_mfma_f32_16x16x32_bf16 %s, %s, %s, %s" % (c, v(WZ[b] + 8*m + 4*p, 4), v(XZ[b] + 8*nn + 4*p, 4), c))
    A("s_waitcnt lgkmcnt(0)")
    A("L_ZLOOP:")
    for b in range(2):
        A("s_lshl_b32 s32, s21, 13\ns_add_u32 s32, s32, s20")
        A("v_add_u32 v%d, s32, v%d\nv_xor_b32 v%d, 64, v%d\nv_add_u32 v%d, s33, v5" % (VX[0], VXB, VX[1], VX[0], VW[0]))
        for m in range(1, 4): A("v_xor_b32 v%d, %d, v%d" % (VW[m], 32*m, VW[0]))
        A("s_add_u32 s21, s21, 1\ns_and_b32 s21, s21, 7")
        A("s_add_u32 s33, s33, %d\ns_cmp_eq_u32 s33, %d\ns_cselect_b32 s33, 0, s33" % (16384, 3*16384))
        A("s_barrier")
        rd = ["ds_read_b128 %s, v%d offset:%d" % (v(XZ[b] + 8*nn + 4*p, 4), VX[p], 2048*nn) for nn in range(2) for p in range(2)]
        rd += ["ds_read_b64_tr_b16 %s, v%d offset:%d" % (v(WZ[b] + 8*m + 4*p + 2*h, 2), VW[m], 4096*p + 512*h) for m in range(4) for p in range(2) for h in range(2)]
        A(".p2align 3")
        for k in range(16):
            if k < 10:
                if k == 7: A("s_waitcnt lgkmcnt(8)\ns_nop 0")
                A(rd[2*k]); A(rd[2*k + 1])
            z_mfma(b ^ 1, k)
        A("s_waitcnt lgkmcnt(0)")
    A("s_add_u32 s5, s5, 1\ns_cmp_lt_u32 s5, 4\ns_cbranch_scc1 L_ZLOOP")
    A("s_barrier")
    ST(1)
    nonce_load(28)
    A("s_mov_b32 s20, %s\ns_mov_b32 s21, %s" % (f32(GC2), f32(GC2)))
    A("v_mov_b32 v24, %s\nv_mov_b32 v25, %s\nv_mov_b32 v26, 1.0\nv_mov_b32 v27, 1.0" % (f32(GC1), f32(GC1)))
    A("s_mov_b32 s28, 3584")
    A("s_lshl_b32 s29, s4, 8\ns_lshl_b32 s32, s22, 7\ns_add_u32 s29, s29, s32")
    w_setup(16)
    for blk in range(5):
        A("s_barrier")
        if blk < 4:
            for k in range(4*blk, 4*blk + 4): z_mfma(1, k)
    A("s_barrier")
    A("s_lshl_b32 s29, s28, 5\ns_lshl_b32 s3, s23, 3\ns_mul_i32 s3, s3, s29\ns_lshl_b32 s33, s29, 3\ns_add_u32 s33, s33, s3")
    A("s_and_b32 s6, s25, 3\ns_lshl_b32 s32, s6, 1\ns_mul_i32 s31, s32, s29\ns_add_u32 s31, s31, s3")
    A("s_lshl_b32 s5, s23, 15\ns_add_u32 s5, s5, %d" % L_X)
    w_dma(0); w_dma(1)
    A("s_sub_u32 s32, s30, 32768")
    wr_setup(20, "s32")
    A("s_lshl_b32 s32, s23, 6")
    for m in range(4): A("v_xor_b32 v%d, s32, v%d" % (VW[m], VW[m]))
    def x_addr():
        A("s_lshl_b32 s32, s6, 13\ns_add_u32 s32, s32, s5")
        A("v_add_u32 v%d, s32, v%d\nv_xor_b32 v%d, 64, v%d" % (VX[0], VXB, VX[1], VX[0]))
        A("s_add_u32 s6, s6, 1\ns_and_b32 s6, s6, 3")
    x_addr()
    def st_loads():
        for j in range(7):
            A("buffer_load_dwordx4 %s, v%d, s[16:19], s%d offen offset:%d sc0 sc1" % (v(64 + 4*j, 4), VL16, j >> 2, 1024*(j & 3)))
        A("buffer_load_dword v92, v%d, s[16:19], s28 offen sc0 sc1" % VZ)
    A("s_barrier")
    A("s_barrier")
    ST(2)
    SET = (64, 0)
    def d_reads(d):
        b = SET[d & 1]
        w = ["ds_read_b64_tr_b16 %s, v%d offset:%d" % (v(WS_(d) + 8*m + 4*p + 2*h, 2), VW[m], soff(2*(d & 1) + p) + 512*h) for m in range(4) for p in range(2) for h in range(2)]
        x = ["ds_read_b128 %s, v%d offset:%d" % (v(XS_(d) + 8*n + 4*p, 4), VX[p], 2048*n) for n in range(4) for p in range(2)]
        return w + x
    def d_mfma(d, fill):
        b = SET[d & 1]
        fill = list(fill)
        for k in range(32):
            m, n, p = k >> 3, (k >> 1) & 3, k & 1
            c = v(ACC + 16*m + 4*n, 4)
            A("v_mfma_f32_16x16x32_bf16 %s, %s, %s, %s" % (c, v(WS_(d) + 8*m + 4*p, 4), v(XS_(d) + 8*n + 4*p, 4), "0" if (d == 0 and p == 0) else c))
            if fill: A(fill.pop(0))
    def with_waits(rd):
        return rd[:12] + ["s_waitcnt lgkmcnt(3)\ns_nop 0\n" + rd[12]] + rd[13:]
    XS_ = lambda d: (64, 32)[d & 1]
    WS_ = lambda d: (96, 224)[d & 1]
    if opt.get("d1early", 1): w_dma(2); w_dma(3)
    A("s_waitcnt vmcnt(%d)" % (8 if opt.get("d1early", 1) else 0))
    for l in with_waits(d_reads(0)): A(l)
    emit_gelu(A, Z2, 16, 16, 24, 20, 26)
    if not opt.get("d1early", 1): w_dma(2); w_dma(3)
    emit_gelu(A, Z2 + 16, 16, 16, 24, 20, 26)
    for nn in range(2):
        sA, sB = 16 + 2*nn, 20 + 2*nn
        for m in range(4):
            for h in range(2):
                c = Z2 + 8*m + 4*nn + 2*h
                if m == 0 and h == 0:
                    A("v_pk_mul_f32 %s, %s, %s" % (v(sB, 2), v(c, 2), v(c, 2)))
                    A("v_pk_add_f32 %s, %s, %s" % (v(sA, 2), v(c, 2), v(c + 2, 2)))
                else:
                    A("v_pk_fma_f32 %s, %s, %s, %s" % (v(sB, 2), v(c, 2), v(c, 2), v(sB, 2)))
                    if m > 0: A("v_pk_add_f32 %s, %s, %s" % (v(sA, 2), v(sA, 2), v(c, 2)))
    for i in range(4): A("v_add_f32 v%d, v%d, v%d" % (16 + 2*i, 16 + 2*i, 17 + 2*i))
    A("s_nop 1")
    A("v_permlane16_swap_b32 v16, v18\nv_permlane16_swap_b32 v20, v22\ns_nop 1")
    A("v_add_f32 v16, v16, v18\nv_add_f32 v18, v20, v22\nv_mov_b32 v17, v16\nv_mov_b32 v19, v18\ns_nop 1")
    A("v_permlane32_swap_b32 v16, v17\nv_permlane32_swap_b32 v18, v19\ns_nop 1")
    A("v_add_f32 v16, v16, v17\nv_add_f32 v18, v18, v19")
    nonce_get(28, 8)
    A("v_mov_b32 v17, s27\nv_mov_b32 v19, s27")
    A("s_lshl_b32 s32, s25, 1\ns_add_u32 s32, s32, s23\ns_mul_i32 s0, s32, 7168\ns_add_u32 s0, s0, 0x%x" % WS_ST)
    A("s_lshl_b32 s32, s4, 1\ns_add_u32 s32, s32, s22\ns_lshl_b32 s32, s32, 9\ns_add_u32 s32, s32, s0")
    A("s_mov_b32 exec_hi, 0")
    A("buffer_store_dwordx4 v[16:19], v%d, s[16:19], s32 offen sc0 sc1" % VL16)
    A("s_mov_b32 exec_hi, -1")
    A("s_add_u32 s1, s0, 4096")
    A("s_waitcnt lgkmcnt(0)")
    w_dma(0); w_dma(1)
    x_addr()
    A("s_waitcnt vmcnt(9)")
    A(".p2align 3")
    d_mfma(0, with_waits(d_reads(1)))
    A("s_waitcnt lgkmcnt(0)")
    w_dma(2); w_dma(3)
    x_addr()
    A("s_waitcnt vmcnt(8)")
    A(".p2align 3")
    d_mfma(1, with_waits(d_reads(2)))
    x_addr()
    A("s_waitcnt vmcnt(0) lgkmcnt(0)")
    A(".p2align 3")
    d_mfma(2, with_waits(d_reads(3)))
    A("s_lshl_b32 s28, s25, 7\ns_add_u32 s28, s28, 0x%x" % FL_F0)
    st_loads()
    A("v_add_u32 v16, s30, v%d\nv_xor_b32 v17, 0x2000, v16" % VL16)
    A("s_waitcnt lgkmcnt(0)")
    for k in range(32):
        m, n, p = (k >> 3) ^ 2, (k >> 1) & 3, k & 1
        c = v(ACC + 16*m + 4*n, 4)
        A("v_mfma_f32_16x16x32_bf16 %s, %s, %s, %s" % (c, v(WS_(1) + 8*m + 4*p, 4), v(XS_(1) + 8*n + 4*p, 4), c))
        if k >= 16 and (k & 1):
            q = (k - 16) >> 1
            A("ds_write_b128 v16, %s offset:%d" % (v(ACC + 32 + 4*q, 4), 1024*q))
    A("v_and_b32 v60, 15, v1\nv_lshlrev_b32 v60, 7, v60\nv_bfe_u32 v61, v1, 1, 1\nv_lshl_add_u32 v60, v61, 5, v60")
    A("v_bfe_u32 v61, v1, 3, 1\nv_xor_b32 v61, s23, v61\nv_lshl_add_u32 v60, v61, 6, v60\nv_lshrrev_b32 v61, 4, v1\nv_lshl_add_u32 v60, v61, 3, v60")
    A("s_sub_u32 s32, s30, 32768\nv_add_u32 v60, s32, v60")
    for m in range(1, 4): A("v_xor_b32 v%d, %d, v60" % (60 + m, 32*m))
    A("s_waitcnt lgkmcnt(0)")
    arrive(L_CNTR)
    ST(3)
    Lp = A.newlabel("SP")
    A("s_mov_b32 s34, 0")
    A("s_waitcnt vmcnt(0)")
    A(Lp + ":")
    A("v_xor_b32 v20, s27, v92")
    for j in range(7):
        for q in (1, 3):
            A("v_xor_b32 v21, s27, v%d\nv_or_b32 v20, v20, v21" % (64 + 4*j + q))
    A("v_cmp_ne_u32 vcc, 0, v20")
    A("s_add_u32 s34, s34, 1\ns_cmp_ge_u32 s34, %d\ns_cbranch_scc1 %s_x" % (SPIN_MAX // 16, Lp))
    A("s_cbranch_vccz %s_x" % Lp)
    st_loads()
    A("s_waitcnt vmcnt(0)")
    A("s_branch %s" % Lp)
    A(Lp + "_x:")
    ST(4)
    srd(A, 8, P_BSP, P_BSP + 1, 4096)
    A("v_and_b32 v5, 15, v1\nv_lshlrev_b32 v6, 1, v5\nv_lshlrev_b32 v5, 2, v5")
    A("s_lshl_b32 s28, s25, 7\ns_lshl_b32 s29, s25, 8\ns_add_u32 s29, s29, 0x%x" % WS_G)
    for n in range(4):
        A("buffer_load_ushort v%d, v6, s[8:11], s28 offen offset:%d" % (112 + 2*n, 32*n))
        A("buffer_load_dword v%d, v5, s[16:19], s29 offen offset:%d sc1" % (120 + 2*n, 64*n))
    A("v_mov_b32 v32, v64\nv_mov_b32 v34, v66")
    for j in range(1, 7):
        A("v_add_f32 v32, v32, v%d\nv_add_f32 v34, v34, v%d" % (64 + 4*j, 66 + 4*j))
    A("v_mov_b32 v33, v32\nv_mov_b32 v35, v34\ns_nop 1")
    A("v_permlane32_swap_b32 v32, v33\nv_permlane32_swap_b32 v34, v35\ns_nop 1")
    A("v_add_f32 v32, v32, v33\nv_add_f32 v34, v34, v35")
    A("v_mul_f32 v32, %s, v32\nv_mul_f32 v34, %s, v34" % (f32(1.0/896), f32(1.0/896)))
    A("v_fma_f32 v34, -v32, v32, v34\nv_max_f32 v34, 0, v34\nv_add_f32 v34, %s, v34" % f32(1e-5))
    A("v_rsq_f32 v36, v34\ns_nop 0\nv_mul_f32 v40, v32, v36\nv_sub_f32 v40, 0, v40")
    A("v_mov_b32 v38, v36\nv_mov_b32 v42, v40\ns_nop 1")
    A("v_permlane16_swap_b32 v36, v38\nv_permlane16_swap_b32 v40, v42")
    A("s_waitcnt lgkmcnt(0)\ns_nop 0")
    for m in range(4):
        for nn in range(2):
            c = Z2 + 8*m + 4*nn
            T = 44 + 2*(2*m + nn)
            for h in range(2):
                A("v_pk_fma_f32 %s, %s, %s, %s op_sel_hi:[1,0,0]" % (v(c + 2*h, 2), v(c + 2*h, 2), v(36 + 2*nn, 2), v(40 + 2*nn, 2)))
            A("v_cvt_pk_bf16_f32 v%d, v%d, v%d\nv_cvt_pk_bf16_f32 v%d, v%d, v%d" % (T, c, c + 1, T + 1, c + 2, c + 3))
            A("ds_write_b64 v%d, %s offset:%d" % (60 + m, v(T, 2), 2048*nn))
    A("s_lshl_b32 s0, s4, 5\ns_add_u32 s0, s0, s25\ns_lshl_b32 s0, s0, 14\ns_lshl_b32 s32, s22, 13\ns_add_u32 s0, s0, s32")
    A("s_lshl_b32 s32, s23, 10\ns_add_u32 s0, s0, s32\ns_add_u32 s0, s0, 0x%x\ns_add_u32 s1, s0, 4096" % WS_Z2N)
    A("s_waitcnt lgkmcnt(0)")
    for l in w_reads(96, 2): A(l)
    A("s_waitcnt lgkmcnt(0)")
    for m in range(4):
        A("buffer_store_dwordx4 %s, v%d, s[16:19], s%d offen offset:%d sc1" % (v(96 + 4*m, 4), VL16, m >> 1, 2048*(m & 1)))
    arrive(L_CNTG)
    A("s_lshl_b32 s31, s4, 7\ns_lshl_b32 s32, s25, 2\ns_add_u32 s31, s31, s32\ns_add_u32 s31, s31, s7\ns_lshl_b32 s31, s31, 7\ns_add_u32 s31, s31, 0x%x" % FL_F3)
    A("v_mov_b32 v24, %s\nv_mov_b32 v25, %s\nv_mov_b32 v26, 1.0\nv_mov_b32 v27, 1.0" % (f32(GC1), f32(GC1)))
    lds_wait(L_CNTR, 4, 18)
    for q in range(8):
        A("ds_read_b128 %s, v17 offset:%d" % (v(64 + 4*q, 4), 1024*q))
    A("s_waitcnt lgkmcnt(0)")
    arrive(L_CNTR)
    for i in range(16):
        A("v_pk_add_f32 %s, %s, %s" % (v(ACC + 2*i, 2), v(ACC + 2*i, 2), v(64 + 2*i, 2)))
    emit_gelu(A, ACC, 24, 16, 24, 20, 26)
    A("s_waitcnt vmcnt(0)")
    set_flag("s31", 28)
    emit_gelu(A, ACC + 24, 8, 16, 24, 20, 26)
    for n in range(4):
        A("v_lshlrev_b32 v%d, 16, v%d\nv_sub_f32 v%d, 1.0, v%d\nv_mov_b32 v%d, v%d" % (112 + 2*n, 112 + 2*n, 120 + 2*n, 120 + 2*n, 113 + 2*n, 112 + 2*n))
    for n in range(4):
        for mm in range(2):
            c = ACC + 16*mm + 4*n
            for h in range(2):
                A("v_pk_mul_f32 %s, %s, %s op_sel_hi:[1,0]" % (v(c + 2*h, 2), v(c + 2*h, 2), v(120 + 2*n, 2)))
            A("v_cvt_pk_bf16_f32 v%d, v%d, v%d\nv_cvt_pk_bf16_f32 v%d, v%d, v%d" % (16 + 4*n + 2*mm, c, c + 1, 17 + 4*n + 2*mm, c + 2, c + 3))
            A("v_mov_b64 %s, %s\nv_mov_b64 %s, %s" % (v(c, 2), v(112 + 2*n, 2), v(c + 2, 2), v(112 + 2*n, 2)))
    ST(5)
    WSP, ZR = 32, 64
    srd(A, 12, P_WSP, P_WSP + 1, 2048*2048*2)
    A("v_lshrrev_b32 v5, 3, v1\nv_and_b32 v6, 7, v1\nv_lshrrev_b32 v7, 4, v1\nv_xor_b32 v6, v6, v7")
    A("s_lshl_b32 s28, s25, 6\nv_add_u32 v5, s28, v5\nv_lshlrev_b32 v5, 12, v5\nv_lshl_add_u32 v5, v6, 4, v5")
    A("v_xor_b32 v6, 64, v5\nv_add_u32 v6, %d, v6" % (32768 - 1024))
    A("v_add_u32 v7, %d, v5\nv_add_u32 v8, %d, v6" % (2*(32768 - 1024), 2*(32768 - 1024)))
    A("s_lshl_b32 s31, s7, 10")
    def sp_dma():
        for hf in range(2):
            A("s_add_u32 m0, s30, %d" % (4096*hf))
            A("s_add_u32 s32, s31, %d" % (131072*hf))
            for q in range(4):
                A("buffer_load_dwordx4 v%d, s[12:15], s32 offen offset:%d lds" % (5 + q, 1024*q))
        A("s_add_u32 s31, s31, 128")
    lds_wait(L_CNTR, 8, 32)
    sp_dma()
    A("v_add_u32 v%d, s30, v%d\nv_xor_b32 v%d, 64, v%d" % (VX[0], VXB, VX[1], VX[0]))
    for mu in range(4):
        A("s_add_u32 s32, s7, %d\ns_and_b32 s32, s32, 3\ns_lshl_b32 s32, s32, 12\nv_add_u32 v%d, s32, v%d" % (mu, 9 + mu, VL16))
    A("s_lshl_b32 s33, s4, 5\ns_lshl_b32 s32, s7, 3\ns_add_u32 s33, s33, s32\ns_lshl_b32 s33, s33, 14\ns_add_u32 s33, s33, 0x%x" % WS_Z2N)
    zero(ACC + 32, 96)
    A("s_lshl_b32 s28, s4, 2\ns_add_u32 s28, s28, s7\ns_lshl_b32 s28, s28, 12\ns_add_u32 s28, s28, 0x%x" % FL_F3)
    A("v_and_b32 v32, 31, v1\nv_lshlrev_b32 v32, 7, v32")
    poll(32, "s28", 33, sleep=opt.get("sl3", 6))
    ST(6)
    def z_load(m):
        for p in range(2):
            A("buffer_load_dwordx4 %s, v%d, s[16:19], s33 offen offset:%d sc1" % (v(ZR + 8*m + 4*p, 4), 9 + (m >> 1), 2048*(m & 1) + 1024*p))
    for m in range(8): z_load(m)
    A("s_mov_b32 s5, 0")
    A("s_setprio %d" % opt.get("gprio", 0))
    A("L_SLOOP:")
    A("s_add_u32 s33, s33, 16384")
    A("s_cmp_eq_u32 s5, 7\ns_cselect_b32 s14, 0, s14\ns_cselect_b32 s33, 0x%x, s33" % 0x7ff00000)
    A("s_waitcnt vmcnt(16)")
    for n in range(4):
        for p in range(2):
            A("ds_read_b128 %s, v%d offset:%d" % (v(WSP + 8*n + 4*p, 4), VX[p], 2048*n))
    A("s_waitcnt lgkmcnt(0)")
    sp_dma()
    for m in range(8):
        A("s_waitcnt vmcnt(22)")
        A(".p2align 3")
        for n in range(4):
            c = v(ACC + 16*m + 4*n, 4)
            for p in range(2):
                A("v_mfma_f32_16x16x32_bf16 %s, %s, %s, %s" % (c, v(ZR + 8*m + 4*p, 4), v(WSP + 8*n + 4*p, 4), c))
        z_load(m)
    A("s_add_u32 s5, s5, 1\ns_cmp_lt_u32 s5, 8\ns_cbranch_scc1 L_SLOOP")
    A("s_setprio %d" % opt.get("gprio2", 2))
    ST(7)
    WHR = (96, 112, 160, 176, 192, 208, 224)
    def wc_base(first_step_expr):
        A("s_mul_i32 s29, s26, 44\n%s\ns_add_u32 s29, s29, s32\ns_lshl_b32 s29, s29, 12\ns_add_u32 s29, s29, 0x%x" % (first_step_expr, WS_WC))
    def wc_load(dst):
        for m in range(4):
            A("buffer_load_dwordx4 %s, v%d, s[16:19], s29 offen offset:%d sc1" % (v(dst + 4*m, 4), VL16, 1024*m))
        A("s_add_u32 s29, s29, 4096")
    wc_base("s_mul_i32 s32, s7, 7")
    A("v_add_u32 v5, s30, v%d" % VL16)
    A("v_and_b32 v8, 15, v1\nv_lshlrev_b32 v8, 7, v8\ns_lshl_b32 s28, s26, 11\ns_add_u32 s28, s28, 0x%x" % FL_F6)
    A("buffer_load_dword v9, v8, s[16:19], s28 offen sc1")
    A("s_waitcnt vmcnt(1)")
    for r in range(1, 4):
        for q in range(8):
            A("ds_write_b128 v5, %s offset:%d" % (v(ACC + 32*r + 4*q, 4), 1024*q))
        A("s_sub_u32 s32, s7, %d\ns_and_b32 s32, s32, 3\ns_lshl_b32 s32, s32, 13\ns_add_u32 s32, s32, %d" % (r, L_G))
        A("v_add_u32 v6, s32, v%d" % VL16)
        A("s_waitcnt lgkmcnt(0)")
        arrive(L_CNTR)
        if r == 1:
            A("s_waitcnt vmcnt(0)")
            A("v_cmp_ne_u32 vcc, s27, v9\ns_nop 4\ns_cbranch_vccz L_F6OK")
            poll(8, "s28", 9)
            A("L_F6OK:")
            wc_load(WHR[0]); wc_load(WHR[1])
        for k in range(2*r, min(2*r + 2, 7)): wc_load(WHR[k])
        lds_wait(L_CNTR, 8*r + 4, 7)
        for q in range(8):
            A("ds_read_b128 %s, v6 offset:%d" % (v(ZR + 4*q, 4), 1024*q))
        A("s_waitcnt lgkmcnt(0)")
        if r < 3: arrive(L_CNTR)
        for i in range(16):
            A("v_pk_add_f32 %s, %s, %s" % (v(ACC + 2*i, 2), v(ACC + 2*i, 2), v(ZR + 2*i, 2)))
        if r < 3:
            lds_wait(L_CNTR, 8*r + 8, 7)
    ST(8)
    A("v_and_b32 v5, 15, v1\nv_lshlrev_b32 v5, 4, v5\nv_bfe_u32 v6, v1, 4, 1\nv_lshl_add_u32 v5, v6, 9, v5\nv_lshrrev_b32 v6, 5, v1\nv_lshl_add_u32 v5, v6, 8, v5")
    A("s_mul_i32 s31, s25, 44\ns_lshl_b32 s32, s4, 2\ns_add_u32 s32, s32, s7\ns_add_u32 s31, s31, s32\ns_lshl_b32 s31, s31, 12\ns_add_u32 s31, s31, 0x%x" % WS_ACT)
    for n in range(4):
        T = 48 + 4*n
        for i in range(4): A("v_lshlrev_b32 v%d, 16, v%d\nv_and_b32 v%d, 0xffff0000, v%d" % (32 + 2*i, 16 + 4*n + i, 33 + 2*i, 16 + 4*n + i))
        for mm in range(2):
            c = ACC + 16*mm + 4*n
            for i in range(2): A("v_pk_mul_f32 %s, %s, %s" % (v(c + 2*i, 2), v(c + 2*i, 2), v(32 + 4*mm + 2*i, 2)))
        for mm in range(2):
            c = ACC + 16*mm + 4*n
            A("v_cvt_pk_bf16_f32 v%d, v%d, v%d\nv_cvt_pk_bf16_f32 v%d, v%d, v%d" % (T + 2*mm, c, c + 1, T + 2*mm + 1, c + 2, c + 3))
        A("s_nop 1")
        A("v_permlane16_swap_b32 v%d, v%d\nv_permlane16_swap_b32 v%d, v%d" % (T, T + 2, T + 1, T + 3))
        A("buffer_store_dwordx4 %s, v5, s[16:19], s31 offen offset:%d sc1" % (v(T, 4), 1024*n))
    A("s_lshl_b32 s31, s25, 12\ns_lshl_b32 s32, s32, 7\ns_add_u32 s31, s31, s32\ns_add_u32 s31, s31, 0x%x" % FL_F4)
    A("s_waitcnt vmcnt(0)")
    set_flag("s31", 6)
    A("s_branch L_OUT")
    A("L_G7:")
    A("s_sub_u32 s32, s30, 32768")
    wr_setup(16, "s32")
    A("s_cmp_eq_u32 s7, 0\ns_cbranch_scc1 L_GATE")
    A("s_waitcnt lgkmcnt(0)")
    for i in range(17): A("s_barrier")
    nonce_load(16)
    nonce_get(16)
    A("s_branch L_G7X")
    A("L_GATE:")
    srd(A, 12, P_GW, P_GW + 1, 1024)
    A("v_lshrrev_b32 v16, 4, v1\nv_lshlrev_b32 v16, 4, v16")
    for st in range(16):
        A("buffer_load_dwordx4 %s, v16, s[12:15], 0 offen offset:%d" % (v(64 + 4*st, 4), 64*st))
    A("v_add_u32 v%d, %d, v%d\nv_xor_b32 v%d, 64, v%d" % (VX[0], L_X, VXB, VX[1], VX[0]))
    zero(ACC, 16)
    for i in range(8): A("s_barrier")
    A("s_waitcnt vmcnt(0)")
    nonce_load(20)
    for sb in range(8):
        for p in range(2):
            for n in range(4):
                A("ds_read_b128 %s, v%d offset:%d" % (v(32 + 16*p + 4*n, 4), VX[p], 2048*n + 8192*sb))
        A("s_barrier")
        A("s_waitcnt lgkmcnt(0)")
        for n in range(4):
            for p in range(2):
                A("v_mfma_f32_16x16x32_bf16 %s, %s, %s, %s" % (v(ACC + 4*n, 4), v(64 + 8*sb + 4*p, 4), v(32 + 16*p + 4*n, 4), v(ACC + 4*n, 4)))
    nonce_get(20)
    A("s_nop 3")
    for n in range(4): A("v_mul_f32 v%d, %s, v%d" % (16 + n, f32(-LOG2E), ACC + 4*n))
    for n in range(4): A("v_exp_f32 v%d, v%d" % (16 + n, 16 + n))
    for n in range(4): A("v_add_f32 v%d, 1.0, v%d" % (16 + n, 16 + n))
    for n in range(4): A("v_rcp_f32 v%d, v%d" % (16 + n, 16 + n))
    A("v_lshlrev_b32 v20, 2, v1\ns_lshl_b32 s29, s25, 8\ns_add_u32 s29, s29, 0x%x" % WS_G)
    A("s_mov_b32 exec_lo, 0xffff\ns_mov_b32 exec_hi, 0")
    for n in range(4):
        A("buffer_store_dword v%d, v20, s[16:19], s29 offen offset:%d sc1" % (16 + n, 64*n))
    A("s_mov_b64 exec, -1")
    A("s_barrier")
    A("s_lshl_b32 s28, s25, 7\ns_add_u32 s28, s28, 0x%x" % FL_F0)
    A("s_waitcnt vmcnt(0)")
    set_flag("s28", 16)
    A("L_G7X:")
    arrive(L_CNTG)
    lds_wait(L_CNTKV + 8, 0x01010101, 16, sleep=16)
    A("s_lshl_b32 s20, s25, 2\ns_add_u32 s20, s20, s7\ns_and_b32 s21, s20, 7\ns_lshr_b32 s20, s20, 3\ns_mov_b32 s22, s20")
    A("s_mov_b32 s28, 1024\ns_lshl_b32 s29, s21, 7")
    w_setup(16)
    A("L_WT:")
    srd(A, 8, P_WOUT, P_WOUT + 1, 896*512*2)
    A("s_lshl_b32 s31, s22, 15")
    A("s_cmp_lt_u32 s22, 28\ns_cbranch_scc1 L_WT2")
    srd(A, 8, P_WO, P_WO + 1, 512*512*2)
    A("s_sub_u32 s31, s31, %d" % (28*32768))
    A("L_WT2:")
    w_dma(0, False)
    A("s_mul_i32 s31, s21, 44\ns_add_u32 s31, s31, s22\ns_lshl_b32 s31, s31, 12\ns_add_u32 s31, s31, 0x%x" % WS_WC)
    A("s_waitcnt vmcnt(0)")
    for l in w_reads(32, 0): A(l)
    A("s_waitcnt lgkmcnt(0)")
    for m in range(4):
        A("buffer_store_dwordx4 %s, v%d, s[16:19], s31 offen offset:%d sc1" % (v(32 + 4*m, 4), VL16, 1024*m))
    A("s_add_u32 s22, s22, 16\ns_cmp_lt_u32 s22, 44\ns_cbranch_scc1 L_WT")
    A("s_lshl_b32 s31, s21, 11\ns_lshl_b32 s32, s20, 7\ns_add_u32 s31, s31, s32\ns_add_u32 s31, s31, 0x%x" % FL_F6)
    A("s_waitcnt vmcnt(0)")
    set_flag("s31", 16)
    A("v_and_b32 v24, 15, v1\nv_lshlrev_b32 v24, 7, v24")
    A("s_lshl_b32 s28, s26, 11\ns_add_u32 s28, s28, 0x%x" % FL_F6)
    poll(24, "s28", 25, sleep=32)
    wc_base("s_mul_i32 s32, s7, 7")
    for k in range(7): wc_load(WHR[k])
    A("L_OUT:")
    ST(9)
    OA = (128, 144, 64, 80)
    HRR = [24 + 4*k for k in range(10)] + [240 + 4*k for k in range(4)]
    NR = 14
    for nu in range(4):
        A("s_add_u32 s32, s7, %d\ns_and_b32 s32, s32, 3\ns_lshl_b32 s32, s32, 10\nv_add_u32 v%d, s32, v%d" % (nu, 16 + nu, VL16))
    A("s_mul_i32 s33, s25, 44\ns_mul_i32 s32, s7, 7\ns_add_u32 s33, s33, s32\ns_lshl_b32 s33, s33, 12\ns_add_u32 s33, s33, 0x%x" % WS_ACT)
    A("v_min_u32 v20, 6, v1\nv_add_u32 v20, s32, v20\nv_lshlrev_b32 v20, 7, v20")
    A("s_lshl_b32 s28, s25, 12\ns_add_u32 s28, s28, 0x%x" % FL_F4)
    poll(20, "s28", 21, sleep=6)
    ST(10)
    vq2 = []
    def vw2(tag):
        last = max(i for i, x in enumerate(vq2) if x == tag)
        A("s_waitcnt vmcnt(%d)" % (len(vq2) - 1 - last))
    def a_load(f, dst):
        vq2.append(("a", f))
        A("buffer_load_dwordx4 %s, v%d, s[16:19], s33 offen sc1" % (v(dst, 4), 16 + (f & 3)))
        if (f & 3) == 3: A("s_add_u32 s33, s33, 4096")
    for f in range(NR): a_load(f, HRR[f])
    wc_base("s_lshl_b32 s32, s7, 1\ns_add_u32 s32, s32, 36")
    A("s_setprio %d" % opt.get("gprio3", 2))
    for f in range(28):
        st, nu = f >> 2, f & 3
        vw2(("a", f))
        for m in range(4):
            c = v(OA[nu] + 4*m, 4)
            A("v_mfma_f32_16x16x32_bf16 %s, %s, %s, %s" % (c, v(WHR[st] + 4*m, 4), v(HRR[f % NR], 4), c if st else "0"))
        if f + NR < 28: a_load(f + NR, HRR[f % NR])
        if f >= 14 and (f & 1) and (f - 15)//2 < 4:
            wc_load(WHR[(f - 15)//2]); vq2.extend([("w", 0)]*4)
            if (f - 15)//2 == 1: A("s_sub_u32 s29, s29, %d" % (10*4096))
    A("s_mul_i32 s33, s25, 44\ns_lshl_b32 s32, s7, 1\ns_add_u32 s33, s33, s32\ns_add_u32 s33, s33, 36\ns_lshl_b32 s33, s33, 12\ns_add_u32 s33, s33, 0x%x" % WS_ACT)
    A("v_and_b32 v20, 3, v1\ns_lshl_b32 s32, s7, 2\nv_add_u32 v20, s32, v20\nv_lshlrev_b32 v20, 7, v20")
    A("s_lshl_b32 s28, s25, 12\ns_add_u32 s28, s28, 0x%x\ns_add_u32 s29, s28, 2048" % FL_F5)
    srd(A, 12, P_OUT, P_OUT + 1, 2048*512*2)
    for nu in range(1, 4):
        A("s_add_u32 s32, s7, %d\ns_and_b32 s32, s32, 3\ns_mul_i32 s32, s32, 12288\ns_add_u32 s32, s32, %d\nv_add_u32 v%d, s32, v%d" % (nu, 4096*(nu - 1), 8 + nu, VL16))
    A("s_mul_i32 s32, s7, 12288\nv_add_u32 v8, s32, v%d" % VL16)
    A("v_and_b32 v5, 15, v1\nv_lshlrev_b32 v5, 10, v5\nv_bfe_u32 v6, v1, 4, 1\nv_lshl_add_u32 v5, v6, 5, v5\nv_lshrrev_b32 v6, 5, v1\nv_lshl_add_u32 v5, v6, 4, v5")
    A("s_lshl_b32 s31, s25, 16\ns_lshl_b32 s32, s7, 14\ns_add_u32 s31, s31, s32\ns_lshl_b32 s32, s26, 7\ns_add_u32 s31, s31, s32")
    if opt.get("tlb2", 1):
        A("s_mov_b64 exec, 1\nbuffer_load_dword v0, v5, s[12:15], s31 offen\ns_mov_b64 exec, -1")
    ST(11)
    def o_load(hf):
        for f in range(8): a_load(f, 192 + 32*hf + 4*f)
    def o_mfma(hf, extra):
        for nu in (1, 2, 3, 0):
            if nu: A("s_waitcnt vmcnt(%d)" % (3 - nu + extra))
            for m in range(4):
                c = v(OA[nu] + 4*m, 4)
                for st in range(2):
                    A("v_mfma_f32_16x16x32_bf16 %s, %s, %s, %s" % (c, v(WHR[2*hf + st] + 4*m, 4), v(192 + 32*hf + 16*st + 4*nu, 4), c))
                if hf == 1 and nu != 1:
                    pn = {2: 1, 3: 2, 0: 3}[nu]
                    A("ds_write_b128 v%d, %s offset:%d" % (8 + pn, v(OA[pn] + 4*m, 4), 1024*m))
    A("s_mov_b32 exec_hi, 0\nv_add_u32 v20, 2048, v20\ns_mov_b32 exec_hi, -1")
    Lq = A.newlabel("PO")
    A("s_mov_b32 s34, 0")
    A(Lq + ":")
    A("buffer_load_dword v21, v20, s[16:19], s28 offen sc0 sc1")
    A("s_waitcnt vmcnt(0)")
    A("v_cmp_ne_u32 vcc, s27, v21")
    A("s_add_u32 s34, s34, 1\ns_cmp_ge_u32 s34, %d\ns_cbranch_scc1 %s_x" % (SPIN_MAX // 8, Lq))
    A("s_cmp_eq_u32 vcc_lo, 0\ns_cbranch_scc1 %s_x" % Lq)
    A("s_sleep %d\ns_branch %s" % (opt.get("sl5", 2), Lq))
    A(Lq + "_x:")
    A("s_mov_b32 s29, vcc_hi")
    o_load(0)
    A("s_sub_u32 s22, s33, %d" % (10*4096))
    A("s_cmp_eq_u32 s29, 0\ns_cselect_b32 s33, s22, 0x7ff00000")
    o_load(1)
    o_mfma(0, 8)
    A("s_cmp_eq_u32 s29, 0\ns_cbranch_scc1 L_OB")
    poll(20, "s28", 21, sleep=1)
    A("s_mov_b32 s33, s22")
    o_load(1)
    A("L_OB:")
    ST(12)
    A("s_barrier")
    o_mfma(1, 0)
    A("s_waitcnt lgkmcnt(0)")
    A("s_barrier")
    for j in range(12):
        A("ds_read_b128 %s, v8 offset:%d" % (v(192 + 4*j, 4), 1024*j))
    for j in range(3):
        A("s_waitcnt lgkmcnt(%d)" % (8 - 4*j))
        for i in range(8):
            A("v_pk_add_f32 %s, %s, %s" % (v(OA[0] + 2*i, 2), v(OA[0] + 2*i, 2), v(192 + 16*j + 2*i, 2)))
    for i in range(8): A("v_cvt_pk_bf16_f32 v%d, v%d, v%d" % (24 + i, OA[0] + 2*i, OA[0] + 2*i + 1))
    A("s_nop 1")
    for mp in range(2):
        T = 24 + 4*mp
        A("v_permlane16_swap_b32 v%d, v%d\nv_permlane16_swap_b32 v%d, v%d" % (T, T + 2, T + 1, T + 3))
        A("buffer_store_dwordx4 %s, v5, s[12:15], s31 offen offset:%d" % (v(T, 4), 64*mp))
    A("L_FIN:")
    ST.end(24)
    A("L_END:")
    A("s_endpgm")

def build(stamps=False, opt=None):
    ref = open("gated_mix__softmax_full_mha__mixer_gmlp__prompt.s.ref").read().split("\n")
    hdr = [l for l in ref if l.startswith(";") and "@launch" not in l]
    out = "\n".join(hdr) + "\n; @launch grid=(256,1,1) block=(512,1,1) lds=163840\n"
    out += '.amdgcn_target "amdgcn-amd-amdhsa--gfx950"\n.text\n.globl %s\n' % KNAME
    A = Asm()
    gen(A, stamps, opt)
    txt = A.text()
    if (opt or {}).get("sc1only", 1): txt = txt.replace("sc0 sc1", "sc1")
    out += txt + '.section .rodata,"a"\n' + kdesc(KNAME, 256, 100, 256)
    return out
if __name__ == "__main__":
    import sys
    opt = dict((a_.split("=")[0], int(a_.split("=")[1])) for a_ in sys.argv[2:] if "=" in a_)
    open(sys.argv[1], "w").write(build("--stamps" in sys.argv, opt))
```

```python
from asmlib2 import *
from p1 import emit_gelu, LOG2E, QSCALE, GC1, GC2

KNAME = "gated_mix__softmax_full_mha__mixer_gmlp__prompt_kernel"
L_CNTG, L_CNTX, L_CNTR, L_CNTKV, L_CNTD = 0, 8, 16, 32, 96
L_X = 16384
L_WQ = 81920
L_G = 131072
P_X, P_WQKV, P_WO, P_WIN, P_WSP, P_BSP, P_WOUT = 36, 38, 40, 44, 46, 48, 50
P_GW, P_OUT, P_DBG, P_WS = 52, 54, 56, 58
SPIN_MAX = 0x20000

def gen(A, stamps=False, opt=None):
    opt = opt or {}
    ST = Stamps(A, stamps)
    VZ, VONE = 2, 3
    VL16 = 4
    def arrive(off, va=VZ):
        A("s_mov_b64 exec, 1")
        A("ds_add_u32 v%d, v%d offset:%d" % (va, VONE, off))
        A("s_mov_b64 exec, -1")
    def zero(base, n):
        for i in range(0, n, 2): A("v_mov_b64 %s, 0" % v(base + i, 2))
    def lds_wait(off, thr, vt, sleep=0, va=VZ):
        L = A.newlabel("LW")
        A("s_mov_b32 s34, 0")
        A(L + ":")
        if sleep: A("s_sleep %d" % sleep)
        A("ds_read_b32 v%d, v%d offset:%d" % (vt, va, off))
        A("s_waitcnt lgkmcnt(0)")
        A("v_readfirstlane_b32 s35, v%d" % vt)
        A("s_add_u32 s34, s34, 1\ns_cmp_ge_u32 s34, %d\ns_cbranch_scc1 %s_x" % (SPIN_MAX, L))
        A("s_cmp_lt_u32 s35, %s\ns_cbranch_scc1 %s" % (thr, L))
        A(L + "_x:")
    def set_flag(soff, vt):
        A("v_mov_b32 v%d, s27" % vt)
        A("s_mov_b64 exec, 1")
        A("buffer_store_dword v%d, v%d, s[16:19], %s offen sc0 sc1" % (vt, VZ, soff))
        A("s_mov_b64 exec, -1")
    def poll(vaddr, soff, vt, sleep=4, second=None):
        L = A.newlabel("PL")
        A("s_mov_b32 s34, 0")
        A(L + ":")
        A("buffer_load_dword v%d, v%d, s[16:19], %s offen sc0 sc1" % (vt, vaddr, soff))
        if second is not None:
            A("buffer_load_dword v%d, v%d, s[16:19], %s offen sc0 sc1" % (vt + 1, second, soff))
        A("s_waitcnt vmcnt(0)")
        A("v_xor_b32 v%d, s27, v%d" % (vt, vt))
        if second is not None:
            A("v_xor_b32 v%d, s27, v%d\nv_or_b32 v%d, v%d, v%d" % (vt + 1, vt + 1, vt, vt, vt + 1))
        A("v_cmp_ne_u32 vcc, 0, v%d" % vt)
        A("s_add_u32 s34, s34, 1\ns_cmp_ge_u32 s34, %d\ns_cbranch_scc1 %s_x" % (SPIN_MAX // 8, L))
        A("s_cbranch_vccz %s_x" % L)
        A("s_sleep %d" % sleep)
        A("s_branch %s" % L)
        A(L + "_x:")
    def nonce_load(vt):
        A("buffer_load_dword v%d, v%d, s[60:63], 0 offen sc0 sc1" % (vt, VZ))
    def nonce_get(vt, cnt=0):
        L = A.newlabel("NG")
        A("s_waitcnt vmcnt(%d)" % cnt)
        A("v_readfirstlane_b32 s27, v%d" % vt)
        A("s_mov_b32 s34, 0")
        A(L + ":")
        A("s_cmp_lg_u32 s27, 0\ns_cbranch_scc1 %s_x" % L)
        A("s_add_u32 s34, s34, 1\ns_cmp_ge_u32 s34, %d\ns_cbranch_scc1 %s_x" % (SPIN_MAX // 8, L))
        nonce_load(vt)
        A("s_waitcnt vmcnt(0)")
        A("v_readfirstlane_b32 s27, v%d" % vt)
        A("s_branch %s" % L)
        A(L + "_x:")

    VD = (5, 6, 7, 8)
    VW = (9, 10, 11, 12)
    VX = (13, 14)
    VXB = 15
    def w_setup(t0):
        A("v_lshrrev_b32 v%d, 3, v1\nv_mul_lo_u32 v%d, v%d, s28" % (t0, t0, t0))
        A("v_bfe_u32 v%d, v1, 4, 1\nv_lshlrev_b32 v%d, 1, v%d\nv_and_b32 v%d, 7, v1\nv_xor_b32 v%d, v%d, v%d" % (t0+1, t0+1, t0+1, t0+2, t0+1, t0+1, t0+2))
        A("v_lshl_add_u32 v%d, v%d, 4, v%d\nv_add_u32 v%d, s29, v%d" % (t0, t0+1, t0, VD[0], t0))
        A("s_lshl_b32 s32, s28, 3\ns_sub_u32 s32, s32, 1024")
        A("v_xor_b32 v%d, 64, v%d\nv_add_u32 v%d, s32, v%d" % (VD[1], VD[0], VD[1], VD[1]))
        A("s_lshl_b32 s32, s32, 1")
        A("v_add_u32 v%d, s32, v%d\nv_add_u32 v%d, s32, v%d" % (VD[2], VD[0], VD[3], VD[1]))
    def wr_setup(t0, sbase):
        A("v_lshrrev_b32 v%d, 4, v1\nv_bfe_u32 v%d, v1, 2, 2\nv_lshl_add_u32 v%d, v%d, 3, v%d\nv_lshlrev_b32 v%d, 7, v%d" % (t0, t0+1, t0, t0, t0+1, t0, t0))
        A("v_bfe_u32 v%d, v1, 3, 2\nv_lshl_add_u32 v%d, v%d, 5, v%d" % (t0+1, t0, t0+1, t0))
        A("v_and_b32 v%d, 3, v1\nv_lshl_add_u32 v%d, v%d, 3, v%d\nv_add_u32 v%d, %s, v%d" % (t0+1, t0, t0+1, t0, VW[0], sbase, t0))
        for m in range(1, 4):
            A("v_xor_b32 v%d, %d, v%d" % (VW[m], 32*m, VW[0]))
    def xr_setup(t0):
        A("v_and_b32 v%d, 15, v1\nv_lshrrev_b32 v%d, 4, v1\nv_bfe_u32 v%d, v1, 1, 3\nv_xor_b32 v%d, v%d, v%d" % (t0, t0+1, t0+2, t0+1, t0+1, t0+2))
        A("v_lshlrev_b32 v%d, 4, v%d\nv_lshl_add_u32 v%d, v%d, 7, v%d" % (t0+1, t0+1, VXB, t0, t0+1))
    def w_dma_list(slot):
        return ["buffer_load_dwordx4 v%d, s[8:11], s31 offen offset:%d lds" % (VD[q], 1024*q) for q in range(4)]
    def soff(slot):
        return 4096*(slot & 1) + (32768 if slot < 2 else 0)
    def w_dma(slot, wrap=True):
        A("s_add_u32 m0, s30, %d" % (soff(slot) - 32768))
        A("s_nop 0")
        for l in w_dma_list(slot): A(l)
        w_adv(wrap)
    def w_adv(wrap=True):
        A("s_add_u32 s31, s31, s29")
        if wrap:
            A("s_cmp_ge_u32 s31, s33\ns_cselect_b32 s31, s3, s31")
    def w_reads(dst, slot):
        return ["ds_read_b64_tr_b16 %s, v%d offset:%d" % (v(dst + 4*m + 2*b, 2), VW[m], soff(slot) + 512*b) for m in range(4) for b in range(2)]

    ACC = 128
    SLOT = 24576
    A(".p2align 8\n.type %s,@function\n%s:" % (KNAME, KNAME))
    A("s_cmp_ge_u32 s2, 256\ns_cbranch_scc1 L_END")
    ST.begin()
    A("s_load_dwordx16 s[36:51], s[0:1], 0")
    A("s_load_dwordx8 s[52:59], s[0:1], 64")
    A("v_lshrrev_b32 v5, 6, v0")
    A("v_and_b32 v1, 63, v0")
    A("v_readfirstlane_b32 s24, v5")
    def common():
        A("s_and_b32 s3, s2, 7\ns_lshr_b32 s4, s2, 3")
        A("s_lshr_b32 s25, s3, 1\ns_lshl_b32 s25, s25, 3\ns_lshr_b32 s6, s4, 2\ns_add_u32 s25, s25, s6")
        A("s_and_b32 s26, s3, 1\ns_lshl_b32 s26, s26, 2\ns_and_b32 s5, s4, 3\ns_add_u32 s26, s26, s5")
        A("s_lshl_b32 s5, s5, 1\ns_add_u32 s6, s6, s5\ns_and_b32 s6, s6, 7")
        A("s_mov_b32 s4, s26")
        A("v_mov_b32 v%d, 0\nv_mov_b32 v%d, 1\nv_lshlrev_b32 v%d, 4, v1" % (VZ, VONE, VL16))
        A("s_mov_b32 s27, 0")
    A("s_cmp_ge_u32 s24, 4\ns_cbranch_scc1 L_GSTART")
    A("s_cmp_lg_u32 s24, 3\ns_cbranch_scc1 L_NOPF")
    A("s_getpc_b64 s[22:23]")
    A("L_PC:")
    A("s_and_b32 s32, s2, 0xf8\nv_and_b32 v20, 7, v1\nv_add_u32 v20, s32, v20\nv_lshlrev_b32 v20, 7, v20")
    A("v_min_u32 v20, L_END-L_PC, v20")
    A("global_load_dword v0, v20, s[22:23]")
    A("L_NOPF:")
    common()
    A("v_lshrrev_b32 v20, 3, v1\nv_and_b32 v21, 7, v1\nv_lshrrev_b32 v22, 4, v1")
    LX, LZ, LQ = (176, 177), (178, 179), (180, 181)
    A("s_setprio 3")
    A("v_xor_b32 v23, v21, v22")
    A("s_lshl_b32 s28, s25, 6\ns_lshl_b32 s29, s24, 4\ns_add_u32 s28, s28, s29")
    A("v_add_u32 v24, s28, v20\nv_lshlrev_b32 v24, 10, v24\nv_lshl_add_u32 v%d, v23, 4, v24" % LX[0])
    A("v_xor_b32 v%d, 64, v%d\nv_add_u32 v%d, %d, v%d" % (LX[1], LX[0], LX[1], 8192 - 1024, LX[1]))
    A("v_add_u32 v20, s29, v20\nv_and_b32 v22, 1, v22\nv_lshlrev_b32 v22, 1, v22\nv_xor_b32 v21, v21, v22\nv_lshlrev_b32 v21, 4, v21")
    A("v_mul_u32_u24 v24, 3584, v20\ns_lshl_b32 s28, s4, 8\ns_add_u32 s28, s28, 1792\nv_add3_u32 v%d, v24, v21, s28" % LZ[0])
    A("v_xor_b32 v%d, 64, v%d\nv_add_u32 v%d, %d, v%d" % (LZ[1], LZ[0], LZ[1], 8*3584 - 1024, LZ[1]))
    A("s_lshl_b32 s22, s24, 11\ns_add_u32 s23, s22, %d\ns_add_u32 s22, s22, %d" % (L_WQ, L_X))
    A("s_mov_b32 s20, s6\ns_mov_b32 s21, s6")
    A("s_mov_b32 s18, 0x%x\ns_mov_b32 s19, 0x20000\ns_mov_b32 s11, 0x20000" % (2048*512*2))
    A("s_mov_b32 s14, 0x%x\ns_mov_b32 s15, 0x20000\ns_mov_b32 s7, s6" % (512*1536*2))
    A("v_mul_u32_u24 v24, 3072, v20\ns_lshl_b32 s28, s26, 7\nv_add3_u32 v%d, v24, v21, s28" % LQ[0])
    A("v_xor_b32 v%d, 64, v%d\nv_add_u32 v%d, %d, v%d" % (LQ[1], LQ[0], LQ[1], 8*3072 - 1024, LQ[1]))
    A("s_cmp_ge_u32 s4, 7\ns_cselect_b32 s10, 0, 0x%x" % (512*1792*2))
    A("s_waitcnt lgkmcnt(0)")
    A("s_mov_b64 s[16:17], s[%d:%d]\ns_mov_b64 s[8:9], s[%d:%d]\ns_mov_b64 s[12:13], s[%d:%d]" % (P_X, P_X + 1, P_WIN, P_WIN + 1, P_WQKV, P_WQKV + 1))
    vq = []
    def ld_x(i):
        vq.extend([("x", i)]*2)
        A("s_lshl_b32 s31, s20, 13\ns_add_u32 m0, s31, s22\ns_lshl_b32 s31, s20, 7")
        A("buffer_load_dwordx4 v%d, s[16:19], s31 offen lds" % LX[0])
        A("buffer_load_dwordx4 v%d, s[16:19], s31 offen offset:1024 lds" % LX[1])
        A("s_add_u32 s20, s20, 1\ns_and_b32 s20, s20, 7")
    def ld_z(i):
        vq.extend([("w", i)]*4)
        A("s_mul_i32 s31, s21, %d" % (64*3584))
        for d in range(2):
            A("s_add_u32 m0, s23, %d" % (SLOT + 16384*((i + 1) % 3) + (8192 - 128)*d))
            A("s_add_u32 s21, s21, 1" if d == 0 else "s_and_b32 s21, s21, 7")
            A("buffer_load_dwordx4 v%d, s[8:11], s31 offen offset:%d lds" % (LZ[0], 128*d))
            A("buffer_load_dwordx4 v%d, s[8:11], s31 offen offset:%d lds" % (LZ[1], 128*d + 1024))
    def q_dma_groups(sbase, imm):
        g = []
        for mat in range(3):
            pre = "s_mul_i32 s31, s7, %d\n" % (64*3072) if mat == 0 else ""
            g.append(pre + "s_add_u32 m0, %s, %d\n" % (sbase, imm + 7168*mat) + ("s_add_u32 s7, s7, 1", "s_and_b32 s7, s7, 7", "s_nop 0")[mat])
            g.append("buffer_load_dwordx4 v%d, s[12:15], s31 offen offset:%d lds" % (LQ[0], 1024*mat))
            g.append("buffer_load_dwordx4 v%d, s[12:15], s31 offen offset:%d lds" % (LQ[1], 1024*mat + 1024))
        return g
    def ld_q(i):
        vq.extend([("w", i)]*6)
        for l in q_dma_groups("s23", SLOT*((i + 1) % 3)): A(l)
    def vwait(*tags):
        last = max(i for i, x in enumerate(vq) if x in tags)
        A("s_waitcnt vmcnt(%d)" % (len(vq) - 1 - last))
    Q8 = opt.get("q8", 5)
    ld_x(0); ld_z(0); ld_x(1)
    if Q8 == -2: ld_q(8)
    ld_z(1)
    if Q8 == -1: ld_q(8)
    srd(A, 60, P_DBG, P_DBG + 1, 256)
    QA = 128
    XQ, WQ = (16, 72), (48, 104)
    def asetup(part):
        if part == 0:
            A("s_mov_b32 s30, %d" % L_WQ)
            wr_setup(16, "s30"); xr_setup(16)
            A("s_lshl_b32 s32, s24, 5\nv_xor_b32 v%d, s32, v%d" % (VW[1], VW[0]))
        if part == 1: zero(QA, 48)
        if part == 2: zero(XQ[1], 56)
        if part == 3:
            A("v_and_b32 v16, 15, v1\nv_lshlrev_b32 v16, 4, v16\nv_bfe_u32 v18, v1, 4, 1\nv_lshl_add_u32 v16, v18, 21, v16")
            A("v_lshrrev_b32 v19, 5, v1\nv_lshl_add_u32 v182, v19, 9, v16")
            A("v_and_b32 v17, 3, v1\nv_bfe_u32 v16, v1, 2, 1\nv_lshl_or_b32 v17, v16, 3, v17\nv_bfe_u32 v16, v1, 3, 1\nv_lshl_or_b32 v17, v16, 2, v17")
            A("v_lshlrev_b32 v17, 4, v17\nv_lshl_add_u32 v17, v18, 9, v17\nv_lshl_add_u32 v183, v19, 8, v17")
    XS = {0: {0: [2], 1: [3], 2: [4], 3: [5], 4: [6], 5: [7]}, 1: {0: [2, 3], 1: [4], 2: [5], 3: [6], 4: [7]}}[opt.get("xs", 0)]
    def tlb_touch():
        A("s_lshl_b32 s32, s24, 21")
        A("s_load_dword s97, s[%d:%d], s32" % (P_WSP, P_WSP + 1))
        for k in range(3):
            A("s_load_dword s97, s[%d:%d], s32" % (P_WS, P_WS + 1))
            A("s_add_u32 s32, s32, 0x800000")
        for p in (P_OUT, P_BSP):
            A("s_load_dword s97, s[%d:%d], 0" % (p, p + 1))
    if opt.get("tlb", 2) == 1: tlb_touch()
    for i in range(8):
        vwait(("x", i), ("w", i))
        A("s_barrier")
        if i == 0: ST(1)
        for k in XS.get(i, [])[:1]: ld_x(k)
        if i + 2 < 8: ld_z(i + 2)
        for k in XS.get(i, [])[1:]: ld_x(k)
        if i == Q8: ld_q(8)
        if i == 7: ld_q(9)
        if i == 3 and opt.get("tlb", 2) == 2: tlb_touch()
        if 1 <= i <= 4: asetup(i - 1)
        if i == 6: srd(A, 16, P_WS, P_WS + 1, WS_USED)
    A("s_mov_b32 s33, 0\ns_mov_b32 s29, %d\ns_mov_b32 s5, 0" % (2*SLOT))
    def q_mfma(b, k):
        mat, n, p = k >> 3, (k >> 1) & 3, k & 1
        c = v(QA + 16*mat + 4*n, 4)
        xf, wf = v(XQ[b] + 8*n + 4*p, 4), v(WQ[b] + 8*mat + 4*p, 4)
        A("v_mfma_f32_16x16x32_bf16 %s, %s, %s, %s" % ((c, xf, wf, c) if mat == 2 else (c, wf, xf, c)))
    def q_stage(b, dma, wait):
        A("s_lshl_b32 s32, s6, 13\ns_add_u32 s32, s32, %d" % L_X)
        A("v_add_u32 v%d, s32, v%d\nv_xor_b32 v%d, 64, v%d\nv_add_u32 v%d, s33, v%d" % (VX[0], VXB, VX[1], VX[0], VW[0], VW[1]))
        A("s_add_u32 s6, s6, 1\ns_and_b32 s6, s6, 7")
        A("s_add_u32 s28, s29, s23\ns_mov_b32 s29, s33")
        A("s_add_u32 s33, s33, %d\ns_cmp_eq_u32 s33, %d\ns_cselect_b32 s33, 0, s33" % (SLOT, 3*SLOT))
        A("s_waitcnt vmcnt(%d)" % wait)
        A("s_barrier")
        rd = ["ds_read_b64_tr_b16 %s, v%d offset:%d" % (v(WQ[b] + 8*mat + 4*p + 2*h, 2), VW[0], 8192*mat + 4096*p + 512*h) for mat in range(3) for p in range(2) for h in range(2)]
        rd += ["ds_read_b128 %s, v%d offset:%d" % (v(XQ[b] + 8*n + 4*p, 4), VX[p], 2048*n) for n in range(4) for p in range(2)]
        dm = q_dma_groups("s28", 0) if dma else []
        for k in range(24):
            if k < 9 and dm: A(dm[k])
            if k < 20:
                if k == 14: A("s_waitcnt lgkmcnt(8)")
                A(".p2align 3")
                A(rd[k])
            q_mfma(b ^ 1, k)
        A("s_waitcnt lgkmcnt(0)")
    A("L_QLOOP:")
    q_stage(0, True, 6); q_stage(1, True, 6)
    A("s_add_u32 s5, s5, 1\ns_cmp_lt_u32 s5, 3\ns_cbranch_scc1 L_QLOOP")
    q_stage(0, False, 6); q_stage(1, False, 0)
    nonce_load(5)
    A("s_barrier")
    for k in range(24): q_mfma(1, k)
    ST(2)
    A("s_lshl_b32 s7, s26, 2\ns_add_u32 s7, s7, s24")
    A("s_lshl_b32 s31, s7, 16\ns_lshl_b32 s32, s25, 11\ns_add_u32 s31, s31, s32\ns_add_u32 s32, s31, 0x%x" % WS_V)
    A("s_mov_b32 s20, %s\ns_mov_b32 s21, s20" % f32(QSCALE))
    for n in range(4):
        T = 152 + 4*n if False else 184 + 4*n
        c, d = QA + 4*n, QA + 16 + 4*n
        A("v_pk_mul_f32 %s, %s, s[20:21]\nv_pk_mul_f32 %s, %s, s[20:21]" % (v(c, 2), v(c, 2), v(c + 2, 2), v(c + 2, 2)))
        A("v_cvt_pk_bf16_f32 v%d, v%d, v%d\nv_cvt_pk_bf16_f32 v%d, v%d, v%d" % (T + 2, d, d + 1, T + 3, d + 2, d + 3))
        A("v_cvt_pk_bf16_f32 v%d, v%d, v%d\nv_cvt_pk_bf16_f32 v%d, v%d, v%d" % (T, c, c + 1, T + 1, c + 2, c + 3))
        A("s_nop 1")
        A("v_permlane16_swap_b32 v%d, v%d\nv_permlane16_swap_b32 v%d, v%d" % (T, T + 2, T + 1, T + 3))
        A("buffer_store_dwordx4 %s, v182, s[16:19], s31 offen offset:%d sc1" % (v(T, 4), 1024*(n >> 1) + 256*(n & 1)))
    for mp in range(2):
        T = 200 + 4*mp
        c = QA + 32 + 8*mp
        for i in range(4): A("v_cvt_pk_bf16_f32 v%d, v%d, v%d" % (T + i, c + 2*i, c + 2*i + 1))
        A("s_nop 1")
        A("v_permlane16_swap_b32 v%d, v%d\nv_permlane16_swap_b32 v%d, v%d" % (T, T + 2, T + 1, T + 3))
        A("buffer_store_dwordx4 %s, v183, s[16:19], s32 offen offset:%d sc1" % (v(T, 4), 1024*mp))
    A("s_lshl_b32 s21, s7, 7\ns_lshl_b32 s32, s25, 2\ns_add_u32 s21, s21, s32\ns_add_u32 s21, s21, 0x%x" % FL_F1)
    S = (16, 32); O = (48, 64); NM = (80, 96)
    Q = (112, 116); KF = (120, 124); K0 = 128; VF = (132, 140)
    IDX, KA, VA, VC, VAB, VCW = 148, 149, 150, 151, 12, 13
    ALL4 = 0x01010101
    A("s_and_b32 s25, s3, 1\ns_xor_b32 s25, s25, 1\ns_lshl_b32 s25, s25, 2\ns_lshr_b32 s5, s3, 1\ns_add_u32 s25, s25, s5")
    A("s_lshl_b32 s25, s25, 2\ns_lshr_b32 s5, s2, 6\ns_add_u32 s25, s25, s5\ns_bfe_u32 s26, s2, 0x30003")
    A("s_lshl_b32 s7, s26, 2\ns_add_u32 s7, s7, s24")
    A("v_mov_b32 v%d, 0xdddddddd" % IDX)
    zero(VF[0], 16)
    A("s_mov_b32 exec_lo, 0x00110000\ns_mov_b32 exec_hi, 0x00110000")
    A("v_mov_b32 v6, 0x3f803f80\nv_mov_b32 v7, 0x3f803f80")
    for i in range(0, 16, 2): A("v_mov_b64 %s, v[6:7]" % v(VF[0] + i, 2))
    A("s_mov_b64 exec, -1")
    A("s_mov_b32 s22, 0x0000ffff\ns_mov_b32 s23, 0x0000ffff")
    A("v_and_b32 v8, 15, v1\nv_lshlrev_b32 v8, 4, v8\nv_lshrrev_b32 v9, 5, v1\nv_lshl_add_u32 v8, v9, 8, v8")
    A("v_add_u32 v%d, 0x2000, v8" % VAB)
    def att_reset():
        zero(O[0], 32)
        A("v_mov_b32 v%d, v%d\nv_mov_b32 v%d, v%d\nv_mov_b32 v%d, 0\nv_mov_b32 v%d, s24" % (KA, VL16, VA, VAB, VC, VCW))
    att_reset()
    A("s_lshl_b32 s28, s25, 16")
    A("s_lshl_b32 s29, s7, 11\ns_add_u32 s29, s29, s28")
    A("s_add_u32 s28, s28, 0x%x" % WS_K)
    A("s_lshl_b32 s33, s24, 11")
    A("s_add_u32 s30, s28, s33\ns_add_u32 s31, s30, 0x%x" % (WS_V - WS_K))
    A("s_mov_b32 s20, 0\ns_mov_b32 s6, 1")
    A("v_and_b32 v18, 31, v1\nv_lshlrev_b32 v18, 2, v18")
    nonce_get(5, 6)
    A("s_waitcnt vmcnt(0)")
    set_flag("s21", 17)
    ST(3)
    A("s_lshl_b32 s21, s25, 7\ns_add_u32 s21, s21, 0x%x" % FL_F1)
    poll(18, "s21", 20, sleep=opt.get("sl1", 3))
    ST(4)
    A("buffer_load_dwordx4 %s, v%d, s[16:19], s28 offen sc1" % (v(K0, 4), VL16))
    A("buffer_load_dwordx4 %s, v%d, s[16:19], s29 offen sc1" % (v(Q[0], 4), VL16))
    A("buffer_load_dwordx4 %s, v%d, s[16:19], s29 offen offset:1024 sc1" % (v(Q[1], 4), VL16))
    def kv_dma(first=False):
        if first:
            A("s_cmp_eq_u32 s24, 0\ns_cselect_b32 s32, 1024, 0\ns_add_u32 m0, s33, s32\ns_add_u32 s32, s32, s30")
            A("buffer_load_dwordx4 v%d, s[16:19], s32 offen sc1 lds" % VL16)
            A("s_mov_b32 m0, s33\ns_nop 0")
        else:
            A("s_mov_b32 m0, s33\ns_add_u32 s6, s6, 1")
            A("buffer_load_dwordx4 v%d, s[16:19], s30 offen sc1 lds" % VL16)
        A("buffer_load_dwordx4 v%d, s[16:19], s30 offen offset:1024 sc1 lds" % VL16)
        A("s_add_u32 m0, s33, 8192\ns_add_u32 s30, s30, 8192")
        A("buffer_load_dwordx4 v%d, s[16:19], s31 offen sc1 lds" % VL16)
        A("buffer_load_dwordx4 v%d, s[16:19], s31 offen offset:1024 sc1 lds" % VL16)
        A("s_add_u32 s31, s31, 8192\ns_add_u32 s33, s33, 16384")
    kv_dma(True)
    A("s_lshl_b32 s28, s7, 7\ns_add_u32 s28, s28, 0x%x" % FL_F0)
    A("s_waitcnt vmcnt(4)")
    for sd in range(2):
        A("v_mfma_f32_32x32x16_bf16 %s, %s, %s, 0" % (v(S[sd], 16), v(K0, 4), v(Q[sd], 4)))
    A("s_waitcnt vmcnt(0)")
    A("ds_write_b8 v%d, v%d offset:%d" % (VCW, VONE, L_CNTKV))
    A("s_nop 9")
    for sd in range(2):
        A("v_max3_f32 v%d, v%d, v%d, v%d" % (6 + 2*sd, S[sd], S[sd] + 1, S[sd] + 2))
        for i in range(3, 15, 2):
            A("v_max3_f32 v%d, v%d, v%d, v%d" % (6 + 2*sd, 6 + 2*sd, S[sd] + i, S[sd] + i + 1))
        A("v_max_f32 v%d, v%d, v%d" % (6 + 2*sd, 6 + 2*sd, S[sd] + 15))
    A("L_SETMAX:")
    A("v_mov_b32 v7, v6\nv_mov_b32 v9, v8\ns_nop 1")
    A("v_permlane32_swap_b32 v6, v7\nv_permlane32_swap_b32 v8, v9\ns_nop 1")
    A("v_max_f32 v6, v6, v7\nv_max_f32 v8, v8, v9\nv_sub_f32 v6, 0, v6\nv_sub_f32 v8, 0, v8\nv_mov_b32 v7, v6\nv_mov_b32 v9, v8")
    for i in range(0, 16, 2): A("v_mov_b64 %s, v[6:7]" % v(NM[0] + i, 2))
    A("v_mov_b64 %s, %s\nv_mov_b64 %s, %s" % (v(KF[0], 2), v(K0, 2), v(KF[0] + 2, 2), v(K0 + 2, 2)))
    A("v_mfma_f32_32x32x16_bf16 %s, %s, %s, %s" % (v(S[0], 16), v(K0, 4), v(Q[0], 4), v(NM[0], 16)))
    for i in range(0, 16, 2): A("v_mov_b64 %s, v[8:9]" % v(NM[1] + i, 2))
    zero(S[1] + 8, 8)
    lds_wait(L_CNTKV, ALL4, 5)
    A("s_mov_b64 exec, s[22:23]")
    A("ds_read_b128 %s, v%d" % (v(VF[0], 4), VA))
    A("ds_read_b128 %s, v%d offset:512" % (v(VF[0] + 4, 4), VA))
    A("s_mov_b64 exec, -1")
    A("ds_read_b128 %s, v%d offset:1024" % (v(KF[1], 4), KA))
    ST(5)
    A("s_waitcnt lgkmcnt(0)")
    A("s_setprio 1")
    A("s_mov_b32 s5, 0")
    A(".p2align 3")
    A("L_ALOOP:")
    def ex(sd, a_, b_):
        for i in range(a_, b_): A("v_exp_f32 v%d, v%d" % (S[sd] + i, S[sd] + i))
    def sm(sd, vf, half):
        A("v_smfmac_f32_32x32x32_bf16 %s, %s, %s, v%d" % (v(O[sd], 16), v(vf + 4*half, 4), v(S[sd] + 8*half, 8), IDX))
    toff = lambda t: t*1024 if t < 8 else 16384 + (t - 8)*1024
    for t in range(8):
        kc, kn = KF[t & 1], KF[(t + 1) & 1]
        vc, vn = VF[t & 1], VF[(t + 1) & 1]
        ex(0, 0, 2)
        sm(1, vn, 1)
        A("s_add_u32 s5, s5, 1" if t == 7 else "s_nop 0")
        A("s_mov_b64 exec, s[22:23]")
        A("ds_read_b128 %s, v%d offset:%d" % (v(vn, 4), VA, toff(t + 1)))
        A("ds_read_b128 %s, v%d offset:%d" % (v(vn + 4, 4), VA, toff(t + 1) + 512))
        A("s_mov_b64 exec, -1")
        ex(0, 2, 5)
        A("v_mfma_f32_32x32x16_bf16 %s, %s, %s, %s" % (v(S[1], 16), v(kc, 4), v(Q[1], 4), v(NM[1], 16)))
        ex(0, 5, 11)
        sm(0, vc, 0)
        if t == 0:
            A("s_cmp_ge_u32 s6, 8\ns_cbranch_scc1 L_NODMA")
            A("s_cmp_eq_u32 s6, 1\ns_cbranch_scc1 L_FIRST")
            A("L_XFREE:")
            kv_dma()
            A(".p2align 3")
            A("L_NODMA:")
            A("v_exp_f32_e64 v%d, v%d" % (S[0] + 11, S[0] + 11))
            ex(0, 12, 16)
        elif t == 4:
            A("s_waitcnt vmcnt(0)")
            A("s_cmp_eq_u32 s6, 3")
            A("ds_write_b8 v%d, v%d offset:%d" % (VCW, VONE, L_CNTKV + 8))
            A("s_cbranch_scc1 L_FIRST2")
            A("L_NOG:")
            ex(0, 11, 16)
        elif t == 6:
            A("ds_read_b32 v5, v%d offset:%d" % (VC, L_CNTKV + 4))
            A("v_exp_f32_e64 v%d, v%d" % (S[0] + 11, S[0] + 11))
            ex(0, 12, 16)
        else:
            A("s_nop 0")
            ex(0, 11, 16)
        ex(1, 0, 2)
        sm(0, vc, 1)
        A("s_waitcnt lgkmcnt(%d)" % (3 if t in (4, 6) else 2))
        ex(1, 2, 5)
        A("v_mfma_f32_32x32x16_bf16 %s, %s, %s, %s" % (v(S[0], 16), v(kn, 4), v(Q[0], 4), v(NM[0], 16)))
        ex(1, 5, 11)
        sm(1, vc, 0)
        A("s_waitcnt lgkmcnt(0)")
        if t == 6:
            A("v_readfirstlane_b32 s35, v5")
            A("v_add_u32 v%d, 4, v%d" % (VCW, VCW))
            A("s_cmp_lg_u32 s35, 0x%x\ns_cbranch_scc1 L_KVWAIT" % ALL4)
            A("L_KVOK:")
            A("ds_read_b128 %s, v%d offset:%d" % (v(kc, 4), KA, toff(t + 2)))
            A("v_add_u32 v%d, 4, v%d" % (VC, VC))
        else:
            A("s_cmp_lt_u32 s5, 8" if t == 7 else "s_nop 0")
            A("ds_read_b128 %s, v%d offset:%d" % (v(kc, 4), KA, toff(t + 2)))
        if t == 7:
            A("v_add_u32 v%d, 0x4000, v%d\nv_add_u32 v%d, 0x4000, v%d" % (KA, KA, VA, VA))
        if t >= 6:
            ex(1, 11, 16)
        else:
            A("v_exp_f32_e64 v%d, v%d" % (S[1] + 11, S[1] + 11))
            ex(1, 12, 16)
    A("s_cbranch_scc1 L_ALOOP")
    A("s_nop 0")
    sm(1, VF[1], 1)
    A("s_setprio 3")
    if opt.get("hdefer", 0) >= 0:
        A("s_lshl_b32 s32, s24, 2\nv_mov_b32 v5, s32\nds_write_b32 v5, v%d offset:%d" % (VONE, L_CNTD))
    ST(6)
    A(".p2align 3")
    A("v_add_f32 v5, abs(v%d), abs(v%d)" % (O[0] + 8, O[0]))
    for i in range(1, 8): A("v_add_f32 v5, v5, abs(v%d)" % (O[0] + i))
    def o_pack(sd):
        A("v_rcp_f32 v%d, v%d" % (8, O[sd] + 8))
        A("s_nop 0")
        A("v_mul_f32 v8, v8, v%d" % (10 + sd))
        A("s_nop 0")
        for i in range(4): A("v_pk_mul_f32 %s, %s, v[8:9] op_sel_hi:[1,0]" % (v(160 + 2*i, 2), v(O[sd] + 2*i, 2)))
        for i in range(4): A("v_cvt_pk_bf16_f32 v%d, v%d, v%d" % (152 + 4*sd + i, 160 + 2*i, 161 + 2*i))
        for i in range(4): A("v_min_u32 v%d, -2, v%d" % (152 + 4*sd + i, 152 + 4*sd + i))
    o_pack(0)
    for i in range(9): A("v_add_f32 v5, v5, abs(v%d)" % (O[1] + i))
    A("v_mov_b32 v6, 0x207")
    A("v_cmp_class_f32 vcc, v5, v6")
    o_pack(1)
    A("s_cmp_lg_u32 s20, 0\ns_cbranch_scc1 L_AFIN")
    A("s_cbranch_vccnz L_REDO")
    A("L_AFIN:")
    for sd in range(2):
        A("buffer_store_dwordx4 %s, v14, s[16:19], s21 offen offset:%d sc1" % (v(152 + 4*sd, 4), 2048*sd))
    ST(7)
    A("s_barrier\ns_barrier")
    A("s_branch L_FIN")
    A("L_FIRST:")
    lds_wait(L_CNTG, 4, 5)
    kv_dma()
    A("buffer_load_dword v10, v%d, s[16:19], s28 offen sc1" % VZ)
    A("v_and_b32 v14, 15, v1\nv_lshlrev_b32 v14, 4, v14\nv_bfe_u32 v8, v1, 4, 1\nv_lshl_add_u32 v14, v8, 10, v14\nv_lshrrev_b32 v8, 5, v1\nv_lshl_add_u32 v14, v8, 8, v14")
    A("s_mul_i32 s21, s7, 44\ns_lshr_b32 s32, s25, 1\ns_add_u32 s21, s21, s32\ns_add_u32 s21, s21, 28\ns_lshl_b32 s21, s21, 12")
    A("s_and_b32 s32, s25, 1\ns_lshl_b32 s32, s32, 9\ns_add_u32 s21, s21, s32\ns_add_u32 s21, s21, 0x%x" % WS_ACT)
    A("v_mov_b64 v[152:153], -1\nv_mov_b64 v[154:155], -1")
    for sd in range(2):
        A("buffer_store_dwordx4 v[152:155], v14, s[16:19], s21 offen offset:%d sc1" % (2048*sd))
    A("s_branch L_XFREE")
    A("L_FIRST2:")
    A("ds_write_b8 v%d, v%d offset:%d" % (VCW, VONE, L_CNTKV + 4))
    A("s_lshl_b32 s29, s7, 12\ns_lshl_b32 s32, s25, 7\ns_add_u32 s29, s29, s32\ns_add_u32 s29, s29, 0x%x" % FL_F5)
    set_flag("s29", 5)
    A("v_cmp_ne_u32 vcc, s27, v10")
    A("s_nop 4\ns_cbranch_vccz L_GOK")
    poll(VZ, "s28", 10)
    A("L_GOK:")
    A("v_and_b32 v5, 31, v1\nv_lshlrev_b32 v5, 2, v5\ns_lshl_b32 s29, s7, 8\ns_add_u32 s29, s29, 0x%x" % WS_G)
    A("buffer_load_dword v10, v5, s[16:19], s29 offen sc1")
    A("buffer_load_dword v11, v5, s[16:19], s29 offen offset:128 sc1")
    A("s_waitcnt lgkmcnt(0)")
    A("s_branch L_NOG")
    A("L_KVWAIT:")
    lds_wait(L_CNTKV + 4, ALL4, 5, va=VC)
    A("s_branch L_KVOK")
    A("L_REDO:")
    A("s_waitcnt lgkmcnt(0)")
    A("s_mov_b32 s20, 1")
    lds_wait(L_CNTX, 4, 5, sleep=8)
    A("s_lshl_b32 s30, s25, 16\ns_add_u32 s30, s30, 0x%x\ns_mov_b32 s5, 8" % WS_K)
    A("L_RELOAD:")
    A("s_lshr_b32 s32, s5, 3\ns_lshl_b32 s32, s32, 14\ns_and_b32 s35, s5, 7\ns_lshl_b32 s35, s35, 10\ns_add_u32 s32, s32, s35")
    A("s_lshl_b32 s35, s5, 10\ns_add_u32 s35, s35, s30\ns_mov_b32 m0, s32\ns_nop 0")
    A("buffer_load_dwordx4 v%d, s[16:19], s35 offen sc1 lds" % VL16)
    A("s_add_u32 m0, s32, 8192\ns_add_u32 s35, s35, 0x%x" % (WS_V - WS_K))
    A("buffer_load_dwordx4 v%d, s[16:19], s35 offen sc1 lds" % VL16)
    A("s_waitcnt vmcnt(16)")
    A("s_add_u32 s5, s5, 1\ns_cmp_lt_u32 s5, 40\ns_cbranch_scc1 L_RELOAD")
    A("s_waitcnt vmcnt(0)")
    pass
    A("s_mov_b64 exec, s[22:23]")
    zero(VF[1] + 4, 4)
    A("s_mov_b64 exec, -1")
    A("v_mov_b32 v6, 0xff800000\nv_mov_b32 v8, 0xff800000")
    A("v_mov_b64 %s, %s\nv_mov_b64 %s, %s" % (v(KF[0], 2), v(K0, 2), v(KF[0] + 2, 2), v(K0 + 2, 2)))
    A("s_mov_b32 s5, 1\ns_nop 1")
    A("L_MAXL:")
    for sd in range(2):
        A("v_mfma_f32_32x32x16_bf16 %s, %s, %s, 0" % (v(S[sd], 16), v(KF[0], 4), v(Q[sd], 4)))
    A("s_lshr_b32 s32, s5, 3\ns_lshl_b32 s32, s32, 14\ns_and_b32 s35, s5, 7\ns_lshl_b32 s35, s35, 10\ns_add_u32 s32, s32, s35")
    A("v_add_u32 v%d, s32, v%d" % (KA, VL16))
    A("ds_read_b128 %s, v%d" % (v(KF[0], 4), KA))
    A("s_nop 15")
    for sd in range(2):
        for i in range(0, 16, 2):
            A("v_max3_f32 v%d, v%d, v%d, v%d" % (6 + 2*sd, 6 + 2*sd, S[sd] + i, S[sd] + i + 1))
    A("s_waitcnt lgkmcnt(0)")
    A("s_add_u32 s5, s5, 1\ns_cmp_lt_u32 s5, 65\ns_cbranch_scc1 L_MAXL")
    att_reset()
    A("s_branch L_SETMAX")

    A("L_GSTART:")
    A("s_setprio 2")
    common()
    A("s_sub_u32 s7, s24, 4")
    A("s_waitcnt lgkmcnt(0)")
    srd(A, 8, P_WIN, P_WIN + 1, 512*1792*2)
    srd(A, 16, P_WS, P_WS + 1, WS_USED)
    srd(A, 60, P_DBG, P_DBG + 1, 256)
    A("s_cmp_lg_u32 s7, 3\ns_cbranch_scc1 L_NOLEAD")
    zero(16, 4)
    A("ds_write_b128 v%d, v[16:19]" % VL16)
    A("s_cmp_lg_u32 s2, 0\ns_cbranch_scc1 L_NOLEAD")
    A("s_mov_b32 s31, 0x%x" % FL_EPOCH)
    A("buffer_load_dword v16, v%d, s[16:19], s31 offen sc0 sc1" % VZ)
    A("s_mov_b32 s32, 0x9e3779b1")
    A("s_waitcnt vmcnt(0)")
    A("v_mul_lo_u32 v16, v16, s32")
    A("v_add_u32 v16, 0x7f4a7c15, v16")
    A("v_max_u32 v16, 1, v16")
    A("s_mov_b64 exec, 1")
    A("buffer_store_dword v16, v%d, s[60:63], 0 offen sc0 sc1" % VZ)
    A("buffer_store_dword v16, v%d, s[16:19], s31 offen sc0 sc1" % VZ)
    A("s_mov_b64 exec, -1")
    A("L_NOLEAD:")
    A("s_lshr_b32 s22, s7, 1\ns_and_b32 s23, s7, 1")
    A("s_lshl_b32 s30, s7, 13\ns_add_u32 s30, s30, %d" % L_G)
    xr_setup(16)
    A("s_cmp_ge_u32 s4, 7\ns_cbranch_scc1 L_G7")
    Z2 = 192
    XZ, WZ = (16, 64), (32, 80)
    A("s_lshl_b32 s32, s22, 13\ns_add_u32 s32, s32, %d" % (L_WQ + SLOT))
    wr_setup(16, "s32")
    A("v_mov_b32 v5, v%d" % VW[0])
    A("s_lshl_b32 s20, s23, 12\ns_add_u32 s20, s20, %d" % L_X)
    zero(Z2, 32); zero(XZ[1], 48)
    A("s_mov_b32 s33, 16384\ns_mov_b32 s5, 0\ns_mov_b32 s21, s6")
    def z_mfma(b, k):
        m, nn, p = k >> 2, (k >> 1) & 1, k & 1
        c = v(Z2 + 8*m + 4*nn, 4)
        A("v_mfma_f32_16x16x32_bf16 %s, %s, %s, %s" % (c, v(WZ[b] + 8*m + 4*p, 4), v(XZ[b] + 8*nn + 4*p, 4), c))
    A("s_waitcnt lgkmcnt(0)")
    A("L_ZLOOP:")
    for b in range(2):
        A("s_lshl_b32 s32, s21, 13\ns_add_u32 s32, s32, s20")
        A("v_add_u32 v%d, s32, v%d\nv_xor_b32 v%d, 64, v%d\nv_add_u32 v%d, s33, v5" % (VX[0], VXB, VX[1], VX[0], VW[0]))
        for m in range(1, 4): A("v_xor_b32 v%d, %d, v%d" % (VW[m], 32*m, VW[0]))
        A("s_add_u32 s21, s21, 1\ns_and_b32 s21, s21, 7")
        A("s_add_u32 s33, s33, %d\ns_cmp_eq_u32 s33, %d\ns_cselect_b32 s33, 0, s33" % (16384, 3*16384))
        A("s_barrier")
        rd = ["ds_read_b128 %s, v%d offset:%d" % (v(XZ[b] + 8*nn + 4*p, 4), VX[p], 2048*nn) for nn in range(2) for p in range(2)]
        rd += ["ds_read_b64_tr_b16 %s, v%d offset:%d" % (v(WZ[b] + 8*m + 4*p + 2*h, 2), VW[m], 4096*p + 512*h) for m in range(4) for p in range(2) for h in range(2)]
        A(".p2align 3")
        for k in range(16):
            if k < 10:
                if k == 7: A("s_waitcnt lgkmcnt(8)\ns_nop 0")
                A(rd[2*k]); A(rd[2*k + 1])
            z_mfma(b ^ 1, k)
        A("s_waitcnt lgkmcnt(0)")
    A("s_add_u32 s5, s5, 1\ns_cmp_lt_u32 s5, 4\ns_cbranch_scc1 L_ZLOOP")
    A("s_barrier")
    ST(1)
    nonce_load(28)
    A("s_mov_b32 s20, %s\ns_mov_b32 s21, %s" % (f32(GC2), f32(GC2)))
    A("v_mov_b32 v24, %s\nv_mov_b32 v25, %s\nv_mov_b32 v26, 1.0\nv_mov_b32 v27, 1.0" % (f32(GC1), f32(GC1)))
    A("s_mov_b32 s28, 3584")
    A("s_lshl_b32 s29, s4, 8\ns_lshl_b32 s32, s22, 7\ns_add_u32 s29, s29, s32")
    w_setup(16)
    for blk in range(5):
        A("s_barrier")
        if blk < 4:
            for k in range(4*blk, 4*blk + 4): z_mfma(1, k)
    A("s_barrier")
    A("s_lshl_b32 s29, s28, 5\ns_lshl_b32 s3, s23, 3\ns_mul_i32 s3, s3, s29\ns_lshl_b32 s33, s29, 3\ns_add_u32 s33, s33, s3")
    A("s_and_b32 s6, s25, 3\ns_lshl_b32 s32, s6, 1\ns_mul_i32 s31, s32, s29\ns_add_u32 s31, s31, s3")
    A("s_lshl_b32 s5, s23, 15\ns_add_u32 s5, s5, %d" % L_X)
    w_dma(0); w_dma(1)
    A("s_sub_u32 s32, s30, 32768")
    wr_setup(20, "s32")
    A("s_lshl_b32 s32, s23, 6")
    for m in range(4): A("v_xor_b32 v%d, s32, v%d" % (VW[m], VW[m]))
    def x_addr():
        A("s_lshl_b32 s32, s6, 13\ns_add_u32 s32, s32, s5")
        A("v_add_u32 v%d, s32, v%d\nv_xor_b32 v%d, 64, v%d" % (VX[0], VXB, VX[1], VX[0]))
        A("s_add_u32 s6, s6, 1\ns_and_b32 s6, s6, 3")
    x_addr()
    def st_loads():
        for j in range(7):
            A("buffer_load_dwordx4 %s, v%d, s[16:19], s%d offen offset:%d sc0 sc1" % (v(64 + 4*j, 4), VL16, j >> 2, 1024*(j & 3)))
        A("buffer_load_dword v92, v%d, s[16:19], s28 offen sc0 sc1" % VZ)
    A("s_barrier")
    A("s_barrier")
    ST(2)
    SET = (64, 0)
    def d_reads(d):
        b = SET[d & 1]
        w = ["ds_read_b64_tr_b16 %s, v%d offset:%d" % (v(WS_(d) + 8*m + 4*p + 2*h, 2), VW[m], soff(2*(d & 1) + p) + 512*h) for m in range(4) for p in range(2) for h in range(2)]
        x = ["ds_read_b128 %s, v%d offset:%d" % (v(XS_(d) + 8*n + 4*p, 4), VX[p], 2048*n) for n in range(4) for p in range(2)]
        return w + x
    def d_mfma(d, fill):
        b = SET[d & 1]
        fill = list(fill)
        for k in range(32):
            m, n, p = k >> 3, (k >> 1) & 3, k & 1
            c = v(ACC + 16*m + 4*n, 4)
            A("v_mfma_f32_16x16x32_bf16 %s, %s, %s, %s" % (c, v(WS_(d) + 8*m + 4*p, 4), v(XS_(d) + 8*n + 4*p, 4), "0" if (d == 0 and p == 0) else c))
            if fill: A(fill.pop(0))
    def with_waits(rd):
        return rd[:12] + ["s_waitcnt lgkmcnt(3)\ns_nop 0\n" + rd[12]] + rd[13:]
    XS_ = lambda d: (64, 32)[d & 1]
    WS_ = lambda d: (96, 224)[d & 1]
    if opt.get("d1early", 1): w_dma(2); w_dma(3)
    A("s_waitcnt vmcnt(%d)" % (8 if opt.get("d1early", 1) else 0))
    for l in with_waits(d_reads(0)): A(l)
    emit_gelu(A, Z2, 16, 16, 24, 20, 26)
    if not opt.get("d1early", 1): w_dma(2); w_dma(3)
    emit_gelu(A, Z2 + 16, 16, 16, 24, 20, 26)
    for nn in range(2):
        sA, sB = 16 + 2*nn, 20 + 2*nn
        for m in range(4):
            for h in range(2):
                c = Z2 + 8*m + 4*nn + 2*h
                if m == 0 and h == 0:
                    A("v_pk_mul_f32 %s, %s, %s" % (v(sB, 2), v(c, 2), v(c, 2)))
                    A("v_pk_add_f32 %s, %s, %s" % (v(sA, 2), v(c, 2), v(c + 2, 2)))
                else:
                    A("v_pk_fma_f32 %s, %s, %s, %s" % (v(sB, 2), v(c, 2), v(c, 2), v(sB, 2)))
                    if m > 0: A("v_pk_add_f32 %s, %s, %s" % (v(sA, 2), v(sA, 2), v(c, 2)))
    for i in range(4): A("v_add_f32 v%d, v%d, v%d" % (16 + 2*i, 16 + 2*i, 17 + 2*i))
    A("s_nop 1")
    A("v_permlane16_swap_b32 v16, v18\nv_permlane16_swap_b32 v20, v22\ns_nop 1")
    A("v_add_f32 v16, v16, v18\nv_add_f32 v18, v20, v22\nv_mov_b32 v17, v16\nv_mov_b32 v19, v18\ns_nop 1")
    A("v_permlane32_swap_b32 v16, v17\nv_permlane32_swap_b32 v18, v19\ns_nop 1")
    A("v_add_f32 v16, v16, v17\nv_add_f32 v18, v18, v19")
    nonce_get(28, 8)
    A("v_mov_b32 v17, s27\nv_mov_b32 v19, s27")
    A("s_lshl_b32 s32, s25, 1\ns_add_u32 s32, s32, s23\ns_mul_i32 s0, s32, 7168\ns_add_u32 s0, s0, 0x%x" % WS_ST)
    A("s_lshl_b32 s32, s4, 1\ns_add_u32 s32, s32, s22\ns_lshl_b32 s32, s32, 9\ns_add_u32 s32, s32, s0")
    A("s_mov_b32 exec_hi, 0")
    A("buffer_store_dwordx4 v[16:19], v%d, s[16:19], s32 offen sc0 sc1" % VL16)
    A("s_mov_b32 exec_hi, -1")
    A("s_add_u32 s1, s0, 4096")
    A("s_waitcnt lgkmcnt(0)")
    w_dma(0); w_dma(1)
    x_addr()
    A("s_waitcnt vmcnt(9)")
    A(".p2align 3")
    d_mfma(0, with_waits(d_reads(1)))
    A("s_waitcnt lgkmcnt(0)")
    w_dma(2); w_dma(3)
    x_addr()
    A("s_waitcnt vmcnt(8)")
    A(".p2align 3")
    d_mfma(1, with_waits(d_reads(2)))
    x_addr()
    A("s_waitcnt vmcnt(0) lgkmcnt(0)")
    A(".p2align 3")
    d_mfma(2, with_waits(d_reads(3)))
    A("s_lshl_b32 s28, s25, 7\ns_add_u32 s28, s28, 0x%x" % FL_F0)
    st_loads()
    A("v_add_u32 v16, s30, v%d\nv_xor_b32 v17, 0x2000, v16" % VL16)
    A("s_waitcnt lgkmcnt(0)")
    for k in range(32):
        m, n, p = (k >> 3) ^ 2, (k >> 1) & 3, k & 1
        c = v(ACC + 16*m + 4*n, 4)
        A("v_mfma_f32_16x16x32_bf16 %s, %s, %s, %s" % (c, v(WS_(1) + 8*m + 4*p, 4), v(XS_(1) + 8*n + 4*p, 4), c))
        if k >= 16 and (k & 1):
            q = (k - 16) >> 1
            A("ds_write_b128 v16, %s offset:%d" % (v(ACC + 32 + 4*q, 4), 1024*q))
    A("v_and_b32 v60, 15, v1\nv_lshlrev_b32 v60, 7, v60\nv_bfe_u32 v61, v1, 1, 1\nv_lshl_add_u32 v60, v61, 5, v60")
    A("v_bfe_u32 v61, v1, 3, 1\nv_xor_b32 v61, s23, v61\nv_lshl_add_u32 v60, v61, 6, v60\nv_lshrrev_b32 v61, 4, v1\nv_lshl_add_u32 v60, v61, 3, v60")
    A("s_sub_u32 s32, s30, 32768\nv_add_u32 v60, s32, v60")
    for m in range(1, 4): A("v_xor_b32 v%d, %d, v60" % (60 + m, 32*m))
    A("s_waitcnt lgkmcnt(0)")
    arrive(L_CNTR)
    ST(3)
    Lp = A.newlabel("SP")
    A("s_mov_b32 s34, 0")
    A("s_waitcnt vmcnt(0)")
    A(Lp + ":")
    A("v_xor_b32 v20, s27, v92")
    for j in range(7):
        for q in (1, 3):
            A("v_xor_b32 v21, s27, v%d\nv_or_b32 v20, v20, v21" % (64 + 4*j + q))
    A("v_cmp_ne_u32 vcc, 0, v20")
    A("s_add_u32 s34, s34, 1\ns_cmp_ge_u32 s34, %d\ns_cbranch_scc1 %s_x" % (SPIN_MAX // 16, Lp))
    A("s_cbranch_vccz %s_x" % Lp)
    st_loads()
    A("s_waitcnt vmcnt(0)")
    A("s_branch %s" % Lp)
    A(Lp + "_x:")
    ST(4)
    srd(A, 8, P_BSP, P_BSP + 1, 4096)
    A("v_and_b32 v5, 15, v1\nv_lshlrev_b32 v6, 1, v5\nv_lshlrev_b32 v5, 2, v5")
    A("s_lshl_b32 s28, s25, 7\ns_lshl_b32 s29, s25, 8\ns_add_u32 s29, s29, 0x%x" % WS_G)
    for n in range(4):
        A("buffer_load_ushort v%d, v6, s[8:11], s28 offen offset:%d" % (112 + 2*n, 32*n))
        A("buffer_load_dword v%d, v5, s[16:19], s29 offen offset:%d sc1" % (120 + 2*n, 64*n))
    A("v_mov_b32 v32, v64\nv_mov_b32 v34, v66")
    for j in range(1, 7):
        A("v_add_f32 v32, v32, v%d\nv_add_f32 v34, v34, v%d" % (64 + 4*j, 66 + 4*j))
    A("v_mov_b32 v33, v32\nv_mov_b32 v35, v34\ns_nop 1")
    A("v_permlane32_swap_b32 v32, v33\nv_permlane32_swap_b32 v34, v35\ns_nop 1")
    A("v_add_f32 v32, v32, v33\nv_add_f32 v34, v34, v35")
    A("v_mul_f32 v32, %s, v32\nv_mul_f32 v34, %s, v34" % (f32(1.0/896), f32(1.0/896)))
    A("v_fma_f32 v34, -v32, v32, v34\nv_max_f32 v34, 0, v34\nv_add_f32 v34, %s, v34" % f32(1e-5))
    A("v_rsq_f32 v36, v34\ns_nop 0\nv_mul_f32 v40, v32, v36\nv_sub_f32 v40, 0, v40")
    A("v_mov_b32 v38, v36\nv_mov_b32 v42, v40\ns_nop 1")
    A("v_permlane16_swap_b32 v36, v38\nv_permlane16_swap_b32 v40, v42")
    A("s_waitcnt lgkmcnt(0)\ns_nop 0")
    for m in range(4):
        for nn in range(2):
            c = Z2 + 8*m + 4*nn
            T = 44 + 2*(2*m + nn)
            for h in range(2):
                A("v_pk_fma_f32 %s, %s, %s, %s op_sel_hi:[1,0,0]" % (v(c + 2*h, 2), v(c + 2*h, 2), v(36 + 2*nn, 2), v(40 + 2*nn, 2)))
            A("v_cvt_pk_bf16_f32 v%d, v%d, v%d\nv_cvt_pk_bf16_f32 v%d, v%d, v%d" % (T, c, c + 1, T + 1, c + 2, c + 3))
            A("ds_write_b64 v%d, %s offset:%d" % (60 + m, v(T, 2), 2048*nn))
    A("s_lshl_b32 s0, s4, 5\ns_add_u32 s0, s0, s25\ns_lshl_b32 s0, s0, 14\ns_lshl_b32 s32, s22, 13\ns_add_u32 s0, s0, s32")
    A("s_lshl_b32 s32, s23, 10\ns_add_u32 s0, s0, s32\ns_add_u32 s0, s0, 0x%x\ns_add_u32 s1, s0, 4096" % WS_Z2N)
    A("s_waitcnt lgkmcnt(0)")
    for l in w_reads(96, 2): A(l)
    A("s_waitcnt lgkmcnt(0)")
    for m in range(4):
        A("buffer_store_dwordx4 %s, v%d, s[16:19], s%d offen offset:%d sc1" % (v(96 + 4*m, 4), VL16, m >> 1, 2048*(m & 1)))
    arrive(L_CNTG)
    A("s_lshl_b32 s31, s4, 7\ns_lshl_b32 s32, s25, 2\ns_add_u32 s31, s31, s32\ns_add_u32 s31, s31, s7\ns_lshl_b32 s31, s31, 7\ns_add_u32 s31, s31, 0x%x" % FL_F3)
    A("v_mov_b32 v24, %s\nv_mov_b32 v25, %s\nv_mov_b32 v26, 1.0\nv_mov_b32 v27, 1.0" % (f32(GC1), f32(GC1)))
    lds_wait(L_CNTR, 4, 18)
    for q in range(8):
        A("ds_read_b128 %s, v17 offset:%d" % (v(64 + 4*q, 4), 1024*q))
    A("s_waitcnt lgkmcnt(0)")
    arrive(L_CNTR)
    for i in range(16):
        A("v_pk_add_f32 %s, %s, %s" % (v(ACC + 2*i, 2), v(ACC + 2*i, 2), v(64 + 2*i, 2)))
    emit_gelu(A, ACC, 24, 16, 24, 20, 26)
    A("s_waitcnt vmcnt(0)")
    set_flag("s31", 28)
    emit_gelu(A, ACC + 24, 8, 16, 24, 20, 26)
    for n in range(4):
        A("v_lshlrev_b32 v%d, 16, v%d\nv_sub_f32 v%d, 1.0, v%d\nv_mov_b32 v%d, v%d" % (112 + 2*n, 112 + 2*n, 120 + 2*n, 120 + 2*n, 113 + 2*n, 112 + 2*n))
    for n in range(4):
        for mm in range(2):
            c = ACC + 16*mm + 4*n
            for h in range(2):
                A("v_pk_mul_f32 %s, %s, %s op_sel_hi:[1,0]" % (v(c + 2*h, 2), v(c + 2*h, 2), v(120 + 2*n, 2)))
            A("v_cvt_pk_bf16_f32 v%d, v%d, v%d\nv_cvt_pk_bf16_f32 v%d, v%d, v%d" % (16 + 4*n + 2*mm, c, c + 1, 17 + 4*n + 2*mm, c + 2, c + 3))
            A("v_mov_b64 %s, %s\nv_mov_b64 %s, %s" % (v(c, 2), v(112 + 2*n, 2), v(c + 2, 2), v(112 + 2*n, 2)))
    ST(5)
    WSP, ZR = 32, 64
    srd(A, 12, P_WSP, P_WSP + 1, 2048*2048*2)
    A("v_lshrrev_b32 v5, 3, v1\nv_and_b32 v6, 7, v1\nv_lshrrev_b32 v7, 4, v1\nv_xor_b32 v6, v6, v7")
    A("s_lshl_b32 s28, s25, 6\nv_add_u32 v5, s28, v5\nv_lshlrev_b32 v5, 12, v5\nv_lshl_add_u32 v5, v6, 4, v5")
    A("v_xor_b32 v6, 64, v5\nv_add_u32 v6, %d, v6" % (32768 - 1024))
    A("v_add_u32 v7, %d, v5\nv_add_u32 v8, %d, v6" % (2*(32768 - 1024), 2*(32768 - 1024)))
    if opt.get("srot", 0) == 1: A("s_lshl_b32 s6, s26, 1\ns_add_u32 s6, s6, s25\ns_and_b32 s6, s6, 7")
    elif opt.get("srot") == 2: A("s_lshl_b32 s6, s26, 1\ns_and_b32 s6, s6, 7")
    else: A("s_mov_b32 s6, 0")
    A("s_lshl_b32 s3, s7, 10")
    def sp_dma():
        A("s_lshl_b32 s31, s6, 7\ns_add_u32 s31, s31, s3")
        for hf in range(2):
            A("s_add_u32 m0, s30, %d" % (4096*hf))
            A("s_add_u32 s32, s31, %d" % (131072*hf))
            for q in range(4):
                A("buffer_load_dwordx4 v%d, s[12:15], s32 offen offset:%d lds" % (5 + q, 1024*q))
    lds_wait(L_CNTR, 8, 32)
    sp_dma()
    A("v_add_u32 v%d, s30, v%d\nv_xor_b32 v%d, 64, v%d" % (VX[0], VXB, VX[1], VX[0]))
    for mu in range(4):
        A("s_add_u32 s32, s7, %d\ns_and_b32 s32, s32, 3\ns_lshl_b32 s32, s32, 12\nv_add_u32 v%d, s32, v%d" % (mu, 9 + mu, VL16))
    A("s_lshl_b32 s33, s4, 5\ns_lshl_b32 s32, s7, 3\ns_add_u32 s33, s33, s32\ns_lshl_b32 s33, s33, 14\ns_add_u32 s0, s33, 0x%x" % WS_Z2N)
    A("s_lshl_b32 s33, s6, 14\ns_add_u32 s33, s33, s0")
    zero(ACC + 32, 96)
    A("s_lshl_b32 s28, s4, 2\ns_add_u32 s28, s28, s7\ns_lshl_b32 s28, s28, 12\ns_add_u32 s28, s28, 0x%x" % FL_F3)
    A("v_and_b32 v32, 31, v1\nv_lshlrev_b32 v32, 7, v32")
    A("v_and_b32 v34, 0x180, v32")
    poll(34, "s28", 33, sleep=opt.get("sl3", 3))
    def z_load(m):
        for p in range(2):
            A("buffer_load_dwordx4 %s, v%d, s[16:19], s33 offen offset:%d sc1" % (v(ZR + 8*m + 4*p, 4), 9 + (m >> 1), 2048*(m & 1) + 1024*p))
    for m in range(8): z_load(m)
    poll(32, "s28", 33, sleep=opt.get("sl3", 3))
    ST(6)
    A("s_mov_b32 s5, 0")
    A("s_setprio %d" % (2 if opt.get("hi", 0) else opt.get("gprio", 0)))
    A("L_SLOOP:")
    if opt.get("hi", 0):
        A("s_cmp_lg_u32 s5, %d\ns_cbranch_scc1 L_SP2\ns_setprio 0\nL_SP2:" % opt["hi"])
    A("s_add_u32 s6, s6, 1\ns_and_b32 s6, s6, 7\ns_lshl_b32 s33, s6, 14\ns_add_u32 s33, s33, s0")
    def w_frags():
        A("s_waitcnt vmcnt(16)")
        for n in range(4):
            for p in range(2):
                A("ds_read_b128 %s, v%d offset:%d" % (v(WSP + 8*n + 4*p, 4), VX[p], 2048*n))
    def s_mfma(m, n):
        c = v(ACC + 16*m + 4*n, 4)
        for p in range(2):
            A("v_mfma_f32_16x16x32_bf16 %s, %s, %s, %s" % (c, v(ZR + 8*m + 4*p, 4), v(WSP + 8*n + 4*p, 4), c))
    w_frags()
    A("s_waitcnt lgkmcnt(0)")
    sp_dma()
    for m in range(8):
        A("s_waitcnt vmcnt(22)")
        A(".p2align 3")
        for n in range(4): s_mfma(m, n)
        z_load(m)
    A("s_add_u32 s5, s5, 1\ns_cmp_lt_u32 s5, 7\ns_cbranch_scc1 L_SLOOP")
    WHR = (96, 160, 176, 112, 192, 208, 224)
    def wc_base(first_step_expr):
        A("s_mul_i32 s29, s26, 44\n%s\ns_add_u32 s29, s29, s32\ns_lshl_b32 s29, s29, 12\ns_add_u32 s29, s29, 0x%x" % (first_step_expr, WS_WC))
    def wc_load(dst):
        for m in range(4):
            A("buffer_load_dwordx4 %s, v%d, s[16:19], s29 offen offset:%d sc1" % (v(dst + 4*m, 4), VL16, 1024*m))
        A("s_add_u32 s29, s29, 4096")
    A("s_setprio %d" % opt.get("gprio2", 2))
    w_frags()
    A("v_and_b32 v8, 15, v1\nv_lshlrev_b32 v8, 7, v8\ns_lshl_b32 s28, s26, 11\ns_add_u32 s28, s28, 0x%x" % FL_F6)
    A("buffer_load_dword v9, v8, s[16:19], s28 offen sc1")
    A("v_add_u32 v5, s30, v%d\ns_lshl_b32 s32, s7, 14\ns_add_u32 s32, s32, 16384\nv_add_u32 v6, s32, v%d" % (VL16, VL16))
    for r in range(1, 4):
        A("s_sub_u32 s32, s7, %d\ns_and_b32 s32, s32, 3" % r)
        A("s_lshl_b32 s32, s32, %d\ns_add_u32 s32, s32, %d\nv_add_u32 v%d, s32, v%d" % ((13, L_G, 9 + r, VL16) if r == 1 else (14, 16384 + 8192*(r - 2), 9 + r, VL16)))
    wc_base("s_mul_i32 s32, s7, 7")
    A("s_waitcnt lgkmcnt(0)")
    A("s_setprio %d" % opt.get("gprio", 0))
    for mu in (1, 2, 3, 0):
        r = (mu - 1) % 4
        if mu == 3:
            A("s_setprio %d" % opt.get("gprio2", 2))
            A("s_waitcnt vmcnt(0)")
            A("v_cmp_ne_u32 vcc, s27, v9")
            lds_wait(L_CNTKV + 28, 0x01010101, 7)
            A("s_cbranch_vccz L_F6OK")
            poll(8, "s28", 9)
            A("L_F6OK:")
            A("s_setprio %d" % opt.get("gprio4", 0))
        for mm in range(2):
            m = 2*mu + mm
            if mu in (1, 2): A("s_waitcnt vmcnt(%d)" % (2*(7 - m) + 1))
            A(".p2align 3")
            for n in range(4):
                s_mfma(m, n)
                q = 4*mm + n
                if r:
                    A("ds_write_b128 v%d, %s offset:%d" % (5 if r == 1 else 6, v(ACC + 32*r + 4*q, 4), 1024*q + (8192 if r == 3 else 0)))
                if r >= 2 and q in (0, 2, 4):
                    wc_load(WHR[3*(r - 2) + q//2])
        if r: A("s_waitcnt lgkmcnt(0)")
    A("s_setprio %d" % opt.get("gprio2", 2))
    arrive(L_CNTR)
    ST(7)
    wc_load(WHR[6])
    lds_wait(L_CNTR, 12, 7)
    def r_read(r, dst):
        for q in range(8): A("ds_read_b128 %s, v%d offset:%d" % (v(dst + 4*q, 4), 9 + r, 1024*q))
    def r_add(src):
        for i in range(16): A("v_pk_add_f32 %s, %s, %s" % (v(ACC + 2*i, 2), v(ACC + 2*i, 2), v(src + 2*i, 2)))
    r_read(2, 32)
    A("s_waitcnt lgkmcnt(4)")
    r_read(3, 64)
    A("s_waitcnt lgkmcnt(8)")
    r_add(32)
    A("s_waitcnt lgkmcnt(4)")
    r_read(1, 32)
    A("s_waitcnt lgkmcnt(8)")
    r_add(64)
    A("s_waitcnt lgkmcnt(0)")
    arrive(L_CNTR)
    r_add(32)
    ST(8)
    A("v_and_b32 v5, 15, v1\nv_lshlrev_b32 v5, 4, v5\nv_bfe_u32 v6, v1, 4, 1\nv_lshl_add_u32 v5, v6, 9, v5\nv_lshrrev_b32 v6, 5, v1\nv_lshl_add_u32 v5, v6, 8, v5")
    A("s_mul_i32 s31, s25, 44\ns_lshl_b32 s32, s4, 2\ns_add_u32 s32, s32, s7\ns_add_u32 s31, s31, s32\ns_lshl_b32 s31, s31, 12\ns_add_u32 s31, s31, 0x%x" % WS_ACT)
    for n in range(4):
        T = 48 + 4*n
        for i in range(4): A("v_lshlrev_b32 v%d, 16, v%d\nv_and_b32 v%d, 0xffff0000, v%d" % (32 + 2*i, 16 + 4*n + i, 33 + 2*i, 16 + 4*n + i))
        for mm in range(2):
            c = ACC + 16*mm + 4*n
            for i in range(2): A("v_pk_mul_f32 %s, %s, %s" % (v(c + 2*i, 2), v(c + 2*i, 2), v(32 + 4*mm + 2*i, 2)))
        for mm in range(2):
            c = ACC + 16*mm + 4*n
            A("v_cvt_pk_bf16_f32 v%d, v%d, v%d\nv_cvt_pk_bf16_f32 v%d, v%d, v%d" % (T + 2*mm, c, c + 1, T + 2*mm + 1, c + 2, c + 3))
        A("s_nop 1")
        A("v_permlane16_swap_b32 v%d, v%d\nv_permlane16_swap_b32 v%d, v%d" % (T, T + 2, T + 1, T + 3))
        A("buffer_store_dwordx4 %s, v5, s[16:19], s31 offen offset:%d sc1" % (v(T, 4), 1024*n))
    A("s_lshl_b32 s31, s25, 12\ns_lshl_b32 s32, s32, 7\ns_add_u32 s31, s31, s32\ns_add_u32 s31, s31, 0x%x" % FL_F4)
    def wo_stage():
        wc_base("s_lshl_b32 s32, s7, 1\ns_add_u32 s32, s32, 36")
        A("s_lshl_b32 s33, s7, 14\ns_add_u32 s33, s33, 16384")
        for k in range(4):
            A("s_add_u32 m0, s33, %d\ns_nop 0" % (4096*k))
            for m in range(4):
                A("buffer_load_dwordx4 v%d, s[16:19], s29 offen offset:%d sc1 lds" % (VL16, 1024*m))
            A("s_add_u32 s29, s29, 4096" if k != 1 else "s_sub_u32 s29, s29, %d" % (9*4096))
        A("v_add_u32 v23, s33, v%d" % VL16)
    lds_wait(L_CNTR, 16, 7)
    A("s_waitcnt vmcnt(0)")
    set_flag("s31", 6)
    wo_stage()
    A("s_branch L_OUT")
    A("L_G7:")
    A("s_sub_u32 s32, s30, 32768")
    wr_setup(16, "s32")
    A("s_cmp_eq_u32 s7, 0\ns_cbranch_scc1 L_GATE")
    A("s_waitcnt lgkmcnt(0)")
    for i in range(17): A("s_barrier")
    nonce_load(16)
    nonce_get(16)
    A("s_branch L_G7X")
    A("L_GATE:")
    srd(A, 12, P_GW, P_GW + 1, 1024)
    A("v_lshrrev_b32 v16, 4, v1\nv_lshlrev_b32 v16, 4, v16")
    for st in range(16):
        A("buffer_load_dwordx4 %s, v16, s[12:15], 0 offen offset:%d" % (v(64 + 4*st, 4), 64*st))
    A("v_add_u32 v%d, %d, v%d\nv_xor_b32 v%d, 64, v%d" % (VX[0], L_X, VXB, VX[1], VX[0]))
    zero(ACC, 16)
    for i in range(8): A("s_barrier")
    A("s_waitcnt vmcnt(0)")
    nonce_load(20)
    for sb in range(8):
        for p in range(2):
            for n in range(4):
                A("ds_read_b128 %s, v%d offset:%d" % (v(32 + 16*p + 4*n, 4), VX[p], 2048*n + 8192*sb))
        A("s_barrier")
        A("s_waitcnt lgkmcnt(0)")
        for n in range(4):
            for p in range(2):
                A("v_mfma_f32_16x16x32_bf16 %s, %s, %s, %s" % (v(ACC + 4*n, 4), v(64 + 8*sb + 4*p, 4), v(32 + 16*p + 4*n, 4), v(ACC + 4*n, 4)))
    nonce_get(20)
    A("s_nop 3")
    for n in range(4): A("v_mul_f32 v%d, %s, v%d" % (16 + n, f32(-LOG2E), ACC + 4*n))
    for n in range(4): A("v_exp_f32 v%d, v%d" % (16 + n, 16 + n))
    for n in range(4): A("v_add_f32 v%d, 1.0, v%d" % (16 + n, 16 + n))
    for n in range(4): A("v_rcp_f32 v%d, v%d" % (16 + n, 16 + n))
    A("v_lshlrev_b32 v20, 2, v1\ns_lshl_b32 s29, s25, 8\ns_add_u32 s29, s29, 0x%x" % WS_G)
    A("s_mov_b32 exec_lo, 0xffff\ns_mov_b32 exec_hi, 0")
    for n in range(4):
        A("buffer_store_dword v%d, v20, s[16:19], s29 offen offset:%d sc1" % (16 + n, 64*n))
    A("s_mov_b64 exec, -1")
    A("s_barrier")
    A("s_lshl_b32 s28, s25, 7\ns_add_u32 s28, s28, 0x%x" % FL_F0)
    A("s_waitcnt vmcnt(0)")
    set_flag("s28", 16)
    A("L_G7X:")
    arrive(L_CNTG)
    lds_wait(L_CNTKV + 8, 0x01010101, 16, sleep=16)
    A("s_lshl_b32 s20, s25, 2\ns_add_u32 s20, s20, s7\ns_and_b32 s21, s20, 7\ns_lshr_b32 s20, s20, 3\ns_mov_b32 s22, s20")
    A("s_mov_b32 s28, 1024\ns_lshl_b32 s29, s21, 7")
    w_setup(16)
    A("L_WT:")
    srd(A, 8, P_WOUT, P_WOUT + 1, 896*512*2)
    A("s_lshl_b32 s31, s22, 15")
    A("s_cmp_lt_u32 s22, 28\ns_cbranch_scc1 L_WT2")
    srd(A, 8, P_WO, P_WO + 1, 512*512*2)
    A("s_sub_u32 s31, s31, %d" % (28*32768))
    A("L_WT2:")
    w_dma(0, False)
    A("s_mul_i32 s31, s21, 44\ns_add_u32 s31, s31, s22\ns_lshl_b32 s31, s31, 12\ns_add_u32 s31, s31, 0x%x" % WS_WC)
    A("s_waitcnt vmcnt(0)")
    for l in w_reads(32, 0): A(l)
    A("s_waitcnt lgkmcnt(0)")
    for m in range(4):
        A("buffer_store_dwordx4 %s, v%d, s[16:19], s31 offen offset:%d sc1" % (v(32 + 4*m, 4), VL16, 1024*m))
    A("s_add_u32 s22, s22, 16\ns_cmp_lt_u32 s22, 44\ns_cbranch_scc1 L_WT")
    A("s_lshl_b32 s31, s21, 11\ns_lshl_b32 s32, s20, 7\ns_add_u32 s31, s31, s32\ns_add_u32 s31, s31, 0x%x" % FL_F6)
    A("s_waitcnt vmcnt(0)")
    set_flag("s31", 16)
    A("v_and_b32 v24, 15, v1\nv_lshlrev_b32 v24, 7, v24")
    A("s_lshl_b32 s28, s26, 11\ns_add_u32 s28, s28, 0x%x" % FL_F6)
    poll(24, "s28", 25, sleep=32)
    wc_base("s_mul_i32 s32, s7, 7")
    for k in range(7): wc_load(WHR[k])
    lds_wait(L_CNTKV + 28, 0x01010101, 16, sleep=16)
    wo_stage()
    A("L_OUT:")
    ST(9)
    OA = (128, 144, 64, 80)
    HRR = [24 + 4*k for k in range(10)] + [240 + 4*k for k in range(4)]
    NR = 14
    for nu in range(4):
        A("s_add_u32 s32, s7, %d\ns_and_b32 s32, s32, 3\ns_lshl_b32 s32, s32, 10\nv_add_u32 v%d, s32, v%d" % (nu, 16 + nu, VL16))
    A("s_mul_i32 s33, s25, 44\ns_mul_i32 s32, s7, 7\ns_add_u32 s33, s33, s32\ns_lshl_b32 s33, s33, 12\ns_add_u32 s33, s33, 0x%x" % WS_ACT)
    A("v_min_u32 v20, 6, v1\nv_add_u32 v20, s32, v20\nv_lshlrev_b32 v20, 7, v20")
    A("s_mov_b32 exec_lo, 0")
    A("v_and_b32 v20, 3, v1\nv_bfe_u32 v21, v1, 2, 1\nv_lshl_add_u32 v20, v21, 4, v20\ns_lshl_b32 s32, s7, 2\nv_add_u32 v20, s32, v20")
    A("v_lshlrev_b32 v20, 7, v20\nv_add_u32 v20, 0x%x, v20" % (FL_F5 - FL_F4))
    A("s_mov_b32 exec_lo, -1")
    A("s_lshl_b32 s28, s25, 12\ns_add_u32 s28, s28, 0x%x" % FL_F4)
    poll(20, "s28", 21, sleep=opt.get("sl4", 3))
    ST(10)
    vq2 = []
    def vw2(tag):
        last = max(i for i, x in enumerate(vq2) if x == tag)
        A("s_waitcnt vmcnt(%d)" % (len(vq2) - 1 - last))
    def a_load(f, dst):
        vq2.append(("a", f))
        A("buffer_load_dwordx4 %s, v%d, s[16:19], s33 offen sc1" % (v(dst, 4), 16 + (f & 3)))
        if (f & 3) == 3: A("s_add_u32 s33, s33, 4096")
    for f in range(NR): a_load(f, HRR[f])
    A("s_setprio %d" % opt.get("gprio3", 0))
    OB = (24, 192)
    A("s_lshl_b32 s32, s7, 2\nv_mov_b32 v22, s32")
    def o_load(hf):
        A("s_mov_b32 s33, s%d" % (22 + hf))
        for f in range(8): a_load(f, OB[hf] + 4*f)
    A("s_mul_i32 s22, s25, 44\ns_lshl_b32 s32, s7, 1\ns_add_u32 s22, s22, s32\ns_add_u32 s22, s22, 36\ns_lshl_b32 s22, s22, 12\ns_add_u32 s22, s22, 0x%x" % WS_ACT)
    A("s_sub_u32 s23, s22, %d" % (8*4096))
    HD = opt.get("hdefer", 0)
    for f in range(28):
        st, nu = f >> 2, f & 3
        if f == HD: lds_wait(L_CNTD, 1, 21, sleep=2, va=22)
        vw2(("a", f))
        for m in range(4):
            c = v(OA[nu] + 4*m, 4)
            A("v_mfma_f32_16x16x32_bf16 %s, %s, %s, %s" % (c, v(WHR[st] + 4*m, 4), v(HRR[f % NR], 4), c if st else "0"))
        if f + NR < 28: a_load(f + NR, HRR[f % NR])
        if f >= 14 and (f & 1) and (f - 15)//2 < 4:
            k = (f - 15)//2
            if k == 3: A("s_waitcnt lgkmcnt(8)")
            for m in range(4): A("ds_read_b128 %s, v23 offset:%d" % (v(WHR[k] + 4*m, 4), 4096*k + 1024*m))
        if f == 21: o_load(0)
        if f == 23: o_load(1)
    A("s_setprio 2")
    A("s_waitcnt lgkmcnt(0)")
    arrive(L_CNTX)
    A("v_and_b32 v20, 6, v1\nv_lshlrev_b32 v20, 10, v20\nv_and_b32 v21, 1, v1\nv_lshl_add_u32 v20, v21, 9, v20")
    srd(A, 12, P_OUT, P_OUT + 1, 2048*512*2)
    for nu in range(1, 4):
        A("s_add_u32 s32, s7, %d\ns_and_b32 s32, s32, 3\ns_mul_i32 s32, s32, 12288\ns_add_u32 s32, s32, %d\nv_add_u32 v%d, s32, v%d" % (nu, 4096*(nu - 1), 8 + nu, VL16))
    A("s_mul_i32 s32, s7, 12288\nv_add_u32 v8, s32, v%d" % VL16)
    A("v_and_b32 v5, 15, v1\nv_lshlrev_b32 v5, 10, v5\nv_bfe_u32 v6, v1, 4, 1\nv_lshl_add_u32 v5, v6, 5, v5\nv_lshrrev_b32 v6, 5, v1\nv_lshl_add_u32 v5, v6, 4, v5")
    A("s_lshl_b32 s31, s25, 16\ns_lshl_b32 s32, s7, 14\ns_add_u32 s31, s31, s32\ns_lshl_b32 s32, s26, 7\ns_add_u32 s31, s31, s32")
    ST(11)
    def o_mfma(hf):
        for nu in (1, 2, 3, 0):
            for m in range(4):
                c = v(OA[nu] + 4*m, 4)
                for st in range(2):
                    A("v_mfma_f32_16x16x32_bf16 %s, %s, %s, %s" % (c, v(WHR[2*hf + st] + 4*m, 4), v(OB[hf] + 16*st + 4*nu, 4), c))
                if hf == 1 and nu != 1:
                    pn = {2: 1, 3: 2, 0: 3}[nu]
                    A("ds_write_b128 v%d, %s offset:%d" % (8 + pn, v(OA[pn] + 4*m, 4), 1024*m))
    def o_check(hf):
        L = "L_OC%d" % hf
        b = OB[hf]
        A(L + ":")
        A("s_waitcnt vmcnt(%d)" % (8 if hf == 0 else 0))
        A("v_max3_u32 v21, v%d, v%d, v%d\nv_max3_u32 v22, v%d, v%d, v%d" % (b, b + 1, b + 2, b + 3, b + 4, b + 5))
        for i in range(6, 30, 4):
            A("v_max3_u32 v21, v21, v%d, v%d\nv_max3_u32 v22, v22, v%d, v%d" % (b + i, b + i + 1, b + i + 2, b + i + 3))
        A("v_max3_u32 v21, v21, v%d, v%d\nv_max_u32 v21, v21, v22" % (b + 30, b + 31))
        A("v_cmp_eq_u32 vcc, -1, v21")
        A("s_add_u32 s34, s34, 1\ns_cmp_ge_u32 s34, %d\ns_cbranch_scc1 %s_x" % (SPIN_MAX // 8, L))
        A("s_cbranch_vccz %s_x" % L)
        A(L + "_s:")
        A("buffer_load_dword v21, v20, s[16:19], s%d offen sc1" % (22 + hf))
        A("s_waitcnt vmcnt(0)")
        A("v_cmp_eq_u32 vcc, -1, v21")
        A("s_add_u32 s34, s34, 1\ns_cmp_ge_u32 s34, %d\ns_cbranch_scc1 %s_x" % (SPIN_MAX // 8, L))
        A("s_cbranch_vccz %s_r" % L)
        A("s_sleep %d\ns_branch %s_s" % (opt.get("sl5", 1), L))
        A(L + "_r:")
        o_load(hf)
        if hf == 0: o_load(1)
        A("s_branch %s" % L)
        A(L + "_x:")
    A("s_mov_b32 s34, 0")
    o_check(0)
    o_mfma(0)
    o_check(1)
    ST(12)
    A("s_barrier")
    o_mfma(1)
    A("s_waitcnt lgkmcnt(0)")
    A("s_barrier")
    for j in range(12):
        A("ds_read_b128 %s, v8 offset:%d" % (v(192 + 4*j, 4), 1024*j))
    for j in range(3):
        A("s_waitcnt lgkmcnt(%d)" % (8 - 4*j))
        for i in range(8):
            A("v_pk_add_f32 %s, %s, %s" % (v(OA[0] + 2*i, 2), v(OA[0] + 2*i, 2), v(192 + 16*j + 2*i, 2)))
    for i in range(8): A("v_cvt_pk_bf16_f32 v%d, v%d, v%d" % (24 + i, OA[0] + 2*i, OA[0] + 2*i + 1))
    A("s_nop 1")
    for mp in range(2):
        T = 24 + 4*mp
        A("v_permlane16_swap_b32 v%d, v%d\nv_permlane16_swap_b32 v%d, v%d" % (T, T + 2, T + 1, T + 3))
        A("buffer_store_dwordx4 %s, v5, s[12:15], s31 offen offset:%d" % (v(T, 4), 64*mp))
    A("L_FIN:")
    ST.end(24)
    A("L_END:")
    A("s_endpgm")

def build(stamps=False, opt=None):
    ref = open("gated_mix__softmax_full_mha__mixer_gmlp__prompt.s.ref").read().split("\n")
    hdr = [l for l in ref if l.startswith(";") and "@launch" not in l]
    out = "\n".join(hdr) + "\n; @launch grid=(256,1,1) block=(512,1,1) lds=163840\n"
    out += '.amdgcn_target "amdgcn-amd-amdhsa--gfx950"\n.text\n.globl %s\n' % KNAME
    A = Asm()
    gen(A, stamps, opt)
    txt = A.text()
    if (opt or {}).get("sc1only", 1): txt = txt.replace("sc0 sc1", "sc1")
    out += txt + '.section .rodata,"a"\n' + kdesc(KNAME, 256, 100, 256)
    return out
if __name__ == "__main__":
    import sys
    opt = dict((a_.split("=")[0], int(a_.split("=")[1])) for a_ in sys.argv[2:] if "=" in a_)
    open(sys.argv[1], "w").write(build("--stamps" in sys.argv, opt))
```

```python
from asmlib import Asm, v, s, a, f32, srd, kdesc
from asmlib import KA_X, KA_WQKV, KA_WO, KA_WIN, KA_WSP, KA_BSP, KA_WOUT, KA_GW, KA_OUT, KA_DBG, KA_WS
WS_Q    = 0x000000
WS_K    = 0x200000
WS_V    = 0x400000
WS_Z1   = 0x600000
WS_Z2N  = 0xA00000
WS_ACT  = 0xE00000
WS_WC   = 0x1400000
WS_G    = 0x1600000
WS_ST   = 0x1610000
WS_FL   = 0x1690000
FL_EPOCH = WS_FL
FL_F0 = WS_FL + 0x1000
FL_F1 = WS_FL + 0x2000
FL_F3 = WS_FL + 0x10000
FL_F4 = WS_FL + 0x30000
FL_F5 = WS_FL + 0x50000
FL_F6 = WS_FL + 0x2c000
WS_TS   = 0x1700000
WS_USED = 0x1800000
NST = 14
SB = 64
import os
LITE = bool(os.environ.get("LITE"))
class Stamps:
    def __init__(self, A, on): self.A, self.on = A, on
    def __call__(self, i, wait=False):
        if self.on and (not LITE or i in (0, NST - 1)):
            self.A("s_memrealtime s[%d:%d]" % (SB + 2*i, SB + 2*i + 1))
            if wait: self.A("s_waitcnt lgkmcnt(0)")
    def begin(self):
        if self.on:
            for i in range(1, NST - 1): self.A("s_mov_b32 s%d, 0" % (SB + 2*i))
            self(0); self.A("s_memtime s[94:95]")
    def end(self, swave, wsrd=16):
        if not self.on: return
        A = self.A
        A("s_waitcnt vmcnt(0)")
        self(NST - 1)
        A("s_memtime s[92:93]")
        A("s_waitcnt lgkmcnt(0)")
        A("s_sub_u32 s92, s92, s94")
        A("s_lshl_b32 s96, s2, 4\ns_add_u32 s96, s96, s%d\ns_lshl_b32 s96, s96, 6\ns_add_u32 s96, s96, 0x%x" % (swave, WS_TS))
        for i in range(NST + 1):
            A("v_mov_b32 v%d, s%d" % (4 + i, SB + 2*i))
        A("v_mov_b32 v3, 0")
        A("s_mov_b64 exec, 1")
        for q in range(4):
            A("buffer_store_dwordx4 v[%d:%d], v3, %s, s96 offen offset:%d" % (4 + 4*q, 7 + 4*q, s(wsrd, 4), 16*q))
        A("s_mov_b64 exec, -1")
```

```python
from asmlib2 import *
from p1 import emit_gelu, LOG2E, QSCALE, GC1, GC2

KNAME = "gated_mix__softmax_full_mha__mixer_gmlp__prompt_kernel"
L_CNTG, L_CNTX, L_CNTR, L_CNTA, L_CNTKV, L_CNTD = 0, 8, 16, 24, 32, 96
L_X = 16384
L_WQ = 81920
L_G = 131072
P_X, P_WQKV, P_WO, P_WIN, P_WSP, P_BSP, P_WOUT = 36, 38, 40, 44, 46, 48, 50
P_GW, P_OUT, P_DBG, P_WS = 52, 54, 56, 58
SPIN_MAX = 0x20000

def gen(A, stamps=False, opt=None):
    opt = opt or {}
    ST = Stamps(A, stamps)
    VZ, VONE = 2, 3
    VL16 = 4
    def arrive(off, va=VZ):
        A("s_mov_b64 exec, 1")
        A("ds_add_u32 v%d, v%d offset:%d" % (va, VONE, off))
        A("s_mov_b64 exec, -1")
    def zero(base, n):
        for i in range(0, n, 2): A("v_mov_b64 %s, 0" % v(base + i, 2))
    def lds_wait(off, thr, vt, sleep=0, va=VZ):
        L = A.newlabel("LW")
        A("s_mov_b32 s34, 0")
        A(L + ":")
        if sleep: A("s_sleep %d" % sleep)
        A("ds_read_b32 v%d, v%d offset:%d" % (vt, va, off))
        A("s_waitcnt lgkmcnt(0)")
        A("v_readfirstlane_b32 s35, v%d" % vt)
        A("s_add_u32 s34, s34, 1\ns_cmp_ge_u32 s34, %d\ns_cbranch_scc1 %s_x" % (SPIN_MAX, L))
        A("s_cmp_lt_u32 s35, %s\ns_cbranch_scc1 %s" % (thr, L))
        A(L + "_x:")
    def set_flag(soff, vt):
        A("v_mov_b32 v%d, s27" % vt)
        A("s_mov_b64 exec, 1")
        A("buffer_store_dword v%d, v%d, s[16:19], %s offen sc0 sc1" % (vt, VZ, soff))
        A("s_mov_b64 exec, -1")
    def poll(vaddr, soff, vt, sleep=4, second=None):
        L = A.newlabel("PL")
        A("s_mov_b32 s34, 0")
        A(L + ":")
        A("buffer_load_dword v%d, v%d, s[16:19], %s offen sc0 sc1" % (vt, vaddr, soff))
        if second is not None:
            A("buffer_load_dword v%d, v%d, s[16:19], %s offen sc0 sc1" % (vt + 1, second, soff))
        A("s_waitcnt vmcnt(0)")
        A("v_xor_b32 v%d, s27, v%d" % (vt, vt))
        if second is not None:
            A("v_xor_b32 v%d, s27, v%d\nv_or_b32 v%d, v%d, v%d" % (vt + 1, vt + 1, vt, vt, vt + 1))
        A("v_cmp_ne_u32 vcc, 0, v%d" % vt)
        A("s_add_u32 s34, s34, 1\ns_cmp_ge_u32 s34, %d\ns_cbranch_scc1 %s_x" % (SPIN_MAX // 8, L))
        A("s_cbranch_vccz %s_x" % L)
        A("s_sleep %d" % sleep)
        A("s_branch %s" % L)
        A(L + "_x:")
    def nonce_load(vt):
        A("buffer_load_dword v%d, v%d, s[60:63], 0 offen sc0 sc1" % (vt, VZ))
    def nonce_get(vt, cnt=0):
        L = A.newlabel("NG")
        A("s_waitcnt vmcnt(%d)" % cnt)
        A("v_readfirstlane_b32 s27, v%d" % vt)
        A("s_mov_b32 s34, 0")
        A(L + ":")
        A("s_cmp_lg_u32 s27, 0\ns_cbranch_scc1 %s_x" % L)
        A("s_add_u32 s34, s34, 1\ns_cmp_ge_u32 s34, %d\ns_cbranch_scc1 %s_x" % (SPIN_MAX // 8, L))
        nonce_load(vt)
        A("s_waitcnt vmcnt(0)")
        A("v_readfirstlane_b32 s27, v%d" % vt)
        A("s_branch %s" % L)
        A(L + "_x:")

    VD = (5, 6, 7, 8)
    VW = (9, 10, 11, 12)
    VX = (13, 14)
    VXB = 15
    def w_setup(t0):
        A("v_lshrrev_b32 v%d, 3, v1\nv_mul_lo_u32 v%d, v%d, s28" % (t0, t0, t0))
        A("v_bfe_u32 v%d, v1, 4, 1\nv_lshlrev_b32 v%d, 1, v%d\nv_and_b32 v%d, 7, v1\nv_xor_b32 v%d, v%d, v%d" % (t0+1, t0+1, t0+1, t0+2, t0+1, t0+1, t0+2))
        A("v_lshl_add_u32 v%d, v%d, 4, v%d\nv_add_u32 v%d, s29, v%d" % (t0, t0+1, t0, VD[0], t0))
        A("s_lshl_b32 s32, s28, 3\ns_sub_u32 s32, s32, 1024")
        A("v_xor_b32 v%d, 64, v%d\nv_add_u32 v%d, s32, v%d" % (VD[1], VD[0], VD[1], VD[1]))
        A("s_lshl_b32 s32, s32, 1")
        A("v_add_u32 v%d, s32, v%d\nv_add_u32 v%d, s32, v%d" % (VD[2], VD[0], VD[3], VD[1]))
    def wr_setup(t0, sbase):
        A("v_lshrrev_b32 v%d, 4, v1\nv_bfe_u32 v%d, v1, 2, 2\nv_lshl_add_u32 v%d, v%d, 3, v%d\nv_lshlrev_b32 v%d, 7, v%d" % (t0, t0+1, t0, t0, t0+1, t0, t0))
        A("v_bfe_u32 v%d, v1, 3, 2\nv_lshl_add_u32 v%d, v%d, 5, v%d" % (t0+1, t0, t0+1, t0))
        A("v_and_b32 v%d, 3, v1\nv_lshl_add_u32 v%d, v%d, 3, v%d\nv_add_u32 v%d, %s, v%d" % (t0+1, t0, t0+1, t0, VW[0], sbase, t0))
        for m in range(1, 4):
            A("v_xor_b32 v%d, %d, v%d" % (VW[m], 32*m, VW[0]))
    def xr_setup(t0):
        A("v_and_b32 v%d, 15, v1\nv_lshrrev_b32 v%d, 4, v1\nv_bfe_u32 v%d, v1, 1, 3\nv_xor_b32 v%d, v%d, v%d" % (t0, t0+1, t0+2, t0+1, t0+1, t0+2))
        A("v_lshlrev_b32 v%d, 4, v%d\nv_lshl_add_u32 v%d, v%d, 7, v%d" % (t0+1, t0+1, VXB, t0, t0+1))
    def w_dma_list(slot):
        return ["buffer_load_dwordx4 v%d, s[8:11], s31 offen offset:%d lds" % (VD[q], 1024*q) for q in range(4)]
    def soff(slot):
        return 4096*(slot & 1) + (32768 if slot < 2 else 0)
    def w_dma(slot, wrap=True):
        A("s_add_u32 m0, s30, %d" % (soff(slot) - 32768))
        A("s_nop 0")
        for l in w_dma_list(slot): A(l)
        w_adv(wrap)
    def w_adv(wrap=True):
        A("s_add_u32 s31, s31, s29")
        if wrap:
            A("s_cmp_ge_u32 s31, s33\ns_cselect_b32 s31, s3, s31")
    def w_reads(dst, slot):
        return ["ds_read_b64_tr_b16 %s, v%d offset:%d" % (v(dst + 4*m + 2*b, 2), VW[m], soff(slot) + 512*b) for m in range(4) for b in range(2)]

    ACC = 128
    SLOT = 24576
    NS = opt.get("ns", 0)
    A(".p2align 8\n.type %s,@function\n%s:" % (KNAME, KNAME))
    A("s_cmp_ge_u32 s2, 256\ns_cbranch_scc1 L_END")
    ST.begin()
    A("s_load_dwordx16 s[36:51], s[0:1], 0")
    A("s_load_dwordx8 s[52:59], s[0:1], 64")
    A("v_lshrrev_b32 v5, 6, v0")
    A("v_and_b32 v1, 63, v0")
    A("v_readfirstlane_b32 s24, v5")
    def common():
        A("s_and_b32 s3, s2, 7\ns_lshr_b32 s4, s2, 3")
        A("s_lshr_b32 s25, s3, 1\ns_lshl_b32 s25, s25, 3\ns_lshr_b32 s6, s4, 2\ns_add_u32 s25, s25, s6")
        A("s_and_b32 s26, s3, 1\ns_lshl_b32 s26, s26, 2\ns_and_b32 s5, s4, 3\ns_add_u32 s26, s26, s5")
        A("s_lshl_b32 s5, s5, 1\ns_add_u32 s6, s6, s5\ns_and_b32 s6, s6, 7")
        A("s_mov_b32 s4, s26")
        A("v_mov_b32 v%d, 0\nv_mov_b32 v%d, 1\nv_lshlrev_b32 v%d, 4, v1" % (VZ, VONE, VL16))
        A("s_mov_b32 s27, 0")
    A("s_cmp_ge_u32 s24, 4\ns_cbranch_scc1 L_GSTART")
    A("s_cmp_lg_u32 s24, 3\ns_cbranch_scc1 L_NOPF")
    A("s_getpc_b64 s[22:23]")
    A("L_PC:")
    A("s_and_b32 s32, s2, 0xf8\nv_and_b32 v20, 7, v1\nv_add_u32 v20, s32, v20\nv_lshlrev_b32 v20, 7, v20")
    A("v_min_u32 v20, L_END-L_PC, v20")
    A("global_load_dword v0, v20, s[22:23]")
    A("L_NOPF:")
    common()
    A("v_lshrrev_b32 v20, 3, v1\nv_and_b32 v21, 7, v1\nv_lshrrev_b32 v22, 4, v1")
    LX, LZ, LQ = (176, 177), (178, 179), (180, 181)
    A("s_setprio 3")
    A("v_xor_b32 v23, v21, v22")
    A("s_lshl_b32 s28, s25, 6\ns_lshl_b32 s29, s24, 4\ns_add_u32 s28, s28, s29")
    A("v_add_u32 v24, s28, v20\nv_lshlrev_b32 v24, 10, v24\nv_lshl_add_u32 v%d, v23, 4, v24" % LX[0])
    A("v_xor_b32 v%d, 64, v%d\nv_add_u32 v%d, %d, v%d" % (LX[1], LX[0], LX[1], 8192 - 1024, LX[1]))
    A("v_add_u32 v20, s29, v20\nv_and_b32 v22, 1, v22\nv_lshlrev_b32 v22, 1, v22\nv_xor_b32 v21, v21, v22\nv_lshlrev_b32 v21, 4, v21")
    A("v_mul_u32_u24 v24, 3584, v20\ns_lshl_b32 s28, s4, 8\ns_add_u32 s28, s28, 1792\nv_add3_u32 v%d, v24, v21, s28" % LZ[0])
    A("v_xor_b32 v%d, 64, v%d\nv_add_u32 v%d, %d, v%d" % (LZ[1], LZ[0], LZ[1], 8*3584 - 1024, LZ[1]))
    A("s_lshl_b32 s22, s24, 11\ns_add_u32 s23, s22, %d\ns_add_u32 s22, s22, %d" % (L_WQ, L_X))
    A("s_mov_b32 s20, s6\ns_mov_b32 s21, s6")
    A("s_mov_b32 s18, 0x%x\ns_mov_b32 s19, 0x20000\ns_mov_b32 s11, 0x20000" % (2048*512*2))
    A("s_mov_b32 s14, 0x%x\ns_mov_b32 s15, 0x20000\ns_mov_b32 s7, s6" % (512*1536*2))
    A("v_mul_u32_u24 v24, 3072, v20\ns_lshl_b32 s28, s26, 7\nv_add3_u32 v%d, v24, v21, s28" % LQ[0])
    A("v_xor_b32 v%d, 64, v%d\nv_add_u32 v%d, %d, v%d" % (LQ[1], LQ[0], LQ[1], 8*3072 - 1024, LQ[1]))
    A("s_cmp_ge_u32 s4, 7\ns_cselect_b32 s10, 0, 0x%x" % (512*1792*2))
    A("s_waitcnt lgkmcnt(0)")
    if opt.get("tlb0", 0) == 2:
        for p in (P_WIN, P_WQKV): A("s_load_dword s97, s[%d:%d], 0" % (p, p + 1))
    A("s_mov_b64 s[16:17], s[%d:%d]\ns_mov_b64 s[8:9], s[%d:%d]\ns_mov_b64 s[12:13], s[%d:%d]" % (P_X, P_X + 1, P_WIN, P_WIN + 1, P_WQKV, P_WQKV + 1))
    vq = []
    def ld_x(i):
        vq.extend([("x", i)]*2)
        A("s_lshl_b32 s31, s20, 13\ns_add_u32 m0, s31, s22\ns_lshl_b32 s31, s20, 7")
        A("buffer_load_dwordx4 v%d, s[16:19], s31 offen lds" % LX[0])
        A("buffer_load_dwordx4 v%d, s[16:19], s31 offen offset:1024 lds" % LX[1])
        A("s_add_u32 s20, s20, 1\ns_and_b32 s20, s20, 7")
    def ld_z(i):
        vq.extend([("w", i)]*4)
        A("s_mul_i32 s31, s21, %d" % (64*3584))
        for d in range(2):
            A("s_add_u32 m0, s23, %d" % (SLOT + 16384*((i + 1) % 3) + (8192 - 128)*d))
            A("s_add_u32 s21, s21, 1" if d == 0 else "s_and_b32 s21, s21, 7")
            A("buffer_load_dwordx4 v%d, s[8:11], s31 offen offset:%d lds" % (LZ[0], 128*d))
            A("buffer_load_dwordx4 v%d, s[8:11], s31 offen offset:%d lds" % (LZ[1], 128*d + 1024))
    def q_dma_groups(sbase, imm):
        g = []
        for mat in range(3):
            pre = "s_mul_i32 s31, s7, %d\n" % (64*3072) if mat == 0 else ""
            g.append(pre + "s_add_u32 m0, %s, %d\n" % (sbase, imm + 7168*mat) + ("s_add_u32 s7, s7, 1", "s_and_b32 s7, s7, 7", "s_nop 0")[mat])
            g.append("buffer_load_dwordx4 v%d, s[12:15], s31 offen offset:%d lds" % (LQ[0], 1024*mat))
            g.append("buffer_load_dwordx4 v%d, s[12:15], s31 offen offset:%d lds" % (LQ[1], 1024*mat + 1024))
        return g
    def ld_q(i):
        vq.extend([("w", i)]*6)
        for l in q_dma_groups("s23", SLOT*((i + 1) % 3)): A(l)
    def vwait(*tags):
        last = max(i for i, x in enumerate(vq) if x in tags)
        A("s_waitcnt vmcnt(%d)" % (len(vq) - 1 - last))
    Q8 = opt.get("q8", 5)
    if opt.get("zfirst", 0):
        A("s_bitcmp1_b32 s24, 0\ns_cbranch_scc1 L_ZF")
        ld_x(0); ld_z(0)
        A("s_branch L_ZF2\nL_ZF:")
        del vq[:]
        ld_z(0); ld_x(0)
        A("L_ZF2:")
        ld_x(1)
    else:
        ld_x(0); ld_z(0); ld_x(1)
    if Q8 == -2: ld_q(8)
    ld_z(1)
    if Q8 == -1: ld_q(8)
    srd(A, 60, P_DBG, P_DBG + 1, 256)
    QA = 128
    XQ, WQ = (16, 72), (48, 104)
    def asetup(part):
        if part == 0:
            A("s_mov_b32 s30, %d" % L_WQ)
            wr_setup(16, "s30"); xr_setup(16)
            A("s_lshl_b32 s32, s24, 5\nv_xor_b32 v%d, s32, v%d" % (VW[1], VW[0]))
        if part == 1: zero(QA, 48)
        if part == 3:
            A("v_and_b32 v16, 15, v1\nv_lshlrev_b32 v16, 4, v16\nv_bfe_u32 v18, v1, 4, 1\nv_lshl_add_u32 v16, v18, 21, v16")
            A("v_lshrrev_b32 v19, 5, v1\nv_lshl_add_u32 v182, v19, 9, v16")
            A("v_and_b32 v17, 3, v1\nv_bfe_u32 v16, v1, 2, 1\nv_lshl_or_b32 v17, v16, 3, v17\nv_bfe_u32 v16, v1, 3, 1\nv_lshl_or_b32 v17, v16, 2, v17")
            A("v_lshlrev_b32 v17, 4, v17\nv_lshl_add_u32 v17, v18, 9, v17\nv_lshl_add_u32 v183, v19, 8, v17")
    XS = {0: {0: [2], 1: [3], 2: [4], 3: [5], 4: [6], 5: [7]}, 1: {0: [2, 3], 1: [4], 2: [5], 3: [6], 4: [7]}}[opt.get("xs", 0)]
    def tlb_touch():
        A("s_lshl_b32 s32, s24, 21")
        A("s_load_dword s97, s[%d:%d], s32" % (P_WSP, P_WSP + 1))
        for k in range(3):
            A("s_load_dword s97, s[%d:%d], s32" % (P_WS, P_WS + 1))
            A("s_add_u32 s32, s32, 0x800000")
        for p in (P_OUT, P_BSP):
            A("s_load_dword s97, s[%d:%d], 0" % (p, p + 1))
    if opt.get("tlb", 2) == 1: tlb_touch()
    for i in range(8):
        vwait(("x", i), ("w", i))
        A("s_barrier")
        if i == 0: ST(1)
        for k in XS.get(i, [])[:1]: ld_x(k)
        if i + 2 < 8: ld_z(i + 2)
        for k in XS.get(i, [])[1:]: ld_x(k)
        if i == Q8: ld_q(8)
        if i == 7: ld_q(9)
        if i == 3 and opt.get("tlb", 2) == 2: tlb_touch()
        if 1 <= i <= 4: asetup(i - 1)
        if i == 6: srd(A, 16, P_WS, P_WS + 1, WS_USED)
    A("s_mov_b32 s33, 0\ns_mov_b32 s5, 0")
    def q_mfma(b, k):
        mat, n, p = k >> 3, (k >> 1) & 3, k & 1
        c = v(QA + 16*mat + 4*n, 4)
        xf, wf = v(XQ[b] + 8*n + 4*p, 4), v(WQ[b] + 8*mat + 4*p, 4)
        A("v_mfma_f32_16x16x32_bf16 %s, %s, %s, %s" % ((c, xf, wf, c) if mat == 2 else (c, wf, xf, c)))
    def q_stage(b, first=False):
        A("s_lshl_b32 s32, s6, 13\ns_add_u32 s32, s32, %d" % L_X)
        A("v_add_u32 v%d, s32, v%d\nv_xor_b32 v%d, 64, v%d\nv_add_u32 v%d, s33, v%d" % (VX[0], VXB, VX[1], VX[0], VW[0], VW[1]))
        A("s_add_u32 s6, s6, 1\ns_and_b32 s6, s6, 7")
        A("s_add_u32 s33, s33, %d\ns_cmp_eq_u32 s33, %d\ns_cselect_b32 s33, 0, s33" % (SLOT, 3*SLOT))
        if first: A("s_waitcnt vmcnt(6)")
        A("s_barrier")
        rd = ["ds_read_b64_tr_b16 %s, v%d offset:%d" % (v(WQ[b] + 8*mat + 4*p + 2*h, 2), VW[0], 8192*mat + 4096*p + 512*h) for mat in range(3) for p in range(2) for h in range(2)]
        rd += ["ds_read_b128 %s, v%d offset:%d" % (v(XQ[b] + 8*n + 4*p, 4), VX[p], 2048*n) for n in range(4) for p in range(2)]
        A(".p2align 3")
        for k in range(24):
            if k < 20:
                if k == 14: A("s_waitcnt lgkmcnt(8)\ns_nop 0")
                A(rd[k])
            if not first: q_mfma(b ^ 1, k)
        A("s_waitcnt vmcnt(0) lgkmcnt(0)" if first else "s_waitcnt lgkmcnt(0)")
    q_stage(0, True)
    A("L_QLOOP:")
    q_stage(1); q_stage(0)
    A("s_add_u32 s5, s5, 1\ns_cmp_lt_u32 s5, 3\ns_cbranch_scc1 L_QLOOP")
    nonce_load(5)
    q_stage(1)
    A("s_barrier")
    for k in range(24): q_mfma(1, k)
    ST(2)
    A("s_lshl_b32 s7, s26, 2\ns_add_u32 s7, s7, s24")
    A("s_lshl_b32 s31, s7, 16\ns_lshl_b32 s32, s25, 11\ns_add_u32 s31, s31, s32\ns_add_u32 s32, s31, 0x%x" % WS_V)
    A("s_mov_b32 s20, %s\ns_mov_b32 s21, s20" % f32(QSCALE))
    for n in range(4):
        T = 152 + 4*n if False else 184 + 4*n
        c, d = QA + 4*n, QA + 16 + 4*n
        A("v_pk_mul_f32 %s, %s, s[20:21]\nv_pk_mul_f32 %s, %s, s[20:21]" % (v(c, 2), v(c, 2), v(c + 2, 2), v(c + 2, 2)))
        A("v_cvt_pk_bf16_f32 v%d, v%d, v%d\nv_cvt_pk_bf16_f32 v%d, v%d, v%d" % (T + 2, d, d + 1, T + 3, d + 2, d + 3))
        A("v_cvt_pk_bf16_f32 v%d, v%d, v%d\nv_cvt_pk_bf16_f32 v%d, v%d, v%d" % (T, c, c + 1, T + 1, c + 2, c + 3))
        A("s_nop 1")
        A("v_permlane16_swap_b32 v%d, v%d\nv_permlane16_swap_b32 v%d, v%d" % (T, T + 2, T + 1, T + 3))
        A("buffer_store_dwordx4 %s, v182, s[16:19], s31 offen offset:%d sc1" % (v(T, 4), 1024*(n >> 1) + 256*(n & 1)))
    for mp in range(2):
        T = 200 + 4*mp
        c = QA + 32 + 8*mp
        for i in range(4): A("v_cvt_pk_bf16_f32 v%d, v%d, v%d" % (T + i, c + 2*i, c + 2*i + 1))
        A("s_nop 1")
        A("v_permlane16_swap_b32 v%d, v%d\nv_permlane16_swap_b32 v%d, v%d" % (T, T + 2, T + 1, T + 3))
        A("buffer_store_dwordx4 %s, v183, s[16:19], s32 offen offset:%d sc1" % (v(T, 4), 1024*mp))
    A("s_lshl_b32 s21, s7, 7\ns_lshl_b32 s32, s25, 2\ns_add_u32 s21, s21, s32\ns_add_u32 s21, s21, 0x%x" % FL_F1)
    S = (16, 32); O = (48, 64); NM = (80, 96)
    Q = (112, 116); KF = (120, 124); K0 = 128; VF = (132, 140)
    IDX, KA, VA, VC, VAB, VCW = 148, 149, 150, 151, 12, 13
    ALL4 = 0x01010101
    A("s_and_b32 s25, s3, 1\ns_xor_b32 s25, s25, 1\ns_lshl_b32 s25, s25, 2\ns_lshr_b32 s5, s3, 1\ns_add_u32 s25, s25, s5")
    A("s_lshl_b32 s25, s25, 2\ns_lshr_b32 s5, s2, 6\ns_add_u32 s25, s25, s5\ns_bfe_u32 s26, s2, 0x30003")
    A("s_lshl_b32 s7, s26, 2\ns_add_u32 s7, s7, s24")
    A("v_mov_b32 v%d, 0xdddddddd" % IDX)
    zero(VF[0], 16)
    A("s_mov_b32 exec_lo, 0x00110000\ns_mov_b32 exec_hi, 0x00110000")
    A("v_mov_b32 v6, 0x3f803f80\nv_mov_b32 v7, 0x3f803f80")
    for i in range(0, 16, 2): A("v_mov_b64 %s, v[6:7]" % v(VF[0] + i, 2))
    A("s_mov_b64 exec, -1")
    A("s_mov_b32 s22, 0x0000ffff\ns_mov_b32 s23, 0x0000ffff")
    A("v_and_b32 v8, 15, v1\nv_lshlrev_b32 v8, 4, v8\nv_lshrrev_b32 v9, 5, v1\nv_lshl_add_u32 v8, v9, 8, v8")
    A("v_add_u32 v%d, 0x2000, v8" % VAB)
    def att_reset():
        zero(O[0], 32)
        A("v_mov_b32 v%d, v%d\nv_mov_b32 v%d, v%d\nv_mov_b32 v%d, 0\nv_mov_b32 v%d, s24" % (KA, VL16, VA, VAB, VC, VCW))
        A("s_mov_b32 s9, 0x76123450")
    att_reset()
    A("s_lshl_b32 s28, s25, 16")
    A("s_lshl_b32 s29, s7, 11\ns_add_u32 s29, s29, s28")
    A("s_add_u32 s28, s28, 0x%x" % WS_K)
    A("s_lshl_b32 s33, s24, 11")
    A("s_add_u32 s30, s28, s33\ns_add_u32 s31, s30, 0x%x" % (WS_V - WS_K))
    A("s_mov_b32 s20, 0\ns_mov_b32 s6, 6\ns_mov_b32 s15, 0x%x" % ALL4)
    A("s_mov_b32 s3, 0xc3\ns_mov_b32 s10, 4")
    if NS:
        A("s_sub_u32 s32, s4, 4\ns_cmp_lt_u32 s32, 3\ns_cselect_b32 s0, 7, 64\ns_cselect_b32 s3, 0xd3, s3\ns_cselect_b32 s10, 0x24, 4")
        A("s_lshl_b32 s1, s25, 5\ns_add_u32 s1, s1, s7\ns_lshl_b32 s1, s1, 13\ns_add_u32 s1, s1, 0x%x" % WS_Z1)
    A("v_and_b32 v18, 31, v1\nv_lshlrev_b32 v18, 2, v18")
    nonce_get(5, 6)
    A("s_waitcnt vmcnt(0)")
    set_flag("s21", 17)
    if opt.get("d23", 0) == 2: A("ds_write_b8 v%d, v%d offset:%d" % (VCW, VONE, L_CNTA))
    ST(3)
    A("s_lshl_b32 s21, s25, 7\ns_add_u32 s21, s21, 0x%x" % FL_F1)
    poll(18, "s21", 20, sleep=opt.get("sl1", 3))
    ST(4)
    A("buffer_load_dwordx4 %s, v%d, s[16:19], s28 offen sc1" % (v(K0, 4), VL16))
    A("buffer_load_dwordx4 %s, v%d, s[16:19], s29 offen sc1" % (v(Q[0], 4), VL16))
    A("buffer_load_dwordx4 %s, v%d, s[16:19], s29 offen offset:1024 sc1" % (v(Q[1], 4), VL16))
    def kv_dma(first=False):
        if first:
            A("s_cmp_eq_u32 s24, 0\ns_cselect_b32 s32, 1024, 0\ns_add_u32 m0, s33, s32\ns_add_u32 s32, s32, s30")
            A("buffer_load_dwordx4 v%d, s[16:19], s32 offen sc1 lds" % VL16)
            A("s_mov_b32 m0, s33\ns_mov_b32 s11, s33\ns_mov_b32 s32, 0\ns_mov_b32 s35, s30")
        else:
            A("s_bfe_u32 s32, s9, 0x30004\ns_lshl_b32 s11, s32, 14\ns_add_u32 s11, s11, s33\ns_mov_b32 m0, s11\ns_lshl_b32 s32, s32, 13\ns_add_u32 s35, s30, s32")
            A("buffer_load_dwordx4 v%d, s[16:19], s35 offen sc1 lds" % VL16)
        A("buffer_load_dwordx4 v%d, s[16:19], s35 offen offset:1024 sc1 lds" % VL16)
        A("s_add_u32 m0, s11, 8192\ns_add_u32 s35, s31, s32")
        A("buffer_load_dwordx4 v%d, s[16:19], s35 offen sc1 lds" % VL16)
        A("buffer_load_dwordx4 v%d, s[16:19], s35 offen offset:1024 sc1 lds" % VL16)
    kv_dma(True)
    A("s_lshl_b32 s28, s7, 7\ns_add_u32 s28, s28, 0x%x" % FL_F0)
    A("s_waitcnt vmcnt(4)")
    for sd in range(2):
        A("v_mfma_f32_32x32x16_bf16 %s, %s, %s, 0" % (v(S[sd], 16), v(K0, 4), v(Q[sd], 4)))
    kv_dma()
    A("s_waitcnt vmcnt(4)")
    A("ds_write_b8 v%d, v%d offset:%d" % (VCW, VONE, L_CNTKV))
    for sd in range(2):
        A("v_max3_f32 v%d, v%d, v%d, v%d" % (6 + 2*sd, S[sd], S[sd] + 1, S[sd] + 2))
        for i in range(3, 15, 2):
            A("v_max3_f32 v%d, v%d, v%d, v%d" % (6 + 2*sd, 6 + 2*sd, S[sd] + i, S[sd] + i + 1))
        A("v_max_f32 v%d, v%d, v%d" % (6 + 2*sd, 6 + 2*sd, S[sd] + 15))
    A("L_SETMAX:")
    A("v_mov_b32 v7, v6\nv_mov_b32 v9, v8\ns_nop 1")
    A("v_permlane32_swap_b32 v6, v7\nv_permlane32_swap_b32 v8, v9\ns_nop 1")
    A("v_max_f32 v6, v6, v7\nv_max_f32 v8, v8, v9\nv_sub_f32 v6, 0, v6\nv_sub_f32 v8, 0, v8\nv_mov_b32 v7, v6\nv_mov_b32 v9, v8")
    for i in range(0, 16, 2): A("v_mov_b64 %s, v[6:7]" % v(NM[0] + i, 2))
    A("v_mov_b64 %s, %s\nv_mov_b64 %s, %s" % (v(KF[0], 2), v(K0, 2), v(KF[0] + 2, 2), v(K0 + 2, 2)))
    A("v_mfma_f32_32x32x16_bf16 %s, %s, %s, %s" % (v(S[0], 16), v(K0, 4), v(Q[0], 4), v(NM[0], 16)))
    for i in range(0, 16, 2): A("v_mov_b64 %s, v[8:9]" % v(NM[1] + i, 2))
    zero(S[1] + 8, 8)
    lds_wait(L_CNTKV, ALL4, 5)
    A("s_mov_b64 exec, s[22:23]")
    A("ds_read_b128 %s, v%d" % (v(VF[0], 4), VA))
    A("ds_read_b128 %s, v%d offset:512" % (v(VF[0] + 4, 4), VA))
    A("s_mov_b64 exec, -1")
    A("ds_read_b128 %s, v%d offset:1024" % (v(KF[1], 4), KA))
    ST(5)
    A("s_waitcnt lgkmcnt(0)")
    A("s_setprio 1")
    A("s_mov_b32 s5, 0")
    A(".p2align 3")
    A("L_ALOOP:")
    def ex(sd, a_, b_):
        for i in range(a_, b_): A("v_exp_f32 v%d, v%d" % (S[sd] + i, S[sd] + i))
    def sm(sd, vf, half):
        A("v_smfmac_f32_32x32x32_bf16 %s, %s, %s, v%d" % (v(O[sd], 16), v(vf + 4*half, 4), v(S[sd] + 8*half, 8), IDX))
    toff = lambda t: (t & 7)*1024
    TD, TA = opt.get('td', 5), opt.get('ta', 2)
    assert (TD, TA) == (5, 2)
    slotA = {0: "s_lshr_b32 s9, s9, 4", 1: "s_and_b32 s8, s9, 7", 2: "s_lshl_b32 s8, s8, 14", 3: "s_lshl_b32 s14, s12, 13",
             4: "s_add_u32 s13, s30, s14", 5: "s_mov_b32 m0, s11", 6: "s_nop 0", 7: "s_add_u32 s5, s5, 1"}
    slotB = {0: "s_nop 0", 1: "s_lshl_b32 s11, s12, 14", 3: "s_add_u32 s11, s11, s33", 4: "s_add_u32 s14, s31, s14", 6: "s_nop 0", 7: "s_nop 0"}
    for t in range(8):
        kc, kn = KF[t & 1], KF[(t + 1) & 1]
        vc, vn = VF[t & 1], VF[(t + 1) & 1]
        ex(0, 0, 2)
        sm(1, vn, 1)
        A("s_mov_b64 exec, s[22:23]")
        A(slotA[t])
        A("ds_read_b128 %s, v%d offset:%d" % (v(vn, 4), VA, toff(t + 1)))
        A("ds_read_b128 %s, v%d offset:%d" % (v(vn + 4, 4), VA, toff(t + 1) + 512))
        A("s_mov_b64 exec, -1")
        ex(0, 2, 5)
        A("v_mfma_f32_32x32x16_bf16 %s, %s, %s, %s" % (v(S[1], 16), v(kc, 4), v(Q[1], 4), v(NM[1], 16)))
        if t == 0: A("s_bfe_u32 s12, s9, 0x30004")
        ex(0, 5, 11)
        sm(0, vc, 0)
        if t == TD:
            A("s_bitcmp1_b32 s3, s5\ns_cbranch_scc1 L_TD")
            A("L_XFREE:")
            A("buffer_load_dwordx4 v%d, s[16:19], s13 offen sc1 lds" % VL16)
            A("buffer_load_dwordx4 v%d, s[16:19], s13 offen offset:1024 sc1 lds" % VL16)
            A("s_add_u32 m0, s11, 8192")
            ex(0, 11, 13)
            A("buffer_load_dwordx4 v%d, s[16:19], s14 offen sc1 lds" % VL16)
            A("buffer_load_dwordx4 v%d, s[16:19], s14 offen offset:1024 sc1 lds" % VL16)
            A("L_NODMA:")
            A("v_exp_f32_e64 v%d, v%d" % (S[0] + 13, S[0] + 13))
            ex(0, 14, 16)
        elif t == TA:
            A("s_waitcnt vmcnt(0)")
            A("s_bitcmp1_b32 s10, s5")
            A("ds_write_b8 v%d, v%d offset:%d" % (VCW, VONE, L_CNTKV + 4))
            A("v_exp_f32_e64 v%d, v%d" % (S[0] + 11, S[0] + 11))
            ex(0, 12, 16)
        else:
            A(slotB[t])
            ex(0, 11, 16)
        ex(1, 0, 2)
        sm(0, vc, 1)
        A("s_waitcnt lgkmcnt(%d)" % (3 if t == TA else 2))
        if t == TA:
            A("s_cbranch_scc1 L_TA")
            A("L_NOG:")
            A("v_exp_f32_e64 v%d, v%d" % (S[1] + 2, S[1] + 2))
            ex(1, 3, 5)
        else:
            ex(1, 2, 5)
        A("v_mfma_f32_32x32x16_bf16 %s, %s, %s, %s" % (v(S[0], 16), v(kn, 4), v(Q[0], 4), v(NM[0], 16)))
        if t == 6: A("v_cmp_ne_u32_e64 vcc, s15, v5\nv_add_u32 v%d, s8, v%d\nv_add_u32 v%d, s8, v%d" % (KA, VL16, VA, VAB))
        if t == 7: A("v_add_u32 v%d, 4, v%d\nv_add_u32 v%d, 4, v%d" % (VCW, VCW, VC, VC))
        ex(1, 5, 11)
        sm(1, vc, 0)
        A("s_waitcnt lgkmcnt(0)")
        if t == 6:
            A("s_cbranch_vccnz L_KVWAIT")
            A("L_KVOK:")
        else:
            A("s_cmp_lt_u32 s5, 8" if t == 7 else ("s_cmp_eq_u32 s5, s0" if NS and t == 7 - NS else "s_nop 0"))
        A("ds_read_b128 %s, v%d offset:%d" % (v(kc, 4), KA, toff(t + 2)))
        if t == 5: A("ds_read_b32 v5, v%d offset:%d" % (VC, L_CNTKV + 4))
        if t == 7:
            ex(1, 11, 16)
        elif NS and t == 7 - NS:
            ex(1, 11, 16)
            A("s_cbranch_scc1 L_AEXIT")
        else:
            A("v_exp_f32_e64 v%d, v%d" % (S[1] + 11, S[1] + 11))
            ex(1, 12, 16)
    A("s_cbranch_scc1 L_ALOOP")
    A("s_nop 0")
    sm(1, VF[1], 1)
    A("s_setprio 3")
    A("L_AJOIN:")
    if opt.get("sig", 0) == 0: A("s_lshl_b32 s32, s24, 2\nv_mov_b32 v5, s32\nds_write_b32 v5, v%d offset:%d" % (VONE, L_CNTD))
    ST(6)
    A(".p2align 3")
    A("v_add_f32 v5, abs(v%d), abs(v%d)" % (O[0] + 8, O[0]))
    for i in range(1, 8): A("v_add_f32 v5, v5, abs(v%d)" % (O[0] + i))
    def o_pack(sd):
        A("v_rcp_f32 v%d, v%d" % (8, O[sd] + 8))
        A("s_nop 0")
        A("v_mul_f32 v8, v8, v%d" % (10 + sd))
        A("s_nop 0")
        for i in range(4): A("v_pk_mul_f32 %s, %s, v[8:9] op_sel_hi:[1,0]" % (v(160 + 2*i, 2), v(O[sd] + 2*i, 2)))
        for i in range(4): A("v_cvt_pk_bf16_f32 v%d, v%d, v%d" % (152 + 4*sd + i, 160 + 2*i, 161 + 2*i))
        for i in range(4): A("v_min_u32 v%d, -2, v%d" % (152 + 4*sd + i, 152 + 4*sd + i))
    o_pack(0)
    for i in range(9): A("v_add_f32 v5, v5, abs(v%d)" % (O[1] + i))
    A("v_mov_b32 v6, 0x207")
    A("v_cmp_class_f32 vcc, v5, v6")
    o_pack(1)
    A("s_cmp_lg_u32 s20, 0\ns_cbranch_scc1 L_AFIN")
    A("s_cbranch_vccnz L_REDO")
    A("L_AFIN:")
    for sd in range(2):
        A("buffer_store_dwordx4 %s, v14, s[16:19], s21 offen offset:%d sc1" % (v(152 + 4*sd, 4), 2048*sd))
    if opt.get("sig", 0) == 1: A("s_lshl_b32 s32, s24, 2\nv_mov_b32 v5, s32\nds_write_b32 v5, v%d offset:%d" % (VONE, L_CNTD))
    ST(7)
    A("s_barrier\ns_barrier")
    A("s_branch L_FIN")
    if NS:
        PR = 168
        A("L_AEXIT:")
        A("s_setprio 3")
        sm(1, VF[(7 - NS) & 1], 1)
        for i in range(4): A("v_pk_add_f32 %s, %s, %s" % (v(O[0] + 2*i, 2), v(O[0] + 2*i, 2), v(PR + 2*i, 2)))
        A("v_add_f32 v%d, v%d, v%d" % (O[0] + 8, O[0] + 8, PR + 16))
        A("s_nop 6")
        for i in range(4): A("v_pk_add_f32 %s, %s, %s" % (v(O[1] + 2*i, 2), v(O[1] + 2*i, 2), v(PR + 8 + 2*i, 2)))
        A("v_add_f32 v%d, v%d, v%d" % (O[1] + 8, O[1] + 8, PR + 17))
        A("s_branch L_AJOIN")
        A("L_TD4:")
        A("s_add_u32 s32, s1, 6144")
        A("buffer_load_dword v15, v%d, s[16:19], s32 offen sc1" % VZ)
        A("s_branch L_XFREE")
        A("L_TA5:")
        A("s_add_u32 s32, s1, 6144")
        A("v_cmp_ne_u32 vcc, s27, v15")
        A("s_nop 4\ns_cbranch_vccz L_LATE3")
        poll(VZ, "s32", 15)
        A("L_LATE3:")
        for q in range(4):
            A("buffer_load_dwordx4 %s, v%d, s[16:19], s1 offen offset:%d sc1" % (v(PR + 4*q, 4), VL16, 1024*q))
        A("s_add_u32 s32, s1, 4096")
        A("buffer_load_dwordx2 %s, v%d, s[16:19], s32 offen sc1" % (v(PR + 16, 2), VL16))
        A("s_branch L_NOG")
    A("L_TD:")
    A("s_cmp_lt_u32 s5, s6\ns_cbranch_scc1 L_TD0")
    ex(0, 11, 13)
    A("s_branch L_NODMA")
    A("L_TD0:")
    A("s_cmp_lg_u32 s5, 0\ns_cbranch_scc1 L_TD1")
    lds_wait(L_CNTG, 4, 5)
    A("s_branch L_XFREE")
    A("L_TD1:")
    if NS: A("s_cmp_eq_u32 s5, 4\ns_cbranch_scc1 L_TD4")
    A("buffer_load_dword v10, v%d, s[16:19], s28 offen sc1" % VZ)
    A("v_and_b32 v14, 15, v1\nv_lshlrev_b32 v14, 4, v14\nv_bfe_u32 v8, v1, 4, 1\nv_lshl_add_u32 v14, v8, 10, v14\nv_lshrrev_b32 v8, 5, v1\nv_lshl_add_u32 v14, v8, 8, v14")
    A("s_mul_i32 s21, s7, 44\ns_lshr_b32 s32, s25, 1\ns_add_u32 s21, s21, s32\ns_add_u32 s21, s21, 28\ns_lshl_b32 s21, s21, 12")
    A("s_and_b32 s32, s25, 1\ns_lshl_b32 s32, s32, 9\ns_add_u32 s21, s21, s32\ns_add_u32 s21, s21, 0x%x" % WS_ACT)
    A("v_mov_b64 v[152:153], -1\nv_mov_b64 v[154:155], -1")
    for sd in range(2):
        A("buffer_store_dwordx4 v[152:155], v14, s[16:19], s21 offen offset:%d sc1" % (2048*sd))
    A("s_branch L_XFREE")
    A("L_TA:")
    if NS: A("s_cmp_eq_u32 s5, 5\ns_cbranch_scc1 L_TA5")
    A("s_lshl_b32 s29, s7, 12\ns_lshl_b32 s32, s25, 7\ns_add_u32 s29, s29, s32\ns_add_u32 s29, s29, 0x%x" % FL_F5)
    set_flag("s29", 5)
    A("v_cmp_ne_u32 vcc, s27, v10")
    A("s_nop 4\ns_cbranch_vccz L_GOK")
    poll(VZ, "s28", 10)
    A("L_GOK:")
    A("v_and_b32 v5, 31, v1\nv_lshlrev_b32 v5, 2, v5\ns_lshl_b32 s29, s7, 8\ns_add_u32 s29, s29, 0x%x" % WS_G)
    A("buffer_load_dword v10, v5, s[16:19], s29 offen sc1")
    A("buffer_load_dword v11, v5, s[16:19], s29 offen offset:128 sc1")
    A("s_branch L_NOG")
    A("L_KVWAIT:")
    lds_wait(L_CNTKV + 4, ALL4, 5, va=VC)
    A("s_branch L_KVOK")
    A("L_REDO:")
    A("s_waitcnt lgkmcnt(0)")
    A("s_mov_b32 s20, 1\ns_mov_b32 s0, 64\ns_mov_b32 s6, 0\ns_mov_b32 s10, 0\ns_mov_b32 s3, 0xff")
    A("s_lshl_b32 s32, s24, 2\nv_mov_b32 v5, s32\nds_write_b32 v5, v%d offset:%d" % (VONE, L_CNTD))
    lds_wait(L_CNTX, 4, 5, sleep=8)
    A("s_lshl_b32 s30, s25, 16\ns_add_u32 s30, s30, 0x%x\ns_mov_b32 s5, 16" % WS_K)
    A("L_RELOAD:")
    A("s_lshr_b32 s32, s5, 3\ns_lshl_b32 s32, s32, 14\ns_and_b32 s35, s5, 7\ns_lshl_b32 s35, s35, 10\ns_add_u32 s32, s32, s35")
    A("s_lshl_b32 s35, s5, 10\ns_add_u32 s35, s35, s30\ns_mov_b32 m0, s32\ns_nop 0")
    A("buffer_load_dwordx4 v%d, s[16:19], s35 offen sc1 lds" % VL16)
    A("s_add_u32 m0, s32, 8192\ns_add_u32 s35, s35, 0x%x" % (WS_V - WS_K))
    A("buffer_load_dwordx4 v%d, s[16:19], s35 offen sc1 lds" % VL16)
    A("s_waitcnt vmcnt(16)")
    A("s_add_u32 s5, s5, 1\ns_cmp_lt_u32 s5, 48\ns_cbranch_scc1 L_RELOAD")
    A("s_waitcnt vmcnt(0)")
    pass
    A("s_mov_b64 exec, s[22:23]")
    zero(VF[1] + 4, 4)
    A("s_mov_b64 exec, -1")
    A("v_mov_b32 v6, 0xff800000\nv_mov_b32 v8, 0xff800000")
    A("v_mov_b64 %s, %s\nv_mov_b64 %s, %s" % (v(KF[0], 2), v(K0, 2), v(KF[0] + 2, 2), v(K0 + 2, 2)))
    A("s_mov_b32 s5, 1\ns_nop 1")
    A("L_MAXL:")
    for sd in range(2):
        A("v_mfma_f32_32x32x16_bf16 %s, %s, %s, 0" % (v(S[sd], 16), v(KF[0], 4), v(Q[sd], 4)))
    A("s_lshr_b32 s32, s5, 3\ns_lshl_b32 s32, s32, 14\ns_and_b32 s35, s5, 7\ns_lshl_b32 s35, s35, 10\ns_add_u32 s32, s32, s35")
    A("v_add_u32 v%d, s32, v%d" % (KA, VL16))
    A("ds_read_b128 %s, v%d" % (v(KF[0], 4), KA))
    A("s_nop 15")
    for sd in range(2):
        for i in range(0, 16, 2):
            A("v_max3_f32 v%d, v%d, v%d, v%d" % (6 + 2*sd, 6 + 2*sd, S[sd] + i, S[sd] + i + 1))
    A("s_waitcnt lgkmcnt(0)")
    A("s_add_u32 s5, s5, 1\ns_cmp_lt_u32 s5, 65\ns_cbranch_scc1 L_MAXL")
    att_reset()
    A("s_branch L_SETMAX")

    A("L_GSTART:")
    A("s_setprio 2")
    common()
    A("s_sub_u32 s7, s24, 4")
    A("s_waitcnt lgkmcnt(0)")
    if opt.get("tlb0", 0) == 1:
        for p in (P_WIN, P_WQKV): A("s_load_dword s97, s[%d:%d], 0" % (p, p + 1))
    srd(A, 8, P_WIN, P_WIN + 1, 512*1792*2)
    srd(A, 16, P_WS, P_WS + 1, WS_USED)
    srd(A, 60, P_DBG, P_DBG + 1, 256)
    A("s_cmp_lg_u32 s7, 3\ns_cbranch_scc1 L_NOLEAD")
    zero(16, 4)
    A("ds_write_b128 v%d, v[16:19]" % VL16)
    A("s_cmp_lg_u32 s2, 25\ns_cbranch_scc1 L_NOLEAD")
    A("s_mov_b32 s31, 0x%x" % FL_EPOCH)
    A("buffer_load_dword v16, v%d, s[16:19], s31 offen sc0 sc1" % VZ)
    A("s_mov_b32 s32, 0x9e3779b1")
    A("s_waitcnt vmcnt(0)")
    A("v_mul_lo_u32 v16, v16, s32")
    A("v_add_u32 v16, 0x7f4a7c15, v16")
    A("v_max_u32 v16, 1, v16")
    A("s_mov_b64 exec, 1")
    A("buffer_store_dword v16, v%d, s[60:63], 0 offen sc0 sc1" % VZ)
    A("buffer_store_dword v16, v%d, s[16:19], s31 offen sc0 sc1" % VZ)
    A("s_mov_b64 exec, -1")
    A("L_NOLEAD:")
    A("s_lshr_b32 s22, s7, 1\ns_and_b32 s23, s7, 1")
    A("s_lshl_b32 s30, s7, 13\ns_add_u32 s30, s30, %d" % L_G)
    xr_setup(16)
    srd(A, 12, P_WQKV, P_WQKV + 1, 512*1536*2)
    A("v_lshrrev_b32 v16, 3, v1\ns_lshl_b32 s29, s7, 4\nv_add_u32 v16, s29, v16\nv_mul_u32_u24 v16, 3072, v16")
    A("v_bfe_u32 v17, v1, 4, 1\nv_lshlrev_b32 v17, 1, v17\nv_and_b32 v18, 7, v1\nv_xor_b32 v17, v17, v18\nv_lshlrev_b32 v17, 4, v17")
    A("s_lshl_b32 s28, s26, 7\nv_add3_u32 v%d, v16, v17, s28" % LQ[0])
    A("v_xor_b32 v%d, 64, v%d\nv_add_u32 v%d, %d, v%d" % (LQ[1], LQ[0], LQ[1], 8*3072 - 1024, LQ[1]))
    A("s_lshl_b32 s1, s7, 11\ns_add_u32 s1, s1, %d\ns_add_u32 s0, s6, 2\ns_and_b32 s0, s0, 7" % L_WQ)
    def g_ldq(i):
        A("s_mul_i32 s31, s0, %d" % (64*3072))
        for mat in range(3):
            A("s_add_u32 m0, s1, %d" % (SLOT*((i + 1) % 3) + 7168*mat))
            A(("s_add_u32 s0, s0, 1", "s_and_b32 s0, s0, 7", "s_nop 0")[mat])
            A("buffer_load_dwordx4 v%d, s[12:15], s31 offen offset:%d lds" % (LQ[0], 1024*mat))
            A("buffer_load_dwordx4 v%d, s[12:15], s31 offen offset:%d lds" % (LQ[1], 1024*mat + 1024))
    A("s_cmp_lt_u32 s4, 7\ns_cbranch_scc1 L_Z2S")
    A("s_waitcnt lgkmcnt(0)\ns_mov_b32 s10, 0")
    for i in range(8): A("s_barrier")
    A("s_branch L_ZEND")
    A("L_Z2S:")
    Z2 = 192
    XZ, WZ = (16, 64), (32, 80)
    A("s_lshl_b32 s32, s22, 13\ns_add_u32 s32, s32, %d" % (L_WQ + SLOT))
    wr_setup(16, "s32")
    A("v_mov_b32 v5, v%d" % VW[0])
    A("s_lshl_b32 s20, s23, 12\ns_add_u32 s20, s20, %d" % L_X)
    zero(Z2, 32); zero(XZ[1], 48)
    A("s_mov_b32 s33, 16384\ns_mov_b32 s5, 0\ns_mov_b32 s21, s6")
    def z_mfma(b, k):
        m, nn, p = k >> 2, (k >> 1) & 1, k & 1
        c = v(Z2 + 8*m + 4*nn, 4)
        A("v_mfma_f32_16x16x32_bf16 %s, %s, %s, %s" % (c, v(WZ[b] + 8*m + 4*p, 4), v(XZ[b] + 8*nn + 4*p, 4), c))
    A("s_waitcnt lgkmcnt(0)")
    A("L_ZLOOP:")
    for b in range(2):
        A("s_lshl_b32 s32, s21, 13\ns_add_u32 s32, s32, s20")
        A("v_add_u32 v%d, s32, v%d\nv_xor_b32 v%d, 64, v%d\nv_add_u32 v%d, s33, v5" % (VX[0], VXB, VX[1], VX[0], VW[0]))
        for m in range(1, 4): A("v_xor_b32 v%d, %d, v%d" % (VW[m], 32*m, VW[0]))
        A("s_add_u32 s21, s21, 1\ns_and_b32 s21, s21, 7")
        A("s_add_u32 s33, s33, %d\ns_cmp_eq_u32 s33, %d\ns_cselect_b32 s33, 0, s33" % (16384, 3*16384))
        A("s_barrier")
        rd = ["ds_read_b128 %s, v%d offset:%d" % (v(XZ[b] + 8*nn + 4*p, 4), VX[p], 2048*nn) for nn in range(2) for p in range(2)]
        rd += ["ds_read_b64_tr_b16 %s, v%d offset:%d" % (v(WZ[b] + 8*m + 4*p + 2*h, 2), VW[m], 4096*p + 512*h) for m in range(4) for p in range(2) for h in range(2)]
        A(".p2align 3")
        for k in range(16):
            if k < 10:
                if k == 7: A("s_waitcnt lgkmcnt(8)\ns_nop 0")
                A(rd[2*k]); A(rd[2*k + 1])
            z_mfma(b ^ 1, k)
        A("s_waitcnt lgkmcnt(0)")
    A("s_add_u32 s5, s5, 1\ns_cmp_lt_u32 s5, 4\ns_cbranch_scc1 L_ZLOOP")
    A("L_ZEND:")
    A("s_barrier")
    ST(1)
    g_ldq(10)
    for k in range(16): z_mfma(1, k)
    for i in range(9, 15):
        if i >= 10: A("s_waitcnt vmcnt(6)")
        A("s_barrier")
        if i <= 13: g_ldq(i + 2)
        if i == 9:
            A("s_mov_b32 s20, %s\ns_mov_b32 s21, %s" % (f32(GC2), f32(GC2)))
            A("v_mov_b32 v24, %s\nv_mov_b32 v25, %s\nv_mov_b32 v26, 1.0\nv_mov_b32 v27, 1.0" % (f32(GC1), f32(GC1)))
            A("s_mov_b32 s28, 3584")
            A("s_lshl_b32 s29, s4, 8\ns_lshl_b32 s32, s22, 7\ns_add_u32 s29, s29, s32")
            w_setup(16)
        if i == 10:
            A("s_sub_u32 s32, s30, 32768")
            wr_setup(20, "s32")
            A("s_lshl_b32 s32, s23, 6")
            for m in range(4): A("v_xor_b32 v%d, s32, v%d" % (VW[m], VW[m]))
    A("s_lshl_b32 s29, s28, 5\ns_lshl_b32 s3, s23, 3\ns_mul_i32 s3, s3, s29\ns_lshl_b32 s33, s29, 3\ns_add_u32 s33, s33, s3")
    A("s_and_b32 s6, s25, 3\ns_lshl_b32 s32, s6, 1\ns_mul_i32 s31, s32, s29\ns_add_u32 s31, s31, s3")
    A("s_lshl_b32 s5, s23, 15\ns_add_u32 s5, s5, %d" % L_X)
    nonce_load(28)
    w_dma(0); w_dma(1)
    def x_addr():
        A("s_lshl_b32 s32, s6, 13\ns_add_u32 s32, s32, s5")
        A("v_add_u32 v%d, s32, v%d\nv_xor_b32 v%d, 64, v%d" % (VX[0], VXB, VX[1], VX[0]))
        A("s_add_u32 s6, s6, 1\ns_and_b32 s6, s6, 3")
    x_addr()
    def st_loads():
        for j in range(7):
            A("buffer_load_dwordx4 %s, v%d, s[16:19], s%d offen offset:%d sc0 sc1" % (v(64 + 4*j, 4), VL16, j >> 2, 1024*(j & 3)))
        A("buffer_load_dword v92, v%d, s[16:19], s28 offen sc0 sc1" % VZ)
    A("s_waitcnt vmcnt(9)")
    A("s_barrier")
    A("s_barrier")
    ST(2)
    A("s_cmp_ge_u32 s4, 7\ns_cbranch_scc1 L_G7")
    SET = (64, 0)
    def d_reads(d):
        b = SET[d & 1]
        w = ["ds_read_b64_tr_b16 %s, v%d offset:%d" % (v(WS_(d) + 8*m + 4*p + 2*h, 2), VW[m], soff(2*(d & 1) + p) + 512*h) for m in range(4) for p in range(2) for h in range(2)]
        x = ["ds_read_b128 %s, v%d offset:%d" % (v(XS_(d) + 8*n + 4*p, 4), VX[p], 2048*n) for n in range(4) for p in range(2)]
        return w + x
    def d_mfma(d, fill):
        b = SET[d & 1]
        fill = list(fill)
        for k in range(32):
            m, n, p = k >> 3, (k >> 1) & 3, k & 1
            c = v(ACC + 16*m + 4*n, 4)
            A("v_mfma_f32_16x16x32_bf16 %s, %s, %s, %s" % (c, v(WS_(d) + 8*m + 4*p, 4), v(XS_(d) + 8*n + 4*p, 4), "0" if (d == 0 and p == 0) else c))
            if fill: A(fill.pop(0))
    def with_waits(rd):
        return rd[:12] + ["s_waitcnt lgkmcnt(3)\ns_nop 0\n" + rd[12]] + rd[13:]
    XS_ = lambda d: (64, 32)[d & 1]
    WS_ = lambda d: (96, 224)[d & 1]
    w_dma(2); w_dma(3)
    A("s_waitcnt vmcnt(8)")
    for l in with_waits(d_reads(0)): A(l)
    emit_gelu(A, Z2, 32, 16, 24, 20, 26)
    for nn in range(2):
        sA, sB = 16 + 2*nn, 20 + 2*nn
        for m in range(4):
            for h in range(2):
                c = Z2 + 8*m + 4*nn + 2*h
                if m == 0 and h == 0:
                    A("v_pk_mul_f32 %s, %s, %s" % (v(sB, 2), v(c, 2), v(c, 2)))
                    A("v_pk_add_f32 %s, %s, %s" % (v(sA, 2), v(c, 2), v(c + 2, 2)))
                else:
                    A("v_pk_fma_f32 %s, %s, %s, %s" % (v(sB, 2), v(c, 2), v(c, 2), v(sB, 2)))
                    if m > 0: A("v_pk_add_f32 %s, %s, %s" % (v(sA, 2), v(sA, 2), v(c, 2)))
    for i in range(4): A("v_add_f32 v%d, v%d, v%d" % (16 + 2*i, 16 + 2*i, 17 + 2*i))
    A("s_nop 1")
    A("v_permlane16_swap_b32 v16, v18\nv_permlane16_swap_b32 v20, v22\ns_nop 1")
    A("v_add_f32 v16, v16, v18\nv_add_f32 v18, v20, v22\nv_mov_b32 v17, v16\nv_mov_b32 v19, v18\ns_nop 1")
    A("v_permlane32_swap_b32 v16, v17\nv_permlane32_swap_b32 v18, v19\ns_nop 1")
    A("v_add_f32 v16, v16, v17\nv_add_f32 v18, v18, v19")
    nonce_get(28, 8)
    A("v_mov_b32 v17, s27\nv_mov_b32 v19, s27")
    A("s_lshl_b32 s32, s25, 1\ns_add_u32 s32, s32, s23\ns_mul_i32 s0, s32, 7168\ns_add_u32 s0, s0, 0x%x" % WS_ST)
    A("s_lshl_b32 s32, s4, 1\ns_add_u32 s32, s32, s22\ns_lshl_b32 s32, s32, 9\ns_add_u32 s32, s32, s0")
    A("s_mov_b32 exec_hi, 0")
    A("buffer_store_dwordx4 v[16:19], v%d, s[16:19], s32 offen sc0 sc1" % VL16)
    A("s_mov_b32 exec_hi, -1")
    A("s_add_u32 s1, s0, 4096")
    if opt.get("d23", 0):
        A("s_waitcnt lgkmcnt(0)")
        if opt["d23"] == 2: lds_wait(L_CNTA, 0x01010101, 29)
        w_dma(0); w_dma(1)
        x_addr()
        A("s_waitcnt vmcnt(9)")
        for l in with_waits(d_reads(1)): A(l)
        A("s_waitcnt lgkmcnt(8)")
        w_dma(2); w_dma(3)
        x_addr()
        A(".p2align 3")
        d_mfma(0, [])
        A("s_waitcnt vmcnt(8) lgkmcnt(0)\ns_nop 0")
    else:
        A("s_waitcnt lgkmcnt(0)")
        w_dma(0); w_dma(1)
        x_addr()
        A("s_waitcnt vmcnt(9)")
        A(".p2align 3")
        d_mfma(0, with_waits(d_reads(1)))
        A("s_waitcnt lgkmcnt(0)")
        w_dma(2); w_dma(3)
        x_addr()
        A("s_waitcnt vmcnt(8)")
        A(".p2align 3")
    d_mfma(1, with_waits(d_reads(2)))
    x_addr()
    A("s_waitcnt vmcnt(0) lgkmcnt(0)")
    A(".p2align 3")
    d_mfma(2, with_waits(d_reads(3)))
    A("s_lshl_b32 s28, s25, 7\ns_add_u32 s28, s28, 0x%x" % FL_F0)
    st_loads()
    A("v_add_u32 v16, s30, v%d\nv_xor_b32 v17, 0x2000, v16" % VL16)
    A("s_waitcnt lgkmcnt(0)")
    for k in range(32):
        m, n, p = (k >> 3) ^ 2, (k >> 1) & 3, k & 1
        c = v(ACC + 16*m + 4*n, 4)
        A("v_mfma_f32_16x16x32_bf16 %s, %s, %s, %s" % (c, v(WS_(1) + 8*m + 4*p, 4), v(XS_(1) + 8*n + 4*p, 4), c))
        if k >= 16 and (k & 1):
            q = (k - 16) >> 1
            A("ds_write_b128 v16, %s offset:%d" % (v(ACC + 32 + 4*q, 4), 1024*q))
    A("v_and_b32 v60, 15, v1\nv_lshlrev_b32 v60, 7, v60\nv_bfe_u32 v61, v1, 1, 1\nv_lshl_add_u32 v60, v61, 5, v60")
    A("v_bfe_u32 v61, v1, 3, 1\nv_xor_b32 v61, s23, v61\nv_lshl_add_u32 v60, v61, 6, v60\nv_lshrrev_b32 v61, 4, v1\nv_lshl_add_u32 v60, v61, 3, v60")
    A("s_sub_u32 s32, s30, 32768\nv_add_u32 v60, s32, v60")
    for m in range(1, 4): A("v_xor_b32 v%d, %d, v60" % (60 + m, 32*m))
    A("s_waitcnt lgkmcnt(0)")
    arrive(L_CNTR)
    ST(3)
    Lp = A.newlabel("SP")
    A("s_mov_b32 s34, 0")
    A("s_waitcnt vmcnt(0)")
    A(Lp + ":")
    A("v_xor_b32 v20, s27, v92")
    for j in range(7):
        for q in (1, 3):
            A("v_xor_b32 v21, s27, v%d\nv_or_b32 v20, v20, v21" % (64 + 4*j + q))
    A("v_cmp_ne_u32 vcc, 0, v20")
    A("s_add_u32 s34, s34, 1\ns_cmp_ge_u32 s34, %d\ns_cbranch_scc1 %s_x" % (SPIN_MAX // 16, Lp))
    A("s_cbranch_vccz %s_x" % Lp)
    st_loads()
    A("s_waitcnt vmcnt(0)")
    A("s_branch %s" % Lp)
    A(Lp + "_x:")
    ST(4)
    srd(A, 8, P_BSP, P_BSP + 1, 4096)
    A("v_and_b32 v5, 15, v1\nv_lshlrev_b32 v6, 1, v5\nv_lshlrev_b32 v5, 2, v5")
    A("s_lshl_b32 s28, s25, 7\ns_lshl_b32 s29, s25, 8\ns_add_u32 s29, s29, 0x%x" % WS_G)
    for n in range(4):
        A("buffer_load_ushort v%d, v6, s[8:11], s28 offen offset:%d" % (112 + 2*n, 32*n))
        A("buffer_load_dword v%d, v5, s[16:19], s29 offen offset:%d sc1" % (120 + 2*n, 64*n))
    A("v_mov_b32 v32, v64\nv_mov_b32 v34, v66")
    for j in range(1, 7):
        A("v_add_f32 v32, v32, v%d\nv_add_f32 v34, v34, v%d" % (64 + 4*j, 66 + 4*j))
    A("v_mov_b32 v33, v32\nv_mov_b32 v35, v34\ns_nop 1")
    A("v_permlane32_swap_b32 v32, v33\nv_permlane32_swap_b32 v34, v35\ns_nop 1")
    A("v_add_f32 v32, v32, v33\nv_add_f32 v34, v34, v35")
    A("v_mul_f32 v32, %s, v32\nv_mul_f32 v34, %s, v34" % (f32(1.0/896), f32(1.0/896)))
    A("v_fma_f32 v34, -v32, v32, v34\nv_max_f32 v34, 0, v34\nv_add_f32 v34, %s, v34" % f32(1e-5))
    A("v_rsq_f32 v36, v34\ns_nop 0\nv_mul_f32 v40, v32, v36\nv_sub_f32 v40, 0, v40")
    A("v_mov_b32 v38, v36\nv_mov_b32 v42, v40\ns_nop 1")
    A("v_permlane16_swap_b32 v36, v38\nv_permlane16_swap_b32 v40, v42")
    A("s_waitcnt lgkmcnt(0)\ns_nop 0")
    for m in range(4):
        for nn in range(2):
            c = Z2 + 8*m + 4*nn
            T = 44 + 2*(2*m + nn)
            for h in range(2):
                A("v_pk_fma_f32 %s, %s, %s, %s op_sel_hi:[1,0,0]" % (v(c + 2*h, 2), v(c + 2*h, 2), v(36 + 2*nn, 2), v(40 + 2*nn, 2)))
            A("v_cvt_pk_bf16_f32 v%d, v%d, v%d\nv_cvt_pk_bf16_f32 v%d, v%d, v%d" % (T, c, c + 1, T + 1, c + 2, c + 3))
            A("ds_write_b64 v%d, %s offset:%d" % (60 + m, v(T, 2), 2048*nn))
    A("s_lshl_b32 s0, s4, 5\ns_add_u32 s0, s0, s25\ns_lshl_b32 s0, s0, 14\ns_lshl_b32 s32, s22, 13\ns_add_u32 s0, s0, s32")
    A("s_lshl_b32 s32, s23, 10\ns_add_u32 s0, s0, s32\ns_add_u32 s0, s0, 0x%x\ns_add_u32 s1, s0, 4096" % WS_Z2N)
    A("s_waitcnt lgkmcnt(0)")
    for l in w_reads(96, 2): A(l)
    A("s_waitcnt lgkmcnt(0)")
    for m in range(4):
        A("buffer_store_dwordx4 %s, v%d, s[16:19], s%d offen offset:%d sc1" % (v(96 + 4*m, 4), VL16, m >> 1, 2048*(m & 1)))
    arrive(L_CNTG)
    A("s_lshl_b32 s31, s4, 7\ns_lshl_b32 s32, s25, 2\ns_add_u32 s31, s31, s32\ns_add_u32 s31, s31, s7\ns_lshl_b32 s31, s31, 7\ns_add_u32 s31, s31, 0x%x" % FL_F3)
    A("v_mov_b32 v24, %s\nv_mov_b32 v25, %s\nv_mov_b32 v26, 1.0\nv_mov_b32 v27, 1.0" % (f32(GC1), f32(GC1)))
    lds_wait(L_CNTR, 4, 18)
    for q in range(8):
        A("ds_read_b128 %s, v17 offset:%d" % (v(64 + 4*q, 4), 1024*q))
    A("s_waitcnt lgkmcnt(0)")
    arrive(L_CNTR)
    for i in range(16):
        A("v_pk_add_f32 %s, %s, %s" % (v(ACC + 2*i, 2), v(ACC + 2*i, 2), v(64 + 2*i, 2)))
    F3N = opt.get("fl3", 8)
    emit_gelu(A, ACC, F3N, 16, 24, 20, 26)
    A("s_waitcnt vmcnt(0)")
    set_flag("s31", 28)
    emit_gelu(A, ACC + F3N, 32 - F3N, 16, 24, 20, 26)
    for n in range(4):
        A("v_lshlrev_b32 v%d, 16, v%d\nv_sub_f32 v%d, 1.0, v%d\nv_mov_b32 v%d, v%d" % (112 + 2*n, 112 + 2*n, 120 + 2*n, 120 + 2*n, 113 + 2*n, 112 + 2*n))
    for n in range(4):
        for mm in range(2):
            c = ACC + 16*mm + 4*n
            for h in range(2):
                A("v_pk_mul_f32 %s, %s, %s op_sel_hi:[1,0]" % (v(c + 2*h, 2), v(c + 2*h, 2), v(120 + 2*n, 2)))
            A("v_cvt_pk_bf16_f32 v%d, v%d, v%d\nv_cvt_pk_bf16_f32 v%d, v%d, v%d" % (16 + 4*n + 2*mm, c, c + 1, 17 + 4*n + 2*mm, c + 2, c + 3))
            A("v_mov_b64 %s, %s\nv_mov_b64 %s, %s" % (v(c, 2), v(112 + 2*n, 2), v(c + 2, 2), v(112 + 2*n, 2)))
    ST(5)
    WSP, ZR = 32, 64
    srd(A, 12, P_WSP, P_WSP + 1, 2048*2048*2)
    A("v_lshrrev_b32 v5, 3, v1\nv_and_b32 v6, 7, v1\nv_lshrrev_b32 v7, 4, v1\nv_xor_b32 v6, v6, v7")
    A("s_lshl_b32 s28, s25, 6\nv_add_u32 v5, s28, v5\nv_lshlrev_b32 v5, 12, v5\nv_lshl_add_u32 v5, v6, 4, v5")
    A("v_xor_b32 v6, 64, v5\nv_add_u32 v6, %d, v6" % (32768 - 1024))
    A("v_add_u32 v7, %d, v5\nv_add_u32 v8, %d, v6" % (2*(32768 - 1024), 2*(32768 - 1024)))
    if opt.get("srot", 0) == 1: A("s_lshl_b32 s6, s26, 1\ns_add_u32 s6, s6, s25\ns_and_b32 s6, s6, 7")
    elif opt.get("srot") == 2: A("s_lshl_b32 s6, s26, 1\ns_and_b32 s6, s6, 7")
    else: A("s_mov_b32 s6, 0")
    A("s_lshl_b32 s3, s7, 10")
    def sp_dma():
        A("s_lshl_b32 s31, s6, 7\ns_add_u32 s31, s31, s3")
        for hf in range(2):
            A("s_add_u32 m0, s30, %d" % (4096*hf))
            A("s_add_u32 s32, s31, %d" % (131072*hf))
            for q in range(4):
                A("buffer_load_dwordx4 v%d, s[12:15], s32 offen offset:%d lds" % (5 + q, 1024*q))
    lds_wait(L_CNTR, 8, 32)
    sp_dma()
    A("v_add_u32 v%d, s30, v%d\nv_xor_b32 v%d, 64, v%d" % (VX[0], VXB, VX[1], VX[0]))
    for mu in range(4):
        A("s_add_u32 s32, s7, %d\ns_and_b32 s32, s32, 3\ns_lshl_b32 s32, s32, 12\nv_add_u32 v%d, s32, v%d" % (mu, 9 + mu, VL16))
    A("s_lshl_b32 s33, s4, 5\ns_lshl_b32 s32, s7, 3\ns_add_u32 s33, s33, s32\ns_lshl_b32 s33, s33, 14\ns_add_u32 s0, s33, 0x%x" % WS_Z2N)
    A("s_lshl_b32 s33, s6, 14\ns_add_u32 s33, s33, s0")
    zero(ACC + 32, 96)
    A("s_lshl_b32 s28, s4, 2\ns_add_u32 s28, s28, s7\ns_lshl_b32 s28, s28, 12\ns_add_u32 s28, s28, 0x%x" % FL_F3)
    A("v_and_b32 v32, 31, v1\nv_lshlrev_b32 v32, 7, v32")
    A("v_and_b32 v34, 0x180, v32")
    poll(34 if opt.get("p2", 0) else 32, "s28", 33, sleep=opt.get("sl3", 3))
    def z_load(m):
        for p in range(2):
            A("buffer_load_dwordx4 %s, v%d, s[16:19], s33 offen offset:%d sc1" % (v(ZR + 8*m + 4*p, 4), 9 + (m >> 1), 2048*(m & 1) + 1024*p))
    for m in range(8): z_load(m)
    if opt.get("p2", 0): poll(32, "s28", 33, sleep=opt.get("sl3", 3))
    else: A("s_waitcnt vmcnt(8)")
    ST(6)
    A("s_mov_b32 s5, 0")
    A("s_setprio %d" % (2 if opt.get("hi", 0) else opt.get("gprio", 0)))
    A("L_SLOOP:")
    if opt.get("hi", 0):
        A("s_cmp_lg_u32 s5, %d\ns_cbranch_scc1 L_SP2\ns_setprio 0\nL_SP2:" % opt["hi"])
    A("s_add_u32 s6, s6, 1\ns_and_b32 s6, s6, 7\ns_lshl_b32 s33, s6, 14\ns_add_u32 s33, s33, s0")
    G2 = opt.get("g2", 1)
    if G2:
        order = [("z", 0)]*2 + [("d", 0)]*4 + [("z", 1)]*2 + [("d", 0)]*4 + [x for m in range(2, 8) for x in [("z", m)]*2]
    else:
        order = [("d", 0)]*8 + [x for m in range(8) for x in [("z", m)]*2]
    def younger(tag, issued):
        last = max(i for i, x in enumerate(order) if x == tag)
        return len(order) - 1 - last + issued
    def w_frags():
        A("s_waitcnt vmcnt(%d)" % younger(("d", 0), 0))
        for n in range(4):
            for p in range(2):
                A("ds_read_b128 %s, v%d offset:%d" % (v(WSP + 8*n + 4*p, 4), VX[p], 2048*n))
    def s_mfma(m, n):
        c = v(ACC + 16*m + 4*n, 4)
        for p in range(2):
            A("v_mfma_f32_16x16x32_bf16 %s, %s, %s, %s" % (c, v(ZR + 8*m + 4*p, 4), v(WSP + 8*n + 4*p, 4), c))
    w_frags()
    if not G2:
        A("s_waitcnt lgkmcnt(0)")
        sp_dma()
        for m in range(8):
            A("s_waitcnt vmcnt(22)")
            A(".p2align 3")
            for n in range(4): s_mfma(m, n)
            z_load(m)
    else:
        A("s_lshl_b32 s31, s6, 7\ns_add_u32 s31, s31, s3\ns_add_u32 s32, s31, 131072\ns_mov_b32 m0, s30")
        cnt = 0
        def zl(m, p):
            return "buffer_load_dwordx4 %s, v%d, s[16:19], s33 offen offset:%d sc1" % (v(ZR + 8*m + 4*p, 4), 9 + (m >> 1), 2048*(m & 1) + 1024*p)
        for m in range(8):
            A("s_waitcnt vmcnt(%d)" % younger(("z", m), cnt))
            if m == 2: A("s_add_u32 m0, s30, 4096")
            A(".p2align 3")
            fill = [zl(m - 1, 0), zl(m - 1, 1)] if m else []
            if m in (1, 2): fill += ["buffer_load_dwordx4 v%d, s[12:15], s%d offen offset:%d lds" % (5 + q, 30 + m, 1024*q) for q in range(4)]
            for n in range(4):
                if m == 0: A("s_waitcnt lgkmcnt(%d)\ns_nop 0" % (6 - 2*n))
                c = v(ACC + 16*m + 4*n, 4)
                for p in range(2):
                    A("v_mfma_f32_16x16x32_bf16 %s, %s, %s, %s" % (c, v(ZR + 8*m + 4*p, 4), v(WSP + 8*n + 4*p, 4), c))
                for _ in range(2 if len(fill) > 4 - n else 1):
                    if fill: A(fill.pop(0)); cnt += 1
        z_load(7)
    A("s_add_u32 s5, s5, 1\ns_cmp_lt_u32 s5, 7\ns_cbranch_scc1 L_SLOOP")
    WHR = (96, 160, 176, 112, 192, 208, 224)
    def wc_base(first_step_expr):
        A("s_mul_i32 s29, s26, 44\n%s\ns_add_u32 s29, s29, s32\ns_lshl_b32 s29, s29, 12\ns_add_u32 s29, s29, 0x%x" % (first_step_expr, WS_WC))
    def wc_load(dst):
        for m in range(4):
            A("buffer_load_dwordx4 %s, v%d, s[16:19], s29 offen offset:%d sc1" % (v(dst + 4*m, 4), VL16, 1024*m))
        A("s_add_u32 s29, s29, 4096")
    A("s_setprio %d" % opt.get("gprio2", 2))
    w_frags()
    A("v_and_b32 v8, 15, v1\nv_lshlrev_b32 v8, 7, v8\ns_lshl_b32 s28, s26, 11\ns_add_u32 s28, s28, 0x%x" % FL_F6)
    A("buffer_load_dword v9, v8, s[16:19], s28 offen sc1")
    A("v_add_u32 v5, s30, v%d\ns_lshl_b32 s32, s7, 14\ns_add_u32 s32, s32, 32768\nv_add_u32 v6, s32, v%d" % (VL16, VL16))
    for r in range(1, 4):
        A("s_sub_u32 s32, s7, %d\ns_and_b32 s32, s32, 3" % r)
        A("s_lshl_b32 s32, s32, %d\ns_add_u32 s32, s32, %d\nv_add_u32 v%d, s32, v%d" % ((13, L_G, 9 + r, VL16) if r == 1 else (14, 32768 + 8192*(r - 2), 9 + r, VL16)))
    wc_base("s_mul_i32 s32, s7, 7")
    A("s_waitcnt lgkmcnt(0)")
    A("s_setprio %d" % opt.get("gprio", 0))
    for mu in (1, 2, 3, 0):
        r = (mu - 1) % 4
        if mu == 3:
            A("s_setprio %d" % opt.get("gprio2", 2))
            A("s_waitcnt vmcnt(0)")
            A("v_cmp_ne_u32 vcc, s27, v9")
            lds_wait(L_CNTKV + 24, 0x01010101, 7)
            A("s_cbranch_vccz L_F6OK")
            poll(8, "s28", 9)
            A("L_F6OK:")
            A("s_setprio %d" % opt.get("gprio4", 0))
        for mm in range(2):
            m = 2*mu + mm
            if mu in (1, 2): A("s_waitcnt vmcnt(%d)" % (2*(7 - m) + 1))
            A(".p2align 3")
            for n in range(4):
                s_mfma(m, n)
                q = 4*mm + n
                if r:
                    A("ds_write_b128 v%d, %s offset:%d" % (5 if r == 1 else 6, v(ACC + 32*r + 4*q, 4), 1024*q + (8192 if r == 3 else 0)))
                if r >= 2 and q in (0, 2, 4):
                    wc_load(WHR[3*(r - 2) + q//2])
        if r: A("s_waitcnt lgkmcnt(0)")
    A("s_setprio %d" % opt.get("gprio2", 2))
    arrive(L_CNTR)
    ST(7)
    wc_load(WHR[6])
    lds_wait(L_CNTR, 12, 7)
    def r_read(r, dst):
        for q in range(8): A("ds_read_b128 %s, v%d offset:%d" % (v(dst + 4*q, 4), 9 + r, 1024*q))
    def r_add(src):
        for i in range(16): A("v_pk_add_f32 %s, %s, %s" % (v(ACC + 2*i, 2), v(ACC + 2*i, 2), v(src + 2*i, 2)))
    r_read(2, 32)
    A("s_waitcnt lgkmcnt(4)")
    r_read(3, 64)
    A("s_waitcnt lgkmcnt(8)")
    r_add(32)
    A("s_waitcnt lgkmcnt(4)")
    r_read(1, 32)
    A("s_waitcnt lgkmcnt(8)")
    r_add(64)
    A("s_waitcnt lgkmcnt(0)")
    arrive(L_CNTR)
    r_add(32)
    ST(8)
    A("v_and_b32 v5, 15, v1\nv_lshlrev_b32 v5, 4, v5\nv_bfe_u32 v6, v1, 4, 1\nv_lshl_add_u32 v5, v6, 9, v5\nv_lshrrev_b32 v6, 5, v1\nv_lshl_add_u32 v5, v6, 8, v5")
    A("s_mul_i32 s31, s25, 44\ns_lshl_b32 s32, s4, 2\ns_add_u32 s32, s32, s7\ns_add_u32 s31, s31, s32\ns_lshl_b32 s31, s31, 12\ns_add_u32 s31, s31, 0x%x" % WS_ACT)
    for n in range(4):
        T = 48 + 4*n
        for i in range(4): A("v_lshlrev_b32 v%d, 16, v%d\nv_and_b32 v%d, 0xffff0000, v%d" % (32 + 2*i, 16 + 4*n + i, 33 + 2*i, 16 + 4*n + i))
        for mm in range(2):
            c = ACC + 16*mm + 4*n
            for i in range(2): A("v_pk_mul_f32 %s, %s, %s" % (v(c + 2*i, 2), v(c + 2*i, 2), v(32 + 4*mm + 2*i, 2)))
        for mm in range(2):
            c = ACC + 16*mm + 4*n
            A("v_cvt_pk_bf16_f32 v%d, v%d, v%d\nv_cvt_pk_bf16_f32 v%d, v%d, v%d" % (T + 2*mm, c, c + 1, T + 2*mm + 1, c + 2, c + 3))
        A("s_nop 1")
        A("v_permlane16_swap_b32 v%d, v%d\nv_permlane16_swap_b32 v%d, v%d" % (T, T + 2, T + 1, T + 3))
        A("buffer_store_dwordx4 %s, v5, s[16:19], s31 offen offset:%d sc1" % (v(T, 4), 1024*n))
    A("s_lshl_b32 s31, s25, 12\ns_lshl_b32 s32, s32, 7\ns_add_u32 s31, s31, s32\ns_add_u32 s31, s31, 0x%x" % FL_F4)
    def wo_stage():
        wc_base("s_lshl_b32 s32, s7, 1\ns_add_u32 s32, s32, 36")
        A("s_lshl_b32 s33, s7, 14\ns_add_u32 s33, s33, 32768")
        for k in range(4):
            A("s_add_u32 m0, s33, %d\ns_nop 0" % (4096*k))
            for m in range(4):
                A("buffer_load_dwordx4 v%d, s[16:19], s29 offen offset:%d sc1 lds" % (VL16, 1024*m))
            A("s_add_u32 s29, s29, 4096" if k != 1 else "s_sub_u32 s29, s29, %d" % (9*4096))
        A("v_add_u32 v23, s33, v%d" % VL16)
    lds_wait(L_CNTR, 16, 7)
    A("s_waitcnt vmcnt(0)")
    set_flag("s31", 6)
    wo_stage()
    A("s_branch L_OUT")
    A("L_G7:")
    A("s_sub_u32 s32, s30, 32768\ns_and_b32 s3, s2, 7")
    wr_setup(16, "s32")
    A("s_cmp_lg_u32 s7, 0\ns_cbranch_scc1 L_G7N")
    srd(A, 12, P_GW, P_GW + 1, 1024)
    A("v_lshrrev_b32 v16, 4, v1\nv_lshlrev_b32 v16, 4, v16")
    for st in range(16):
        A("buffer_load_dwordx4 %s, v16, s[12:15], 0 offen offset:%d" % (v(64 + 4*st, 4), 64*st))
    A("v_add_u32 v%d, %d, v%d\nv_xor_b32 v%d, 64, v%d" % (VX[0], L_X, VXB, VX[1], VX[0]))
    zero(ACC, 16)
    def g_reads(sb):
        for p in range(2):
            for n in range(4):
                A("ds_read_b128 %s, v%d offset:%d" % (v((32, 160)[sb & 1] + 16*p + 4*n, 4), VX[p], 2048*n + 8192*sb))
    g_reads(0)
    nonce_get(28)
    for sb in range(8):
        A("s_waitcnt lgkmcnt(0)")
        if sb < 7: g_reads(sb + 1)
        for n in range(4):
            for p in range(2):
                A("v_mfma_f32_16x16x32_bf16 %s, %s, %s, %s" % (v(ACC + 4*n, 4), v(64 + 8*sb + 4*p, 4), v((32, 160)[sb & 1] + 16*p + 4*n, 4), v(ACC + 4*n, 4)))
    A("s_nop 7")
    for n in range(4): A("v_mul_f32 v%d, %s, v%d" % (16 + n, f32(-LOG2E), ACC + 4*n))
    for n in range(4): A("v_exp_f32 v%d, v%d" % (16 + n, 16 + n))
    for n in range(4): A("v_add_f32 v%d, 1.0, v%d" % (16 + n, 16 + n))
    for n in range(4): A("v_rcp_f32 v%d, v%d" % (16 + n, 16 + n))
    A("v_lshlrev_b32 v20, 2, v1\ns_lshl_b32 s29, s25, 8\ns_add_u32 s29, s29, 0x%x" % WS_G)
    A("s_mov_b32 exec_lo, 0xffff\ns_mov_b32 exec_hi, 0")
    for n in range(4):
        A("buffer_store_dword v%d, v20, s[16:19], s29 offen offset:%d sc1" % (16 + n, 64*n))
    A("s_mov_b64 exec, -1")
    A("s_lshl_b32 s28, s25, 7\ns_add_u32 s28, s28, 0x%x" % FL_F0)
    A("s_waitcnt vmcnt(0)")
    set_flag("s28", 16)
    A("s_branch L_G7X")
    A("L_G7N:")
    nonce_get(28)
    A("L_G7X:")
    arrive(L_CNTG)
    lds_wait(L_CNTKV + 4*opt.get('wtw', 2), 0x01010101, 16, sleep=16)
    A("s_lshl_b32 s20, s25, 2\ns_add_u32 s20, s20, s7\ns_and_b32 s21, s20, 7\ns_lshr_b32 s20, s20, 3\ns_mov_b32 s22, s20")
    A("s_mov_b32 s28, 1024\ns_lshl_b32 s29, s21, 7")
    w_setup(16)
    A("L_WT:")
    srd(A, 8, P_WOUT, P_WOUT + 1, 896*512*2)
    A("s_lshl_b32 s31, s22, 15")
    A("s_cmp_lt_u32 s22, 28\ns_cbranch_scc1 L_WT2")
    srd(A, 8, P_WO, P_WO + 1, 512*512*2)
    A("s_sub_u32 s31, s31, %d" % (28*32768))
    A("L_WT2:")
    w_dma(0, False)
    A("s_mul_i32 s31, s21, 44\ns_add_u32 s31, s31, s22\ns_lshl_b32 s31, s31, 12\ns_add_u32 s31, s31, 0x%x" % WS_WC)
    A("s_waitcnt vmcnt(0)")
    for l in w_reads(32, 0): A(l)
    A("s_waitcnt lgkmcnt(0)")
    for m in range(4):
        A("buffer_store_dwordx4 %s, v%d, s[16:19], s31 offen offset:%d sc1" % (v(32 + 4*m, 4), VL16, 1024*m))
    A("s_add_u32 s22, s22, 16\ns_cmp_lt_u32 s22, 44\ns_cbranch_scc1 L_WT")
    A("s_lshl_b32 s31, s21, 11\ns_lshl_b32 s32, s20, 7\ns_add_u32 s31, s31, s32\ns_add_u32 s31, s31, 0x%x" % FL_F6)
    A("s_waitcnt vmcnt(0)")
    set_flag("s31", 16)
    if NS:
        HS, HO, HN, HQ, HK0, HK, HV = (16, 32), (48, 64), (80, 96), (112, 116), 120, 128, 160
        A("s_lshr_b32 s20, s3, 1\ns_lshl_b32 s20, s20, 2\ns_lshr_b32 s32, s2, 6\ns_add_u32 s20, s20, s32")
        A("s_bfe_u32 s21, s2, 0x30003\ns_sub_u32 s21, s21, 3\ns_lshl_b32 s21, s21, 2\ns_add_u32 s21, s21, s7")
        A("s_lshl_b32 s22, s20, 16\ns_add_u32 s28, s22, 0x%x\ns_add_u32 s29, s28, %d" % (WS_K, (64 - NS)*1024))
        zero(HV, 8*NS)
        A("s_mov_b32 exec_lo, 0x00110000\ns_mov_b32 exec_hi, 0x00110000")
        A("v_mov_b32 v124, 0x3f803f80\nv_mov_b32 v125, 0x3f803f80")
        for i in range(0, 8*NS, 2): A("v_mov_b64 %s, v[124:125]" % v(HV + i, 2))
        A("s_mov_b64 exec, -1")
        A("v_and_b32 v124, 15, v1\nv_lshlrev_b32 v124, 4, v124\nv_lshrrev_b32 v125, 5, v1\nv_lshl_add_u32 v124, v125, 8, v124")
        A("v_mov_b32 v126, 0xdddddddd")
        A("buffer_load_dwordx4 %s, v%d, s[16:19], s28 offen sc1" % (v(HK0, 4), VL16))
        for k in range(NS):
            A("buffer_load_dwordx4 %s, v%d, s[16:19], s29 offen offset:%d sc1" % (v(HK + 4*k, 4), VL16, 1024*k))
        A("s_add_u32 s29, s29, 0x%x" % (WS_V - WS_K))
        A("s_mov_b32 exec_lo, 0xffff\ns_mov_b32 exec_hi, 0xffff")
        for k in range(2*NS):
            A("buffer_load_dwordx4 %s, v124, s[16:19], s29 offen offset:%d sc1" % (v(HV + 4*k, 4), 512*k))
        A("s_mov_b64 exec, -1")
        A("s_mov_b32 s5, 0")
        A("L_HELP:")
        A("s_lshl_b32 s32, s21, 11\ns_add_u32 s32, s32, s22")
        A("buffer_load_dwordx4 %s, v%d, s[16:19], s32 offen sc1" % (v(HQ[0], 4), VL16))
        A("buffer_load_dwordx4 %s, v%d, s[16:19], s32 offen offset:1024 sc1" % (v(HQ[1], 4), VL16))
        A("s_lshl_b32 s31, s20, 5\ns_add_u32 s31, s31, s21\ns_lshl_b32 s31, s31, 13\ns_add_u32 s31, s31, 0x%x" % WS_Z1)
        A("s_waitcnt vmcnt(0)")
        for sd in range(2):
            A("v_mfma_f32_32x32x16_bf16 %s, %s, %s, 0" % (v(HS[sd], 16), v(HK0, 4), v(HQ[sd], 4)))
        zero(HO[0], 32)
        for sd in range(2):
            A("v_max3_f32 v%d, v%d, v%d, v%d" % (6 + 2*sd, HS[sd], HS[sd] + 1, HS[sd] + 2))
            for i in range(3, 15, 2):
                A("v_max3_f32 v%d, v%d, v%d, v%d" % (6 + 2*sd, 6 + 2*sd, HS[sd] + i, HS[sd] + i + 1))
            A("v_max_f32 v%d, v%d, v%d" % (6 + 2*sd, 6 + 2*sd, HS[sd] + 15))
        A("v_mov_b32 v7, v6\nv_mov_b32 v5, v8\ns_nop 1")
        A("v_permlane32_swap_b32 v6, v7\nv_permlane32_swap_b32 v8, v5\ns_nop 1")
        A("v_max_f32 v6, v6, v7\nv_max_f32 v8, v8, v5\nv_sub_f32 v6, 0, v6\nv_sub_f32 v124, 0, v8\nv_mov_b32 v7, v6\nv_mov_b32 v125, v124")
        for i in range(0, 16, 2): A("v_mov_b64 %s, v[6:7]\nv_mov_b64 %s, v[124:125]" % (v(HN[0] + i, 2), v(HN[1] + i, 2)))
        A("s_nop 1")
        for k in range(NS):
            for sd in range(2):
                A("v_mfma_f32_32x32x16_bf16 %s, %s, %s, %s" % (v(HS[sd], 16), v(HK + 4*k, 4), v(HQ[sd], 4), v(HN[sd], 16)))
            A("s_nop 11")
            for sd in range(2):
                for i in range(16): A("v_exp_f32 v%d, v%d" % (HS[sd] + i, HS[sd] + i))
                A("s_nop 1")
                for hf in range(2):
                    A("v_smfmac_f32_32x32x32_bf16 %s, %s, %s, v126" % (v(HO[sd], 16), v(HV + 8*k + 4*hf, 4), v(HS[sd] + 8*hf, 8)))
        A("s_nop 11")
        A("v_mov_b32 v%d, v%d" % (HO[0] + 9, HO[1] + 8))
        for q in range(4):
            A("buffer_store_dwordx4 %s, v%d, s[16:19], s31 offen offset:%d sc1" % (v(HO[q >> 1] + 4*(q & 1), 4), VL16, 1024*q))
        A("s_add_u32 s32, s31, 4096")
        A("buffer_store_dwordx2 %s, v%d, s[16:19], s32 offen sc1" % (v(HO[0] + 8, 2), VL16))
        A("s_add_u32 s31, s31, 6144")
        A("s_waitcnt vmcnt(0)")
        set_flag("s31", 5)
        A("s_add_u32 s21, s21, 4\ns_add_u32 s5, s5, 1\ns_cmp_lt_u32 s5, 3\ns_cbranch_scc1 L_HELP")
    A("v_and_b32 v24, 15, v1\nv_lshlrev_b32 v24, 7, v24")
    A("s_lshl_b32 s28, s26, 11\ns_add_u32 s28, s28, 0x%x" % FL_F6)
    poll(24, "s28", 25, sleep=32)
    wc_base("s_mul_i32 s32, s7, 7")
    for k in range(7): wc_load(WHR[k])
    lds_wait(L_CNTKV + 24, 0x01010101, 16, sleep=16)
    wo_stage()
    lds_wait(L_CNTKV + 4*opt.get("iw", 8), 0x01010101, 16, sleep=16)
    A("L_OUT:")
    ST(9)
    OA = (128, 144, 64, 80)
    HRR = [24 + 4*k for k in range(10)] + [240 + 4*k for k in range(4)]
    NR = 14
    for nu in range(4):
        A("s_add_u32 s32, s7, %d\ns_and_b32 s32, s32, 3\ns_lshl_b32 s32, s32, 10\nv_add_u32 v%d, s32, v%d" % (nu, 16 + nu, VL16))
    A("s_mul_i32 s33, s25, 44\ns_mul_i32 s32, s7, 7\ns_add_u32 s33, s33, s32\ns_lshl_b32 s33, s33, 12\ns_add_u32 s33, s33, 0x%x" % WS_ACT)
    A("v_min_u32 v20, 6, v1\nv_add_u32 v20, s32, v20\nv_lshlrev_b32 v20, 7, v20")
    A("s_mov_b32 exec_lo, 0")
    A("v_and_b32 v20, 3, v1\nv_bfe_u32 v21, v1, 2, 1\nv_lshl_add_u32 v20, v21, 4, v20\ns_lshl_b32 s32, s7, 2\nv_add_u32 v20, s32, v20")
    A("v_lshlrev_b32 v20, 7, v20\nv_add_u32 v20, 0x%x, v20" % (FL_F5 - FL_F4))
    A("s_mov_b32 exec_lo, -1")
    A("s_lshl_b32 s28, s25, 12\ns_add_u32 s28, s28, 0x%x" % FL_F4)
    poll(20, "s28", 21, sleep=opt.get("sl4", 3))
    ST(10)
    vq2 = []
    def vw2(tag):
        last = max(i for i, x in enumerate(vq2) if x == tag)
        A("s_waitcnt vmcnt(%d)" % (len(vq2) - 1 - last))
    def a_load(f, dst):
        vq2.append(("a", f))
        A("buffer_load_dwordx4 %s, v%d, s[16:19], s33 offen sc1" % (v(dst, 4), 16 + (f & 3)))
        if (f & 3) == 3: A("s_add_u32 s33, s33, 4096")
    for f in range(NR): a_load(f, HRR[f])
    A("s_setprio %d" % opt.get("gprio3", 0))
    OB = (24, 192)
    A("s_lshl_b32 s32, s7, 2\nv_mov_b32 v22, s32")
    def o_load(hf):
        A("s_mov_b32 s33, s%d" % (22 + hf))
        for f in range(8): a_load(f, OB[hf] + 4*f)
    A("s_mul_i32 s22, s25, 44\ns_lshl_b32 s32, s7, 1\ns_add_u32 s22, s22, s32\ns_add_u32 s22, s22, 36\ns_lshl_b32 s22, s22, 12\ns_add_u32 s22, s22, 0x%x" % WS_ACT)
    A("s_sub_u32 s23, s22, %d" % (8*4096))
    HD = opt.get("hdefer", 8)
    for f in range(28):
        st, nu = f >> 2, f & 3
        if f == HD: lds_wait(L_CNTD, 1, 21, sleep=2, va=22)
        vw2(("a", f))
        for m in range(4):
            c = v(OA[nu] + 4*m, 4)
            A("v_mfma_f32_16x16x32_bf16 %s, %s, %s, %s" % (c, v(WHR[st] + 4*m, 4), v(HRR[f % NR], 4), c if st else "0"))
        if f + NR < 28: a_load(f + NR, HRR[f % NR])
        if f >= 14 and (f & 1) and (f - 15)//2 < 4:
            k = (f - 15)//2
            if k == 3: A("s_waitcnt lgkmcnt(8)")
            for m in range(4): A("ds_read_b128 %s, v23 offset:%d" % (v(WHR[k] + 4*m, 4), 4096*k + 1024*m))
        if f == 21: o_load(0)
        if f == 23: o_load(1)
    A("s_setprio 2")
    A("s_waitcnt lgkmcnt(0)")
    arrive(L_CNTX)
    A("v_and_b32 v20, 6, v1\nv_lshlrev_b32 v20, 10, v20\nv_and_b32 v21, 1, v1\nv_lshl_add_u32 v20, v21, 9, v20")
    srd(A, 12, P_OUT, P_OUT + 1, 2048*512*2)
    for nu in range(1, 4):
        A("s_add_u32 s32, s7, %d\ns_and_b32 s32, s32, 3\ns_mul_i32 s32, s32, 12288\ns_add_u32 s32, s32, %d\nv_add_u32 v%d, s32, v%d" % (nu, 4096*(nu - 1), 8 + nu, VL16))
    A("s_mul_i32 s32, s7, 12288\nv_add_u32 v8, s32, v%d" % VL16)
    A("v_and_b32 v5, 15, v1\nv_lshlrev_b32 v5, 10, v5\nv_bfe_u32 v6, v1, 4, 1\nv_lshl_add_u32 v5, v6, 5, v5\nv_lshrrev_b32 v6, 5, v1\nv_lshl_add_u32 v5, v6, 4, v5")
    A("s_lshl_b32 s31, s25, 16\ns_lshl_b32 s32, s7, 14\ns_add_u32 s31, s31, s32\ns_lshl_b32 s32, s26, 7\ns_add_u32 s31, s31, s32")
    ST(11)
    def o_mfma(hf):
        for nu in (1, 2, 3, 0):
            for m in range(4):
                c = v(OA[nu] + 4*m, 4)
                for st in range(2):
                    A("v_mfma_f32_16x16x32_bf16 %s, %s, %s, %s" % (c, v(WHR[2*hf + st] + 4*m, 4), v(OB[hf] + 16*st + 4*nu, 4), c))
                if hf == 1 and nu != 1:
                    pn = {2: 1, 3: 2, 0: 3}[nu]
                    A("ds_write_b128 v%d, %s offset:%d" % (8 + pn, v(OA[pn] + 4*m, 4), 1024*m))
    def o_check(hf):
        L = "L_OC%d" % hf
        b = OB[hf]
        A(L + ":")
        A("s_waitcnt vmcnt(%d)" % (8 if hf == 0 else 0))
        A("v_max3_u32 v21, v%d, v%d, v%d\nv_max3_u32 v22, v%d, v%d, v%d" % (b, b + 1, b + 2, b + 3, b + 4, b + 5))
        for i in range(6, 30, 4):
            A("v_max3_u32 v21, v21, v%d, v%d\nv_max3_u32 v22, v22, v%d, v%d" % (b + i, b + i + 1, b + i + 2, b + i + 3))
        A("v_max3_u32 v21, v21, v%d, v%d\nv_max_u32 v21, v21, v22" % (b + 30, b + 31))
        A("v_cmp_eq_u32 vcc, -1, v21")
        A("s_add_u32 s34, s34, 1\ns_cmp_ge_u32 s34, %d\ns_cbranch_scc1 %s_x" % (SPIN_MAX // 8, L))
        A("s_cbranch_vccz %s_x" % L)
        A(L + "_s:")
        A("buffer_load_dword v21, v20, s[16:19], s%d offen sc1" % (22 + hf))
        A("s_waitcnt vmcnt(0)")
        A("v_cmp_eq_u32 vcc, -1, v21")
        A("s_add_u32 s34, s34, 1\ns_cmp_ge_u32 s34, %d\ns_cbranch_scc1 %s_x" % (SPIN_MAX // 8, L))
        A("s_cbranch_vccz %s_r" % L)
        A("s_sleep %d\ns_branch %s_s" % (opt.get("sl5", 1), L))
        A(L + "_r:")
        o_load(hf)
        if hf == 0: o_load(1)
        A("s_branch %s" % L)
        A(L + "_x:")
    A("s_mov_b32 s34, 0")
    o_check(0)
    o_mfma(0)
    o_check(1)
    ST(12)
    A("s_barrier")
    o_mfma(1)
    A("s_waitcnt lgkmcnt(0)")
    A("s_barrier")
    for j in range(12):
        A("ds_read_b128 %s, v8 offset:%d" % (v(192 + 4*j, 4), 1024*j))
    for j in range(3):
        A("s_waitcnt lgkmcnt(%d)" % (8 - 4*j))
        for i in range(8):
            A("v_pk_add_f32 %s, %s, %s" % (v(OA[0] + 2*i, 2), v(OA[0] + 2*i, 2), v(192 + 16*j + 2*i, 2)))
    for i in range(8): A("v_cvt_pk_bf16_f32 v%d, v%d, v%d" % (24 + i, OA[0] + 2*i, OA[0] + 2*i + 1))
    A("s_nop 1")
    for mp in range(2):
        T = 24 + 4*mp
        A("v_permlane16_swap_b32 v%d, v%d\nv_permlane16_swap_b32 v%d, v%d" % (T, T + 2, T + 1, T + 3))
        A("buffer_store_dwordx4 %s, v5, s[12:15], s31 offen offset:%d nt" % (v(T, 4), 64*mp))
    A("L_FIN:")
    ST.end(24)
    A("L_END:")
    A("s_endpgm")

def build(stamps=False, opt=None):
    ref = open("gated_mix__softmax_full_mha__mixer_gmlp__prompt.s.ref").read().split("\n")
    hdr = [l for l in ref if l.startswith(";") and "@launch" not in l]
    out = "\n".join(hdr) + "\n; @launch grid=(256,1,1) block=(512,1,1) lds=163840\n"
    out += '.amdgcn_target "amdgcn-amd-amdhsa--gfx950"\n.text\n.globl %s\n' % KNAME
    A = Asm()
    gen(A, stamps, opt)
    txt = A.text()
    if (opt or {}).get("sc1only", 1): txt = txt.replace("sc0 sc1", "sc1")
    out += txt + '.section .rodata,"a"\n' + kdesc(KNAME, 256, 100, 256)
    return out
if __name__ == "__main__":
    import sys
    opt = dict((a_.split("=")[0], int(a_.split("=")[1])) for a_ in sys.argv[2:] if "=" in a_)
    open(sys.argv[1], "w").write(build("--stamps" in sys.argv, opt))
```

```python
from asmlib2 import *
from p1 import emit_gelu, LOG2E, QSCALE, GC1, GC2

KNAME = "gated_mix__softmax_full_mha__mixer_gmlp__prompt_kernel"
L_CNTG, L_CNTX, L_CNTR, L_CNTA, L_CNTKV, L_CNTD = 0, 8, 16, 24, 32, 96
L_X = 16384
L_WQ = 81920
L_G = 131072
P_X, P_WQKV, P_WO, P_WIN, P_WSP, P_BSP, P_WOUT = 36, 38, 40, 44, 46, 48, 50
P_GW, P_OUT, P_DBG, P_WS = 52, 54, 56, 58
SPIN_MAX = 0x20000

def gen(A, stamps=False, opt=None):
    opt = opt or {}
    ST = Stamps(A, stamps)
    VZ, VONE = 2, 3
    VL16 = 4
    def arrive(off, va=VZ):
        A("s_mov_b64 exec, 1")
        A("ds_add_u32 v%d, v%d offset:%d" % (va, VONE, off))
        A("s_mov_b64 exec, -1")
    def zero(base, n):
        for i in range(0, n, 2): A("v_mov_b64 %s, 0" % v(base + i, 2))
    def lds_wait(off, thr, vt, sleep=0, va=VZ):
        L = A.newlabel("LW")
        A("s_mov_b32 s34, 0")
        A(L + ":")
        if sleep: A("s_sleep %d" % sleep)
        A("ds_read_b32 v%d, v%d offset:%d" % (vt, va, off))
        A("s_waitcnt lgkmcnt(0)")
        A("v_readfirstlane_b32 s35, v%d" % vt)
        A("s_add_u32 s34, s34, 1\ns_cmp_ge_u32 s34, %d\ns_cbranch_scc1 %s_x" % (SPIN_MAX, L))
        A("s_cmp_lt_u32 s35, %s\ns_cbranch_scc1 %s" % (thr, L))
        A(L + "_x:")
    def set_flag(soff, vt):
        A("v_mov_b32 v%d, s27" % vt)
        A("s_mov_b64 exec, 1")
        A("buffer_store_dword v%d, v%d, s[16:19], %s offen sc0 sc1" % (vt, VZ, soff))
        A("s_mov_b64 exec, -1")
    def poll(vaddr, soff, vt, sleep=4, second=None):
        L = A.newlabel("PL")
        A("s_mov_b32 s34, 0")
        A(L + ":")
        A("buffer_load_dword v%d, v%d, s[16:19], %s offen sc0 sc1" % (vt, vaddr, soff))
        if second is not None:
            A("buffer_load_dword v%d, v%d, s[16:19], %s offen sc0 sc1" % (vt + 1, second, soff))
        A("s_waitcnt vmcnt(0)")
        A("v_xor_b32 v%d, s27, v%d" % (vt, vt))
        if second is not None:
            A("v_xor_b32 v%d, s27, v%d\nv_or_b32 v%d, v%d, v%d" % (vt + 1, vt + 1, vt, vt, vt + 1))
        A("v_cmp_ne_u32 vcc, 0, v%d" % vt)
        A("s_add_u32 s34, s34, 1\ns_cmp_ge_u32 s34, %d\ns_cbranch_scc1 %s_x" % (SPIN_MAX // 8, L))
        A("s_cbranch_vccz %s_x" % L)
        A("s_sleep %d" % sleep)
        A("s_branch %s" % L)
        A(L + "_x:")
    def nonce_load(vt):
        A("buffer_load_dword v%d, v%d, s[60:63], 0 offen sc0 sc1" % (vt, VZ))
    def nonce_get(vt, cnt=0):
        L = A.newlabel("NG")
        A("s_waitcnt vmcnt(%d)" % cnt)
        A("v_readfirstlane_b32 s27, v%d" % vt)
        A("s_mov_b32 s34, 0")
        A(L + ":")
        A("s_cmp_lg_u32 s27, 0\ns_cbranch_scc1 %s_x" % L)
        A("s_add_u32 s34, s34, 1\ns_cmp_ge_u32 s34, %d\ns_cbranch_scc1 %s_x" % (SPIN_MAX // 8, L))
        nonce_load(vt)
        A("s_waitcnt vmcnt(0)")
        A("v_readfirstlane_b32 s27, v%d" % vt)
        A("s_branch %s" % L)
        A(L + "_x:")

    VD = (5, 6, 7, 8)
    VW = (9, 10, 11, 12)
    VX = (13, 14)
    VXB = 15
    def w_setup(t0):
        A("v_lshrrev_b32 v%d, 3, v1\nv_mul_lo_u32 v%d, v%d, s28" % (t0, t0, t0))
        A("v_bfe_u32 v%d, v1, 4, 1\nv_lshlrev_b32 v%d, 1, v%d\nv_and_b32 v%d, 7, v1\nv_xor_b32 v%d, v%d, v%d" % (t0+1, t0+1, t0+1, t0+2, t0+1, t0+1, t0+2))
        A("v_lshl_add_u32 v%d, v%d, 4, v%d\nv_add_u32 v%d, s29, v%d" % (t0, t0+1, t0, VD[0], t0))
        A("s_lshl_b32 s32, s28, 3\ns_sub_u32 s32, s32, 1024")
        A("v_xor_b32 v%d, 64, v%d\nv_add_u32 v%d, s32, v%d" % (VD[1], VD[0], VD[1], VD[1]))
        A("s_lshl_b32 s32, s32, 1")
        A("v_add_u32 v%d, s32, v%d\nv_add_u32 v%d, s32, v%d" % (VD[2], VD[0], VD[3], VD[1]))
    def wr_setup(t0, sbase):
        A("v_lshrrev_b32 v%d, 4, v1\nv_bfe_u32 v%d, v1, 2, 2\nv_lshl_add_u32 v%d, v%d, 3, v%d\nv_lshlrev_b32 v%d, 7, v%d" % (t0, t0+1, t0, t0, t0+1, t0, t0))
        A("v_bfe_u32 v%d, v1, 3, 2\nv_lshl_add_u32 v%d, v%d, 5, v%d" % (t0+1, t0, t0+1, t0))
        A("v_and_b32 v%d, 3, v1\nv_lshl_add_u32 v%d, v%d, 3, v%d\nv_add_u32 v%d, %s, v%d" % (t0+1, t0, t0+1, t0, VW[0], sbase, t0))
        for m in range(1, 4):
            A("v_xor_b32 v%d, %d, v%d" % (VW[m], 32*m, VW[0]))
    def xr_setup(t0):
        A("v_and_b32 v%d, 15, v1\nv_lshrrev_b32 v%d, 4, v1\nv_bfe_u32 v%d, v1, 1, 3\nv_xor_b32 v%d, v%d, v%d" % (t0, t0+1, t0+2, t0+1, t0+1, t0+2))
        A("v_lshlrev_b32 v%d, 4, v%d\nv_lshl_add_u32 v%d, v%d, 7, v%d" % (t0+1, t0+1, VXB, t0, t0+1))
    def w_dma_list(slot):
        return ["buffer_load_dwordx4 v%d, s[8:11], s31 offen offset:%d lds" % (VD[q], 1024*q) for q in range(4)]
    def soff(slot):
        return 4096*(slot & 1) + (32768 if slot < 2 else 0)
    def w_dma(slot, wrap=True):
        A("s_add_u32 m0, s30, %d" % (soff(slot) - 32768))
        A("s_nop 0")
        for l in w_dma_list(slot): A(l)
        w_adv(wrap)
    def w_adv(wrap=True):
        A("s_add_u32 s31, s31, s29")
        if wrap:
            A("s_cmp_ge_u32 s31, s33\ns_cselect_b32 s31, s3, s31")
    def w_reads(dst, slot):
        return ["ds_read_b64_tr_b16 %s, v%d offset:%d" % (v(dst + 4*m + 2*b, 2), VW[m], soff(slot) + 512*b) for m in range(4) for b in range(2)]

    ACC = 128
    SLOT = 24576
    PK = opt.get("pk", 4)
    NS = opt.get("ns", 0)
    A(".p2align 8\n.type %s,@function\n%s:" % (KNAME, KNAME))
    A("s_cmp_ge_u32 s2, 256\ns_cbranch_scc1 L_END")
    ST.begin()
    A("s_load_dwordx16 s[36:51], s[0:1], 0")
    A("s_load_dwordx8 s[52:59], s[0:1], 64")
    A("v_lshrrev_b32 v5, 6, v0")
    A("v_and_b32 v1, 63, v0")
    A("v_readfirstlane_b32 s24, v5")
    def common():
        A("s_and_b32 s3, s2, 7\ns_lshr_b32 s4, s2, 3")
        A("s_lshr_b32 s25, s3, 1\ns_lshl_b32 s25, s25, 3\ns_lshr_b32 s6, s4, 2\ns_add_u32 s25, s25, s6")
        A("s_and_b32 s26, s3, 1\ns_lshl_b32 s26, s26, 2\ns_and_b32 s5, s4, 3\ns_add_u32 s26, s26, s5")
        A("s_lshl_b32 s5, s5, 1\ns_add_u32 s6, s6, s5\ns_and_b32 s6, s6, 7")
        A("s_mov_b32 s4, s26")
        A("v_mov_b32 v%d, 0\nv_mov_b32 v%d, 1\nv_lshlrev_b32 v%d, 4, v1" % (VZ, VONE, VL16))
        A("s_mov_b32 s27, 0")
    A("s_cmp_ge_u32 s24, 4\ns_cbranch_scc1 L_GSTART")
    A("s_cmp_lg_u32 s24, 3\ns_cbranch_scc1 L_NOPF")
    A("s_getpc_b64 s[22:23]")
    A("L_PC:")
    A("s_and_b32 s32, s2, 0xf8\nv_and_b32 v20, 7, v1\nv_add_u32 v20, s32, v20\nv_lshlrev_b32 v20, 7, v20")
    A("v_min_u32 v20, L_END-L_PC, v20")
    A("global_load_dword v0, v20, s[22:23]")
    A("L_NOPF:")
    common()
    A("v_lshrrev_b32 v20, 3, v1\nv_and_b32 v21, 7, v1\nv_lshrrev_b32 v22, 4, v1")
    LX, LZ, LQ = (176, 177), (178, 179), (180, 181)
    A("s_setprio 3")
    A("v_xor_b32 v23, v21, v22")
    A("s_lshl_b32 s28, s25, 6\ns_lshl_b32 s29, s24, 4\ns_add_u32 s28, s28, s29")
    A("v_add_u32 v24, s28, v20\nv_lshlrev_b32 v24, 10, v24\nv_lshl_add_u32 v%d, v23, 4, v24" % LX[0])
    A("v_xor_b32 v%d, 64, v%d\nv_add_u32 v%d, %d, v%d" % (LX[1], LX[0], LX[1], 8192 - 1024, LX[1]))
    A("v_add_u32 v20, s29, v20\nv_and_b32 v22, 1, v22\nv_lshlrev_b32 v22, 1, v22\nv_xor_b32 v21, v21, v22\nv_lshlrev_b32 v21, 4, v21")
    A("v_mul_u32_u24 v24, 3584, v20\ns_lshl_b32 s28, s4, 8\ns_add_u32 s28, s28, 1792\nv_add3_u32 v%d, v24, v21, s28" % LZ[0])
    A("v_xor_b32 v%d, 64, v%d\nv_add_u32 v%d, %d, v%d" % (LZ[1], LZ[0], LZ[1], 8*3584 - 1024, LZ[1]))
    A("s_lshl_b32 s22, s24, 11\ns_add_u32 s23, s22, %d\ns_add_u32 s22, s22, %d" % (L_WQ, L_X))
    A("s_mov_b32 s20, s6\ns_mov_b32 s21, s6")
    A("s_mov_b32 s18, 0x%x\ns_mov_b32 s19, 0x20000\ns_mov_b32 s11, 0x20000" % (2048*512*2))
    A("s_mov_b32 s14, 0x%x\ns_mov_b32 s15, 0x20000\ns_mov_b32 s7, s6" % (512*1536*2))
    A("v_mul_u32_u24 v24, 3072, v20\ns_lshl_b32 s28, s26, 7\nv_add3_u32 v%d, v24, v21, s28" % LQ[0])
    A("v_xor_b32 v%d, 64, v%d\nv_add_u32 v%d, %d, v%d" % (LQ[1], LQ[0], LQ[1], 8*3072 - 1024, LQ[1]))
    A("s_cmp_ge_u32 s4, 7\ns_cselect_b32 s10, 0, 0x%x" % (512*1792*2))
    A("s_waitcnt lgkmcnt(0)")
    if opt.get("tlb0", 0) == 2:
        for p in (P_WIN, P_WQKV): A("s_load_dword s97, s[%d:%d], 0" % (p, p + 1))
    A("s_mov_b64 s[16:17], s[%d:%d]\ns_mov_b64 s[8:9], s[%d:%d]\ns_mov_b64 s[12:13], s[%d:%d]" % (P_X, P_X + 1, P_WIN, P_WIN + 1, P_WQKV, P_WQKV + 1))
    vq = []
    def ld_x(i):
        vq.extend([("x", i)]*2)
        A("s_lshl_b32 s31, s20, 13\ns_add_u32 m0, s31, s22\ns_lshl_b32 s31, s20, 7")
        A("buffer_load_dwordx4 v%d, s[16:19], s31 offen lds" % LX[0])
        A("buffer_load_dwordx4 v%d, s[16:19], s31 offen offset:1024 lds" % LX[1])
        A("s_add_u32 s20, s20, 1\ns_and_b32 s20, s20, 7")
    def ld_z(i):
        vq.extend([("w", i)]*4)
        A("s_mul_i32 s31, s21, %d" % (64*3584))
        for d in range(2):
            A("s_add_u32 m0, s23, %d" % (SLOT + 16384*((i + 1) % 3) + (8192 - 128)*d))
            A("s_add_u32 s21, s21, 1" if d == 0 else "s_and_b32 s21, s21, 7")
            A("buffer_load_dwordx4 v%d, s[8:11], s31 offen offset:%d lds" % (LZ[0], 128*d))
            A("buffer_load_dwordx4 v%d, s[8:11], s31 offen offset:%d lds" % (LZ[1], 128*d + 1024))
    def q_dma_groups(sbase, imm):
        g = []
        for mat in range(3):
            pre = "s_mul_i32 s31, s7, %d\n" % (64*3072) if mat == 0 else ""
            g.append(pre + "s_add_u32 m0, %s, %d\n" % (sbase, imm + 7168*mat) + ("s_add_u32 s7, s7, 1", "s_and_b32 s7, s7, 7", "s_nop 0")[mat])
            g.append("buffer_load_dwordx4 v%d, s[12:15], s31 offen offset:%d lds" % (LQ[0], 1024*mat))
            g.append("buffer_load_dwordx4 v%d, s[12:15], s31 offen offset:%d lds" % (LQ[1], 1024*mat + 1024))
        return g
    def ld_q(i):
        vq.extend([("w", i)]*6)
        for l in q_dma_groups("s23", SLOT*((i + 1) % 3)): A(l)
    def vwait(*tags):
        last = max(i for i, x in enumerate(vq) if x in tags)
        A("s_waitcnt vmcnt(%d)" % (len(vq) - 1 - last))
    Q8 = opt.get("q8", 5)
    if opt.get("zfirst", 0):
        A("s_bitcmp1_b32 s24, 0\ns_cbranch_scc1 L_ZF")
        ld_x(0); ld_z(0)
        A("s_branch L_ZF2\nL_ZF:")
        del vq[:]
        ld_z(0); ld_x(0)
        A("L_ZF2:")
        ld_x(1)
    else:
        ld_x(0); ld_z(0); ld_x(1)
    if Q8 == -2: ld_q(8)
    ld_z(1)
    if Q8 == -1: ld_q(8)
    srd(A, 60, P_DBG, P_DBG + 1, 256)
    QA = 128
    XQ, WQ = (16, 72), (48, 104)
    def asetup(part):
        if part == 0:
            A("s_mov_b32 s30, %d" % L_WQ)
            wr_setup(16, "s30"); xr_setup(16)
            A("s_lshl_b32 s32, s24, 5\nv_xor_b32 v%d, s32, v%d" % (VW[1], VW[0]))
        if part == 1: zero(QA, 48)
        if part == 3:
            A("v_and_b32 v16, 15, v1\nv_lshlrev_b32 v16, 4, v16\nv_bfe_u32 v18, v1, 4, 1\nv_lshl_add_u32 v16, v18, 21, v16")
            A("v_lshrrev_b32 v19, 5, v1\nv_lshl_add_u32 v182, v19, 9, v16")
            A("v_and_b32 v17, 3, v1\nv_bfe_u32 v16, v1, 2, 1\nv_lshl_or_b32 v17, v16, 3, v17\nv_bfe_u32 v16, v1, 3, 1\nv_lshl_or_b32 v17, v16, 2, v17")
            A("v_lshlrev_b32 v17, 4, v17\nv_lshl_add_u32 v17, v18, 9, v17\nv_lshl_add_u32 v183, v19, 8, v17")
    XS = {0: {0: [2], 1: [3], 2: [4], 3: [5], 4: [6], 5: [7]}, 1: {0: [2, 3], 1: [4], 2: [5], 3: [6], 4: [7]}}[opt.get("xs", 0)]
    def tlb_touch():
        A("s_lshl_b32 s32, s24, 21")
        A("s_load_dword s97, s[%d:%d], s32" % (P_WSP, P_WSP + 1))
        for k in range(3):
            A("s_load_dword s97, s[%d:%d], s32" % (P_WS, P_WS + 1))
            A("s_add_u32 s32, s32, 0x800000")
        for p in (P_OUT, P_BSP):
            A("s_load_dword s97, s[%d:%d], 0" % (p, p + 1))
    if opt.get("tlb", 2) == 1: tlb_touch()
    for i in range(8):
        vwait(("x", i), ("w", i))
        A("s_barrier")
        if i == 0: ST(1)
        for k in XS.get(i, [])[:1]: ld_x(k)
        if i + 2 < 8: ld_z(i + 2)
        for k in XS.get(i, [])[1:]: ld_x(k)
        if i == Q8: ld_q(8)
        if i == 7: ld_q(9)
        if i == 3 and opt.get("tlb", 2) == 2: tlb_touch()
        if 1 <= i <= 4: asetup(i - 1)
        if i == 6: srd(A, 16, P_WS, P_WS + 1, WS_USED)
    A("s_mov_b32 s33, 0\ns_mov_b32 s5, 0")
    def q_mfma(b, k):
        mat, n, p = k >> 3, (k >> 1) & 3, k & 1
        c = v(QA + 16*mat + 4*n, 4)
        xf, wf = v(XQ[b] + 8*n + 4*p, 4), v(WQ[b] + 8*mat + 4*p, 4)
        A("v_mfma_f32_16x16x32_bf16 %s, %s, %s, %s" % ((c, xf, wf, c) if mat == 2 else (c, wf, xf, c)))
    def q_stage(b, first=False):
        A("s_lshl_b32 s32, s6, 13\ns_add_u32 s32, s32, %d" % L_X)
        A("v_add_u32 v%d, s32, v%d\nv_xor_b32 v%d, 64, v%d\nv_add_u32 v%d, s33, v%d" % (VX[0], VXB, VX[1], VX[0], VW[0], VW[1]))
        A("s_add_u32 s6, s6, 1\ns_and_b32 s6, s6, 7")
        A("s_add_u32 s33, s33, %d\ns_cmp_eq_u32 s33, %d\ns_cselect_b32 s33, 0, s33" % (SLOT, 3*SLOT))
        if first: A("s_waitcnt vmcnt(6)")
        A("s_barrier")
        rd = ["ds_read_b64_tr_b16 %s, v%d offset:%d" % (v(WQ[b] + 8*mat + 4*p + 2*h, 2), VW[0], 8192*mat + 4096*p + 512*h) for mat in range(3) for p in range(2) for h in range(2)]
        rd += ["ds_read_b128 %s, v%d offset:%d" % (v(XQ[b] + 8*n + 4*p, 4), VX[p], 2048*n) for n in range(4) for p in range(2)]
        A(".p2align 3")
        for k in range(24):
            if k < 20:
                if k == 14: A("s_waitcnt lgkmcnt(8)\ns_nop 0")
                A(rd[k])
            if not first: q_mfma(b ^ 1, k)
        A("s_waitcnt vmcnt(0) lgkmcnt(0)" if first else "s_waitcnt lgkmcnt(0)")
    q_stage(0, True)
    A("L_QLOOP:")
    q_stage(1); q_stage(0)
    A("s_add_u32 s5, s5, 1\ns_cmp_lt_u32 s5, 3\ns_cbranch_scc1 L_QLOOP")
    nonce_load(5)
    q_stage(1)
    A("s_barrier")
    for k in range(24): q_mfma(1, k)
    ST(2)
    A("s_lshl_b32 s7, s26, 2\ns_add_u32 s7, s7, s24")
    A("s_lshl_b32 s31, s7, 16\ns_lshl_b32 s32, s25, 11\ns_add_u32 s31, s31, s32\ns_add_u32 s32, s31, 0x%x" % WS_V)
    A("s_mov_b32 s20, %s\ns_mov_b32 s21, s20" % f32(QSCALE))
    for n in range(4):
        T = 152 + 4*n if False else 184 + 4*n
        c, d = QA + 4*n, QA + 16 + 4*n
        A("v_pk_mul_f32 %s, %s, s[20:21]\nv_pk_mul_f32 %s, %s, s[20:21]" % (v(c, 2), v(c, 2), v(c + 2, 2), v(c + 2, 2)))
        A("v_cvt_pk_bf16_f32 v%d, v%d, v%d\nv_cvt_pk_bf16_f32 v%d, v%d, v%d" % (T + 2, d, d + 1, T + 3, d + 2, d + 3))
        A("v_cvt_pk_bf16_f32 v%d, v%d, v%d\nv_cvt_pk_bf16_f32 v%d, v%d, v%d" % (T, c, c + 1, T + 1, c + 2, c + 3))
        A("s_nop 1")
        A("v_permlane16_swap_b32 v%d, v%d\nv_permlane16_swap_b32 v%d, v%d" % (T, T + 2, T + 1, T + 3))
        A("buffer_store_dwordx4 %s, v182, s[16:19], s31 offen offset:%d sc1" % (v(T, 4), 1024*(n >> 1) + 256*(n & 1)))
    for mp in range(2):
        T = 200 + 4*mp
        c = QA + 32 + 8*mp
        for i in range(4): A("v_cvt_pk_bf16_f32 v%d, v%d, v%d" % (T + i, c + 2*i, c + 2*i + 1))
        A("s_nop 1")
        A("v_permlane16_swap_b32 v%d, v%d\nv_permlane16_swap_b32 v%d, v%d" % (T, T + 2, T + 1, T + 3))
        A("buffer_store_dwordx4 %s, v183, s[16:19], s32 offen offset:%d sc1" % (v(T, 4), 1024*mp))
    A("s_lshl_b32 s21, s7, 7\ns_lshl_b32 s32, s25, 2\ns_add_u32 s21, s21, s32\ns_add_u32 s21, s21, 0x%x" % FL_F1)
    S = (16, 32); O = (48, 64); NM = (80, 96)
    Q = (112, 116); KF = (120, 124); K0 = 128; VF = (132, 140)
    IDX, KA, VA, VC, VAB, VCW = 148, 149, 150, 151, 12, 13
    ALL4 = 0x01010101
    A("s_and_b32 s25, s3, 1\ns_xor_b32 s25, s25, 1\ns_lshl_b32 s25, s25, 2\ns_lshr_b32 s5, s3, 1\ns_add_u32 s25, s25, s5")
    A("s_lshl_b32 s25, s25, 2\ns_lshr_b32 s5, s2, 6\ns_add_u32 s25, s25, s5\ns_bfe_u32 s26, s2, 0x30003")
    A("s_lshl_b32 s7, s26, 2\ns_add_u32 s7, s7, s24")
    A("v_mov_b32 v%d, 0xdddddddd" % IDX)
    zero(VF[0], 16)
    A("s_mov_b32 exec_lo, 0x00110000\ns_mov_b32 exec_hi, 0x00110000")
    A("v_mov_b32 v6, 0x3f803f80\nv_mov_b32 v7, 0x3f803f80")
    for i in range(0, 16, 2): A("v_mov_b64 %s, v[6:7]" % v(VF[0] + i, 2))
    A("s_mov_b64 exec, -1")
    A("s_mov_b32 s22, 0x0000ffff\ns_mov_b32 s23, 0x0000ffff")
    A("v_and_b32 v8, 15, v1\nv_lshlrev_b32 v8, 4, v8\nv_lshrrev_b32 v9, 5, v1\nv_lshl_add_u32 v8, v9, 8, v8")
    A("v_add_u32 v%d, 0x2000, v8" % VAB)
    def att_reset():
        zero(O[0], 32)
        A("v_mov_b32 v%d, v%d\nv_mov_b32 v%d, v%d\nv_mov_b32 v%d, 0\nv_mov_b32 v%d, s24" % (KA, VL16, VA, VAB, VC, VCW))
        A("s_mov_b32 s9, 0x76123450")
    att_reset()
    A("s_lshl_b32 s28, s25, 16")
    A("s_lshl_b32 s29, s7, 11\ns_add_u32 s29, s29, s28")
    A("s_add_u32 s28, s28, 0x%x" % WS_K)
    A("s_lshl_b32 s33, s24, 11")
    A("s_add_u32 s30, s28, s33\ns_add_u32 s31, s30, 0x%x" % (WS_V - WS_K))
    A("s_mov_b32 s20, 0\ns_mov_b32 s6, 6\ns_mov_b32 s15, 0x%x" % ALL4)
    A("s_mov_b32 s3, 0xc3\ns_mov_b32 s10, 4")
    if NS:
        A("s_sub_u32 s32, s4, 4\ns_cmp_lt_u32 s32, 3\ns_cselect_b32 s0, 7, 64\ns_cselect_b32 s3, 0x%x, s3\ns_cselect_b32 s10, 0x%x, 4" % (0xc3 | (1 << PK), 4 | (2 << PK)))
        A("s_lshl_b32 s1, s25, 5\ns_add_u32 s1, s1, s7\ns_lshl_b32 s1, s1, 13\ns_add_u32 s1, s1, 0x%x" % WS_Z1)
    A("v_and_b32 v18, 31, v1\nv_lshlrev_b32 v18, 2, v18")
    nonce_get(5, 6)
    A("s_waitcnt vmcnt(0)")
    set_flag("s21", 17)
    A("ds_write_b8 v%d, v%d offset:%d" % (VCW, VONE, L_CNTA))
    ST(3)
    A("s_lshl_b32 s21, s25, 7\ns_add_u32 s21, s21, 0x%x" % FL_F1)
    poll(18, "s21", 20, sleep=opt.get("sl1", 3))
    ST(4)
    A("buffer_load_dwordx4 %s, v%d, s[16:19], s28 offen sc1" % (v(K0, 4), VL16))
    A("buffer_load_dwordx4 %s, v%d, s[16:19], s29 offen sc1" % (v(Q[0], 4), VL16))
    A("buffer_load_dwordx4 %s, v%d, s[16:19], s29 offen offset:1024 sc1" % (v(Q[1], 4), VL16))
    def kv_dma(first=False):
        if first:
            A("s_cmp_eq_u32 s24, 0\ns_cselect_b32 s32, 1024, 0\ns_add_u32 m0, s33, s32\ns_add_u32 s32, s32, s30")
            A("buffer_load_dwordx4 v%d, s[16:19], s32 offen sc1 lds" % VL16)
            A("s_mov_b32 m0, s33\ns_mov_b32 s11, s33\ns_mov_b32 s32, 0\ns_mov_b32 s35, s30")
        else:
            A("s_bfe_u32 s32, s9, 0x30004\ns_lshl_b32 s11, s32, 14\ns_add_u32 s11, s11, s33\ns_mov_b32 m0, s11\ns_lshl_b32 s32, s32, 13\ns_add_u32 s35, s30, s32")
            A("buffer_load_dwordx4 v%d, s[16:19], s35 offen sc1 lds" % VL16)
        A("buffer_load_dwordx4 v%d, s[16:19], s35 offen offset:1024 sc1 lds" % VL16)
        A("s_add_u32 m0, s11, 8192\ns_add_u32 s35, s31, s32")
        A("buffer_load_dwordx4 v%d, s[16:19], s35 offen sc1 lds" % VL16)
        A("buffer_load_dwordx4 v%d, s[16:19], s35 offen offset:1024 sc1 lds" % VL16)
    kv_dma(True)
    A("s_lshl_b32 s28, s7, 7\ns_add_u32 s28, s28, 0x%x" % FL_F0)
    A("s_waitcnt vmcnt(4)")
    for sd in range(2):
        A("v_mfma_f32_32x32x16_bf16 %s, %s, %s, 0" % (v(S[sd], 16), v(K0, 4), v(Q[sd], 4)))
    kv_dma()
    A("s_waitcnt vmcnt(4)")
    A("ds_write_b8 v%d, v%d offset:%d" % (VCW, VONE, L_CNTKV))
    for sd in range(2):
        A("v_max3_f32 v%d, v%d, v%d, v%d" % (6 + 2*sd, S[sd], S[sd] + 1, S[sd] + 2))
        for i in range(3, 15, 2):
            A("v_max3_f32 v%d, v%d, v%d, v%d" % (6 + 2*sd, 6 + 2*sd, S[sd] + i, S[sd] + i + 1))
        A("v_max_f32 v%d, v%d, v%d" % (6 + 2*sd, 6 + 2*sd, S[sd] + 15))
    A("L_SETMAX:")
    A("v_mov_b32 v7, v6\nv_mov_b32 v9, v8\ns_nop 1")
    A("v_permlane32_swap_b32 v6, v7\nv_permlane32_swap_b32 v8, v9\ns_nop 1")
    A("v_max_f32 v6, v6, v7\nv_max_f32 v8, v8, v9\nv_sub_f32 v6, 0, v6\nv_sub_f32 v8, 0, v8\nv_mov_b32 v7, v6\nv_mov_b32 v9, v8")
    for i in range(0, 16, 2): A("v_mov_b64 %s, v[6:7]" % v(NM[0] + i, 2))
    A("v_mov_b64 %s, %s\nv_mov_b64 %s, %s" % (v(KF[0], 2), v(K0, 2), v(KF[0] + 2, 2), v(K0 + 2, 2)))
    A("v_mfma_f32_32x32x16_bf16 %s, %s, %s, %s" % (v(S[0], 16), v(K0, 4), v(Q[0], 4), v(NM[0], 16)))
    for i in range(0, 16, 2): A("v_mov_b64 %s, v[8:9]" % v(NM[1] + i, 2))
    zero(S[1] + 8, 8)
    lds_wait(L_CNTKV, ALL4, 5)
    A("s_mov_b64 exec, s[22:23]")
    A("ds_read_b128 %s, v%d" % (v(VF[0], 4), VA))
    A("ds_read_b128 %s, v%d offset:512" % (v(VF[0] + 4, 4), VA))
    A("s_mov_b64 exec, -1")
    A("ds_read_b128 %s, v%d offset:1024" % (v(KF[1], 4), KA))
    ST(5)
    A("s_waitcnt lgkmcnt(0)")
    A("s_setprio 1")
    A("s_mov_b32 s5, 0")
    A(".p2align 3")
    A("L_ALOOP:")
    def ex(sd, a_, b_):
        for i in range(a_, b_): A("v_exp_f32 v%d, v%d" % (S[sd] + i, S[sd] + i))
    def sm(sd, vf, half):
        A("v_smfmac_f32_32x32x32_bf16 %s, %s, %s, v%d" % (v(O[sd], 16), v(vf + 4*half, 4), v(S[sd] + 8*half, 8), IDX))
    toff = lambda t: (t & 7)*1024
    TD, TA = opt.get('td', 5), opt.get('ta', 2)
    assert (TD, TA) == (5, 2)
    slotA = {0: "s_lshr_b32 s9, s9, 4", 1: "s_and_b32 s8, s9, 7", 2: "s_lshl_b32 s8, s8, 14", 3: "s_lshl_b32 s14, s12, 13",
             4: "s_add_u32 s13, s30, s14", 5: "s_mov_b32 m0, s11", 6: "s_nop 0", 7: "s_add_u32 s5, s5, 1"}
    slotB = {0: "s_nop 0", 1: "s_lshl_b32 s11, s12, 14", 3: "s_add_u32 s11, s11, s33", 4: "s_add_u32 s14, s31, s14", 6: "s_nop 0", 7: "s_nop 0"}
    for t in range(8):
        kc, kn = KF[t & 1], KF[(t + 1) & 1]
        vc, vn = VF[t & 1], VF[(t + 1) & 1]
        ex(0, 0, 2)
        sm(1, vn, 1)
        A("s_mov_b64 exec, s[22:23]")
        A(slotA[t])
        A("ds_read_b128 %s, v%d offset:%d" % (v(vn, 4), VA, toff(t + 1)))
        A("ds_read_b128 %s, v%d offset:%d" % (v(vn + 4, 4), VA, toff(t + 1) + 512))
        A("s_mov_b64 exec, -1")
        ex(0, 2, 5)
        A("v_mfma_f32_32x32x16_bf16 %s, %s, %s, %s" % (v(S[1], 16), v(kc, 4), v(Q[1], 4), v(NM[1], 16)))
        if t == 0: A("s_bfe_u32 s12, s9, 0x30004")
        ex(0, 5, 11)
        sm(0, vc, 0)
        if t == TD:
            A("s_bitcmp1_b32 s3, s5\ns_cbranch_scc1 L_TD")
            A("L_XFREE:")
            A("buffer_load_dwordx4 v%d, s[16:19], s13 offen sc1 lds" % VL16)
            A("buffer_load_dwordx4 v%d, s[16:19], s13 offen offset:1024 sc1 lds" % VL16)
            A("s_add_u32 m0, s11, 8192")
            ex(0, 11, 13)
            A("buffer_load_dwordx4 v%d, s[16:19], s14 offen sc1 lds" % VL16)
            A("buffer_load_dwordx4 v%d, s[16:19], s14 offen offset:1024 sc1 lds" % VL16)
            A("L_NODMA:")
            A("v_exp_f32_e64 v%d, v%d" % (S[0] + 13, S[0] + 13))
            ex(0, 14, 16)
        elif t == TA:
            A("s_waitcnt vmcnt(0)")
            A("s_bitcmp1_b32 s10, s5")
            A("ds_write_b8 v%d, v%d offset:%d" % (VCW, VONE, L_CNTKV + 4))
            A("v_exp_f32_e64 v%d, v%d" % (S[0] + 11, S[0] + 11))
            ex(0, 12, 16)
        else:
            A(slotB[t])
            ex(0, 11, 16)
        ex(1, 0, 2)
        sm(0, vc, 1)
        A("s_waitcnt lgkmcnt(%d)" % (3 if t == TA else 2))
        if t == TA:
            A("s_cbranch_scc1 L_TA")
            A("L_NOG:")
            A("v_exp_f32_e64 v%d, v%d" % (S[1] + 2, S[1] + 2))
            ex(1, 3, 5)
        else:
            ex(1, 2, 5)
        A("v_mfma_f32_32x32x16_bf16 %s, %s, %s, %s" % (v(S[0], 16), v(kn, 4), v(Q[0], 4), v(NM[0], 16)))
        if t == 6: A("v_cmp_ne_u32_e64 vcc, s15, v5\nv_add_u32 v%d, s8, v%d\nv_add_u32 v%d, s8, v%d" % (KA, VL16, VA, VAB))
        if t == 7: A("v_add_u32 v%d, 4, v%d\nv_add_u32 v%d, 4, v%d" % (VCW, VCW, VC, VC))
        ex(1, 5, 11)
        sm(1, vc, 0)
        A("s_waitcnt lgkmcnt(0)")
        if t == 6:
            A("s_cbranch_vccnz L_KVWAIT")
            A("L_KVOK:")
        else:
            A("s_cmp_lt_u32 s5, 8" if t == 7 else ("s_cmp_eq_u32 s5, s0" if NS and t == 7 - NS else "s_nop 0"))
        A("ds_read_b128 %s, v%d offset:%d" % (v(kc, 4), KA, toff(t + 2)))
        if t == 5: A("ds_read_b32 v5, v%d offset:%d" % (VC, L_CNTKV + 4))
        if t == 7:
            ex(1, 11, 16)
        elif NS and t == 7 - NS:
            ex(1, 11, 16)
            A("s_cbranch_scc1 L_AEXIT")
        else:
            A("v_exp_f32_e64 v%d, v%d" % (S[1] + 11, S[1] + 11))
            ex(1, 12, 16)
    A("s_cbranch_scc1 L_ALOOP")
    A("s_nop 0")
    sm(1, VF[1], 1)
    A("s_setprio 3")
    A("L_AJOIN:")
    if opt.get("sig", 0) == 0: A("s_lshl_b32 s32, s24, 2\nv_mov_b32 v5, s32\nds_write_b32 v5, v%d offset:%d" % (VONE, L_CNTD))
    ST(6)
    A(".p2align 3")
    A("v_add_f32 v5, abs(v%d), abs(v%d)" % (O[0] + 8, O[0]))
    for i in range(1, 8): A("v_add_f32 v5, v5, abs(v%d)" % (O[0] + i))
    def o_pack(sd):
        A("v_rcp_f32 v%d, v%d" % (8, O[sd] + 8))
        A("s_nop 0")
        A("v_mul_f32 v8, v8, v%d" % (10 + sd))
        A("s_nop 0")
        for i in range(4): A("v_pk_mul_f32 %s, %s, v[8:9] op_sel_hi:[1,0]" % (v(160 + 2*i, 2), v(O[sd] + 2*i, 2)))
        for i in range(4): A("v_cvt_pk_bf16_f32 v%d, v%d, v%d" % (152 + 4*sd + i, 160 + 2*i, 161 + 2*i))
        for i in range(4): A("v_min_u32 v%d, -2, v%d" % (152 + 4*sd + i, 152 + 4*sd + i))
    o_pack(0)
    for i in range(9): A("v_add_f32 v5, v5, abs(v%d)" % (O[1] + i))
    A("v_mov_b32 v6, 0x207")
    A("v_cmp_class_f32 vcc, v5, v6")
    o_pack(1)
    A("s_cmp_lg_u32 s20, 0\ns_cbranch_scc1 L_AFIN")
    A("s_cbranch_vccnz L_REDO")
    A("L_AFIN:")
    for sd in range(2):
        A("buffer_store_dwordx4 %s, v14, s[16:19], s21 offen offset:%d sc1" % (v(152 + 4*sd, 4), 2048*sd))
    if opt.get("sig", 0) == 1: A("s_lshl_b32 s32, s24, 2\nv_mov_b32 v5, s32\nds_write_b32 v5, v%d offset:%d" % (VONE, L_CNTD))
    ST(7)
    A("s_barrier\ns_barrier")
    A("s_branch L_FIN")
    if NS:
        PR = 168
        A("L_AEXIT:")
        A("s_setprio 3")
        sm(1, VF[(7 - NS) & 1], 1)
        for i in range(4): A("v_pk_add_f32 %s, %s, %s" % (v(O[0] + 2*i, 2), v(O[0] + 2*i, 2), v(PR + 2*i, 2)))
        A("v_add_f32 v%d, v%d, v%d" % (O[0] + 8, O[0] + 8, PR + 16))
        A("s_nop 6")
        for i in range(4): A("v_pk_add_f32 %s, %s, %s" % (v(O[1] + 2*i, 2), v(O[1] + 2*i, 2), v(PR + 8 + 2*i, 2)))
        A("v_add_f32 v%d, v%d, v%d" % (O[1] + 8, O[1] + 8, PR + 17))
        A("s_branch L_AJOIN")
        A("L_TD4:")
        A("s_add_u32 s32, s1, 6144")
        A("buffer_load_dword v15, v%d, s[16:19], s32 offen sc1" % VZ)
        A("s_branch L_XFREE")
        A("L_TA5:")
        A("s_add_u32 s32, s1, 6144")
        A("v_cmp_ne_u32 vcc, s27, v15")
        A("s_nop 4\ns_cbranch_vccz L_LATE3")
        poll(VZ, "s32", 15)
        A("L_LATE3:")
        for q in range(4):
            A("buffer_load_dwordx4 %s, v%d, s[16:19], s1 offen offset:%d sc1" % (v(PR + 4*q, 4), VL16, 1024*q))
        A("s_add_u32 s32, s1, 4096")
        A("buffer_load_dwordx2 %s, v%d, s[16:19], s32 offen sc1" % (v(PR + 16, 2), VL16))
        A("s_branch L_NOG")
    A("L_TD:")
    A("s_cmp_lt_u32 s5, s6\ns_cbranch_scc1 L_TD0")
    ex(0, 11, 13)
    A("s_branch L_NODMA")
    A("L_TD0:")
    A("s_cmp_lg_u32 s5, 0\ns_cbranch_scc1 L_TD1")
    lds_wait(L_CNTG, 4, 5)
    A("s_branch L_XFREE")
    A("L_TD1:")
    if NS: A("s_cmp_eq_u32 s5, %d\ns_cbranch_scc1 L_TD4" % PK)
    A("buffer_load_dword v10, v%d, s[16:19], s28 offen sc1" % VZ)
    A("v_and_b32 v14, 15, v1\nv_lshlrev_b32 v14, 4, v14\nv_bfe_u32 v8, v1, 4, 1\nv_lshl_add_u32 v14, v8, 10, v14\nv_lshrrev_b32 v8, 5, v1\nv_lshl_add_u32 v14, v8, 8, v14")
    A("s_mul_i32 s21, s7, 44\ns_lshr_b32 s32, s25, 1\ns_add_u32 s21, s21, s32\ns_add_u32 s21, s21, 28\ns_lshl_b32 s21, s21, 12")
    A("s_and_b32 s32, s25, 1\ns_lshl_b32 s32, s32, 9\ns_add_u32 s21, s21, s32\ns_add_u32 s21, s21, 0x%x" % WS_ACT)
    A("v_mov_b64 v[152:153], -1\nv_mov_b64 v[154:155], -1")
    for sd in range(2):
        A("buffer_store_dwordx4 v[152:155], v14, s[16:19], s21 offen offset:%d sc1" % (2048*sd))
    A("s_branch L_XFREE")
    A("L_TA:")
    if NS: A("s_cmp_eq_u32 s5, %d\ns_cbranch_scc1 L_TA5" % (PK + 1))
    A("s_lshl_b32 s29, s7, 12\ns_lshl_b32 s32, s25, 7\ns_add_u32 s29, s29, s32\ns_add_u32 s29, s29, 0x%x" % FL_F5)
    set_flag("s29", 5)
    A("v_cmp_ne_u32 vcc, s27, v10")
    A("s_nop 4\ns_cbranch_vccz L_GOK")
    poll(VZ, "s28", 10)
    A("L_GOK:")
    A("v_and_b32 v5, 31, v1\nv_lshlrev_b32 v5, 2, v5\ns_lshl_b32 s29, s7, 8\ns_add_u32 s29, s29, 0x%x" % WS_G)
    A("buffer_load_dword v10, v5, s[16:19], s29 offen sc1")
    A("buffer_load_dword v11, v5, s[16:19], s29 offen offset:128 sc1")
    A("s_branch L_NOG")
    A("L_KVWAIT:")
    lds_wait(L_CNTKV + 4, ALL4, 5, va=VC)
    A("s_branch L_KVOK")
    A("L_REDO:")
    A("s_waitcnt lgkmcnt(0)")
    A("s_mov_b32 s20, 1\ns_mov_b32 s0, 64\ns_mov_b32 s6, 0\ns_mov_b32 s10, 0\ns_mov_b32 s3, 0xff")
    A("s_lshl_b32 s32, s24, 2\nv_mov_b32 v5, s32\nds_write_b32 v5, v%d offset:%d" % (VONE, L_CNTD))
    lds_wait(L_CNTX, 4, 5, sleep=8)
    A("s_lshl_b32 s30, s25, 16\ns_add_u32 s30, s30, 0x%x\ns_mov_b32 s5, 16" % WS_K)
    A("L_RELOAD:")
    A("s_lshr_b32 s32, s5, 3\ns_lshl_b32 s32, s32, 14\ns_and_b32 s35, s5, 7\ns_lshl_b32 s35, s35, 10\ns_add_u32 s32, s32, s35")
    A("s_lshl_b32 s35, s5, 10\ns_add_u32 s35, s35, s30\ns_mov_b32 m0, s32\ns_nop 0")
    A("buffer_load_dwordx4 v%d, s[16:19], s35 offen sc1 lds" % VL16)
    A("s_add_u32 m0, s32, 8192\ns_add_u32 s35, s35, 0x%x" % (WS_V - WS_K))
    A("buffer_load_dwordx4 v%d, s[16:19], s35 offen sc1 lds" % VL16)
    A("s_waitcnt vmcnt(16)")
    A("s_add_u32 s5, s5, 1\ns_cmp_lt_u32 s5, 48\ns_cbranch_scc1 L_RELOAD")
    A("s_waitcnt vmcnt(0)")
    pass
    A("s_mov_b64 exec, s[22:23]")
    zero(VF[1] + 4, 4)
    A("s_mov_b64 exec, -1")
    A("v_mov_b32 v6, 0xff800000\nv_mov_b32 v8, 0xff800000")
    A("v_mov_b64 %s, %s\nv_mov_b64 %s, %s" % (v(KF[0], 2), v(K0, 2), v(KF[0] + 2, 2), v(K0 + 2, 2)))
    A("s_mov_b32 s5, 1\ns_nop 1")
    A("L_MAXL:")
    for sd in range(2):
        A("v_mfma_f32_32x32x16_bf16 %s, %s, %s, 0" % (v(S[sd], 16), v(KF[0], 4), v(Q[sd], 4)))
    A("s_lshr_b32 s32, s5, 3\ns_lshl_b32 s32, s32, 14\ns_and_b32 s35, s5, 7\ns_lshl_b32 s35, s35, 10\ns_add_u32 s32, s32, s35")
    A("v_add_u32 v%d, s32, v%d" % (KA, VL16))
    A("ds_read_b128 %s, v%d" % (v(KF[0], 4), KA))
    A("s_nop 15")
    for sd in range(2):
        for i in range(0, 16, 2):
            A("v_max3_f32 v%d, v%d, v%d, v%d" % (6 + 2*sd, 6 + 2*sd, S[sd] + i, S[sd] + i + 1))
    A("s_waitcnt lgkmcnt(0)")
    A("s_add_u32 s5, s5, 1\ns_cmp_lt_u32 s5, 65\ns_cbranch_scc1 L_MAXL")
    att_reset()
    A("s_branch L_SETMAX")

    A("L_GSTART:")
    A("s_setprio 2")
    common()
    A("s_sub_u32 s7, s24, 4")
    A("s_waitcnt lgkmcnt(0)")
    if opt.get("tlb0", 0) == 1:
        for p in (P_WIN, P_WQKV): A("s_load_dword s97, s[%d:%d], 0" % (p, p + 1))
    srd(A, 8, P_WIN, P_WIN + 1, 512*1792*2)
    srd(A, 16, P_WS, P_WS + 1, WS_USED)
    srd(A, 60, P_DBG, P_DBG + 1, 256)
    A("s_cmp_lg_u32 s7, 3\ns_cbranch_scc1 L_NOLEAD")
    zero(16, 4)
    A("ds_write_b128 v%d, v[16:19]" % VL16)
    A("s_cmp_lg_u32 s2, 25\ns_cbranch_scc1 L_NOLEAD")
    A("s_mov_b32 s31, 0x%x" % FL_EPOCH)
    A("buffer_load_dword v16, v%d, s[16:19], s31 offen sc0 sc1" % VZ)
    A("s_mov_b32 s32, 0x9e3779b1")
    A("s_waitcnt vmcnt(0)")
    A("v_mul_lo_u32 v16, v16, s32")
    A("v_add_u32 v16, 0x7f4a7c15, v16")
    A("v_max_u32 v16, 1, v16")
    A("s_mov_b64 exec, 1")
    A("buffer_store_dword v16, v%d, s[60:63], 0 offen sc0 sc1" % VZ)
    A("buffer_store_dword v16, v%d, s[16:19], s31 offen sc0 sc1" % VZ)
    A("s_mov_b64 exec, -1")
    A("L_NOLEAD:")
    A("s_lshr_b32 s22, s7, 1\ns_and_b32 s23, s7, 1")
    A("s_lshl_b32 s30, s7, 13\ns_add_u32 s30, s30, %d" % L_G)
    xr_setup(16)
    srd(A, 12, P_WQKV, P_WQKV + 1, 512*1536*2)
    A("v_lshrrev_b32 v16, 3, v1\ns_lshl_b32 s29, s7, 4\nv_add_u32 v16, s29, v16\nv_mul_u32_u24 v16, 3072, v16")
    A("v_bfe_u32 v17, v1, 4, 1\nv_lshlrev_b32 v17, 1, v17\nv_and_b32 v18, 7, v1\nv_xor_b32 v17, v17, v18\nv_lshlrev_b32 v17, 4, v17")
    A("s_lshl_b32 s28, s26, 7\nv_add3_u32 v%d, v16, v17, s28" % LQ[0])
    A("v_xor_b32 v%d, 64, v%d\nv_add_u32 v%d, %d, v%d" % (LQ[1], LQ[0], LQ[1], 8*3072 - 1024, LQ[1]))
    A("s_lshl_b32 s1, s7, 11\ns_add_u32 s1, s1, %d\ns_add_u32 s0, s6, 2\ns_and_b32 s0, s0, 7" % L_WQ)
    def g_ldq(i):
        A("s_mul_i32 s31, s0, %d" % (64*3072))
        for mat in range(3):
            A("s_add_u32 m0, s1, %d" % (SLOT*((i + 1) % 3) + 7168*mat))
            A(("s_add_u32 s0, s0, 1", "s_and_b32 s0, s0, 7", "s_nop 0")[mat])
            A("buffer_load_dwordx4 v%d, s[12:15], s31 offen offset:%d lds" % (LQ[0], 1024*mat))
            A("buffer_load_dwordx4 v%d, s[12:15], s31 offen offset:%d lds" % (LQ[1], 1024*mat + 1024))
    A("s_cmp_lt_u32 s4, 7\ns_cbranch_scc1 L_Z2S")
    A("s_waitcnt lgkmcnt(0)\ns_mov_b32 s10, 0")
    for i in range(8): A("s_barrier")
    A("s_branch L_ZEND")
    A("L_Z2S:")
    Z2 = 192
    XZ, WZ = (16, 64), (32, 80)
    A("s_lshl_b32 s32, s22, 13\ns_add_u32 s32, s32, %d" % (L_WQ + SLOT))
    wr_setup(16, "s32")
    A("v_mov_b32 v5, v%d" % VW[0])
    A("s_lshl_b32 s20, s23, 12\ns_add_u32 s20, s20, %d" % L_X)
    zero(Z2, 32); zero(XZ[1], 48)
    A("s_mov_b32 s33, 16384\ns_mov_b32 s5, 0\ns_mov_b32 s21, s6")
    def z_mfma(b, k):
        m, nn, p = k >> 2, (k >> 1) & 1, k & 1
        c = v(Z2 + 8*m + 4*nn, 4)
        A("v_mfma_f32_16x16x32_bf16 %s, %s, %s, %s" % (c, v(WZ[b] + 8*m + 4*p, 4), v(XZ[b] + 8*nn + 4*p, 4), c))
    A("s_waitcnt lgkmcnt(0)")
    A("L_ZLOOP:")
    for b in range(2):
        A("s_lshl_b32 s32, s21, 13\ns_add_u32 s32, s32, s20")
        A("v_add_u32 v%d, s32, v%d\nv_xor_b32 v%d, 64, v%d\nv_add_u32 v%d, s33, v5" % (VX[0], VXB, VX[1], VX[0], VW[0]))
        for m in range(1, 4): A("v_xor_b32 v%d, %d, v%d" % (VW[m], 32*m, VW[0]))
        A("s_add_u32 s21, s21, 1\ns_and_b32 s21, s21, 7")
        A("s_add_u32 s33, s33, %d\ns_cmp_eq_u32 s33, %d\ns_cselect_b32 s33, 0, s33" % (16384, 3*16384))
        A("s_barrier")
        rd = ["ds_read_b128 %s, v%d offset:%d" % (v(XZ[b] + 8*nn + 4*p, 4), VX[p], 2048*nn) for nn in range(2) for p in range(2)]
        rd += ["ds_read_b64_tr_b16 %s, v%d offset:%d" % (v(WZ[b] + 8*m + 4*p + 2*h, 2), VW[m], 4096*p + 512*h) for m in range(4) for p in range(2) for h in range(2)]
        A(".p2align 3")
        for k in range(16):
            if k < 10:
                if k == 7: A("s_waitcnt lgkmcnt(8)\ns_nop 0")
                A(rd[2*k]); A(rd[2*k + 1])
            z_mfma(b ^ 1, k)
        A("s_waitcnt lgkmcnt(0)")
    A("s_add_u32 s5, s5, 1\ns_cmp_lt_u32 s5, 4\ns_cbranch_scc1 L_ZLOOP")
    A("L_ZEND:")
    A("s_barrier")
    ST(1)
    g_ldq(10)
    for k in range(16): z_mfma(1, k)
    for i in range(9, 15):
        if i >= 10: A("s_waitcnt vmcnt(6)")
        A("s_barrier")
        if i <= 13: g_ldq(i + 2)
        if i == 9:
            A("s_mov_b32 s20, %s\ns_mov_b32 s21, %s" % (f32(GC2), f32(GC2)))
            A("v_mov_b32 v24, %s\nv_mov_b32 v25, %s\nv_mov_b32 v26, 1.0\nv_mov_b32 v27, 1.0" % (f32(GC1), f32(GC1)))
            A("s_mov_b32 s28, 3584")
            A("s_lshl_b32 s29, s4, 8\ns_lshl_b32 s32, s22, 7\ns_add_u32 s29, s29, s32")
            w_setup(16)
        if 0 <= i - 10 < opt.get("gq", 0): emit_gelu(A, Z2 + 8*(i - 10), 8, 32, 24, 20, 26)
        if i == 10:
            A("s_sub_u32 s32, s30, 32768")
            wr_setup(20, "s32")
            A("s_lshl_b32 s32, s23, 6")
            for m in range(4): A("v_xor_b32 v%d, s32, v%d" % (VW[m], VW[m]))
    A("s_lshl_b32 s29, s28, 5\ns_lshl_b32 s3, s23, 3\ns_mul_i32 s3, s3, s29\ns_lshl_b32 s33, s29, 3\ns_add_u32 s33, s33, s3")
    A("s_and_b32 s6, s25, 3\ns_lshl_b32 s32, s6, 1\ns_mul_i32 s31, s32, s29\ns_add_u32 s31, s31, s3")
    A("s_lshl_b32 s5, s23, 15\ns_add_u32 s5, s5, %d" % L_X)
    nonce_load(28)
    w_dma(0); w_dma(1)
    def x_addr():
        A("s_lshl_b32 s32, s6, 13\ns_add_u32 s32, s32, s5")
        A("v_add_u32 v%d, s32, v%d\nv_xor_b32 v%d, 64, v%d" % (VX[0], VXB, VX[1], VX[0]))
        A("s_add_u32 s6, s6, 1\ns_and_b32 s6, s6, 3")
    x_addr()
    def st_loads():
        for j in range(7):
            A("buffer_load_dwordx4 %s, v%d, s[16:19], s%d offen offset:%d sc0 sc1" % (v(64 + 4*j, 4), VL16, j >> 2, 1024*(j & 3)))
        A("buffer_load_dword v92, v%d, s[16:19], s28 offen sc0 sc1" % VZ)
    A("s_waitcnt vmcnt(9)")
    A("s_barrier")
    A("s_barrier")
    ST(2)
    A("s_cmp_ge_u32 s4, 7\ns_cbranch_scc1 L_G7")
    SET = (64, 0)
    def d_reads(d):
        b = SET[d & 1]
        w = ["ds_read_b64_tr_b16 %s, v%d offset:%d" % (v(WS_(d) + 8*m + 4*p + 2*h, 2), VW[m], soff(2*(d & 1) + p) + 512*h) for m in range(4) for p in range(2) for h in range(2)]
        x = ["ds_read_b128 %s, v%d offset:%d" % (v(XS_(d) + 8*n + 4*p, 4), VX[p], 2048*n) for n in range(4) for p in range(2)]
        return w + x
    def d_mfma(d, fill):
        b = SET[d & 1]
        fill = list(fill)
        for k in range(32):
            m, n, p = k >> 3, (k >> 1) & 3, k & 1
            c = v(ACC + 16*m + 4*n, 4)
            A("v_mfma_f32_16x16x32_bf16 %s, %s, %s, %s" % (c, v(WS_(d) + 8*m + 4*p, 4), v(XS_(d) + 8*n + 4*p, 4), "0" if (d == 0 and p == 0) else c))
            if fill: A(fill.pop(0))
    def with_waits(rd):
        return rd[:12] + ["s_waitcnt lgkmcnt(3)\ns_nop 0\n" + rd[12]] + rd[13:]
    XS_ = lambda d: (64, 32)[d & 1]
    WS_ = lambda d: (96, 224)[d & 1]
    w_dma(2); w_dma(3)
    A("s_waitcnt vmcnt(8)")
    for l in with_waits(d_reads(0)): A(l)
    emit_gelu(A, Z2 + 8*opt.get("gq", 0), 32 - 8*opt.get("gq", 0), 16, 24, 20, 26)
    for nn in range(2):
        sA, sB = 16 + 2*nn, 20 + 2*nn
        for m in range(4):
            for h in range(2):
                c = Z2 + 8*m + 4*nn + 2*h
                if m == 0 and h == 0:
                    A("v_pk_mul_f32 %s, %s, %s" % (v(sB, 2), v(c, 2), v(c, 2)))
                    A("v_pk_add_f32 %s, %s, %s" % (v(sA, 2), v(c, 2), v(c + 2, 2)))
                else:
                    A("v_pk_fma_f32 %s, %s, %s, %s" % (v(sB, 2), v(c, 2), v(c, 2), v(sB, 2)))
                    if m > 0: A("v_pk_add_f32 %s, %s, %s" % (v(sA, 2), v(sA, 2), v(c, 2)))
    for i in range(4): A("v_add_f32 v%d, v%d, v%d" % (16 + 2*i, 16 + 2*i, 17 + 2*i))
    A("s_nop 1")
    A("v_permlane16_swap_b32 v16, v18\nv_permlane16_swap_b32 v20, v22\ns_nop 1")
    A("v_add_f32 v16, v16, v18\nv_add_f32 v18, v20, v22\nv_mov_b32 v17, v16\nv_mov_b32 v19, v18\ns_nop 1")
    A("v_permlane32_swap_b32 v16, v17\nv_permlane32_swap_b32 v18, v19\ns_nop 1")
    A("v_add_f32 v16, v16, v17\nv_add_f32 v18, v18, v19")
    nonce_get(28, 8)
    A("v_mov_b32 v17, s27\nv_mov_b32 v19, s27")
    A("s_lshl_b32 s32, s25, 1\ns_add_u32 s32, s32, s23\ns_mul_i32 s0, s32, 7168\ns_add_u32 s0, s0, 0x%x" % WS_ST)
    A("s_lshl_b32 s32, s4, 1\ns_add_u32 s32, s32, s22\ns_lshl_b32 s32, s32, 9\ns_add_u32 s32, s32, s0")
    A("s_mov_b32 exec_hi, 0")
    A("buffer_store_dwordx4 v[16:19], v%d, s[16:19], s32 offen sc0 sc1" % VL16)
    A("s_mov_b32 exec_hi, -1")
    A("s_add_u32 s1, s0, 4096")
    if opt.get("d23", 0):
        A("s_waitcnt lgkmcnt(0)")
        if opt["d23"] == 2: lds_wait(L_CNTA, 0x01010101, 29)
        w_dma(0); w_dma(1)
        x_addr()
        A("s_waitcnt vmcnt(9)")
        for l in with_waits(d_reads(1)): A(l)
        A("s_waitcnt lgkmcnt(8)")
        w_dma(2); w_dma(3)
        x_addr()
        A(".p2align 3")
        d_mfma(0, [])
        A("s_waitcnt vmcnt(8) lgkmcnt(0)\ns_nop 0")
    else:
        A("s_waitcnt lgkmcnt(0)")
        w_dma(0); w_dma(1)
        x_addr()
        A("s_waitcnt vmcnt(9)")
        A(".p2align 3")
        d_mfma(0, with_waits(d_reads(1)))
        A("s_waitcnt lgkmcnt(0)")
        w_dma(2); w_dma(3)
        x_addr()
        A("s_waitcnt vmcnt(8)")
        A(".p2align 3")
    d_mfma(1, with_waits(d_reads(2)))
    x_addr()
    A("s_waitcnt vmcnt(0) lgkmcnt(0)")
    A(".p2align 3")
    d_mfma(2, with_waits(d_reads(3)))
    A("s_lshl_b32 s28, s25, 7\ns_add_u32 s28, s28, 0x%x" % FL_F0)
    st_loads()
    A("v_add_u32 v16, s30, v%d\nv_xor_b32 v17, 0x2000, v16" % VL16)
    A("s_waitcnt lgkmcnt(0)")
    for k in range(32):
        m, n, p = (k >> 3) ^ 2, (k >> 1) & 3, k & 1
        c = v(ACC + 16*m + 4*n, 4)
        A("v_mfma_f32_16x16x32_bf16 %s, %s, %s, %s" % (c, v(WS_(1) + 8*m + 4*p, 4), v(XS_(1) + 8*n + 4*p, 4), c))
        if k >= 16 and (k & 1):
            q = (k - 16) >> 1
            A("ds_write_b128 v16, %s offset:%d" % (v(ACC + 32 + 4*q, 4), 1024*q))
    A("v_and_b32 v60, 15, v1\nv_lshlrev_b32 v60, 7, v60\nv_bfe_u32 v61, v1, 1, 1\nv_lshl_add_u32 v60, v61, 5, v60")
    A("v_bfe_u32 v61, v1, 3, 1\nv_xor_b32 v61, s23, v61\nv_lshl_add_u32 v60, v61, 6, v60\nv_lshrrev_b32 v61, 4, v1\nv_lshl_add_u32 v60, v61, 3, v60")
    A("s_sub_u32 s32, s30, 32768\nv_add_u32 v60, s32, v60")
    for m in range(1, 4): A("v_xor_b32 v%d, %d, v60" % (60 + m, 32*m))
    A("s_waitcnt lgkmcnt(0)")
    arrive(L_CNTR)
    ST(3)
    Lp = A.newlabel("SP")
    A("s_mov_b32 s34, 0")
    A("s_waitcnt vmcnt(0)")
    A(Lp + ":")
    A("v_xor_b32 v20, s27, v92")
    for j in range(7):
        for q in (1, 3):
            A("v_xor_b32 v21, s27, v%d\nv_or_b32 v20, v20, v21" % (64 + 4*j + q))
    A("v_cmp_ne_u32 vcc, 0, v20")
    A("s_add_u32 s34, s34, 1\ns_cmp_ge_u32 s34, %d\ns_cbranch_scc1 %s_x" % (SPIN_MAX // 16, Lp))
    A("s_cbranch_vccz %s_x" % Lp)
    st_loads()
    A("s_waitcnt vmcnt(0)")
    A("s_branch %s" % Lp)
    A(Lp + "_x:")
    ST(4)
    srd(A, 8, P_BSP, P_BSP + 1, 4096)
    A("v_and_b32 v5, 15, v1\nv_lshlrev_b32 v6, 1, v5\nv_lshlrev_b32 v5, 2, v5")
    A("s_lshl_b32 s28, s25, 7\ns_lshl_b32 s29, s25, 8\ns_add_u32 s29, s29, 0x%x" % WS_G)
    for n in range(4):
        A("buffer_load_ushort v%d, v6, s[8:11], s28 offen offset:%d" % (112 + 2*n, 32*n))
        A("buffer_load_dword v%d, v5, s[16:19], s29 offen offset:%d sc1" % (120 + 2*n, 64*n))
    A("v_mov_b32 v32, v64\nv_mov_b32 v34, v66")
    for j in range(1, 7):
        A("v_add_f32 v32, v32, v%d\nv_add_f32 v34, v34, v%d" % (64 + 4*j, 66 + 4*j))
    A("v_mov_b32 v33, v32\nv_mov_b32 v35, v34\ns_nop 1")
    A("v_permlane32_swap_b32 v32, v33\nv_permlane32_swap_b32 v34, v35\ns_nop 1")
    A("v_add_f32 v32, v32, v33\nv_add_f32 v34, v34, v35")
    A("v_mul_f32 v32, %s, v32\nv_mul_f32 v34, %s, v34" % (f32(1.0/896), f32(1.0/896)))
    A("v_fma_f32 v34, -v32, v32, v34\nv_max_f32 v34, 0, v34\nv_add_f32 v34, %s, v34" % f32(1e-5))
    A("v_rsq_f32 v36, v34\ns_nop 0\nv_mul_f32 v40, v32, v36\nv_sub_f32 v40, 0, v40")
    A("v_mov_b32 v38, v36\nv_mov_b32 v42, v40\ns_nop 1")
    A("v_permlane16_swap_b32 v36, v38\nv_permlane16_swap_b32 v40, v42")
    A("s_waitcnt lgkmcnt(0)\ns_nop 0")
    for m in range(4):
        for nn in range(2):
            c = Z2 + 8*m + 4*nn
            T = 44 + 2*(2*m + nn)
            for h in range(2):
                A("v_pk_fma_f32 %s, %s, %s, %s op_sel_hi:[1,0,0]" % (v(c + 2*h, 2), v(c + 2*h, 2), v(36 + 2*nn, 2), v(40 + 2*nn, 2)))
            A("v_cvt_pk_bf16_f32 v%d, v%d, v%d\nv_cvt_pk_bf16_f32 v%d, v%d, v%d" % (T, c, c + 1, T + 1, c + 2, c + 3))
            A("ds_write_b64 v%d, %s offset:%d" % (60 + m, v(T, 2), 2048*nn))
    A("s_lshl_b32 s0, s4, 5\ns_add_u32 s0, s0, s25\ns_lshl_b32 s0, s0, 14\ns_lshl_b32 s32, s22, 13\ns_add_u32 s0, s0, s32")
    A("s_lshl_b32 s32, s23, 10\ns_add_u32 s0, s0, s32\ns_add_u32 s0, s0, 0x%x\ns_add_u32 s1, s0, 4096" % WS_Z2N)
    A("s_waitcnt lgkmcnt(0)")
    for l in w_reads(96, 2): A(l)
    A("s_waitcnt lgkmcnt(0)")
    for m in range(4):
        A("buffer_store_dwordx4 %s, v%d, s[16:19], s%d offen offset:%d sc1" % (v(96 + 4*m, 4), VL16, m >> 1, 2048*(m & 1)))
    arrive(L_CNTG)
    A("s_lshl_b32 s31, s4, 7\ns_lshl_b32 s32, s25, 2\ns_add_u32 s31, s31, s32\ns_add_u32 s31, s31, s7\ns_lshl_b32 s31, s31, 7\ns_add_u32 s31, s31, 0x%x" % FL_F3)
    A("v_mov_b32 v24, %s\nv_mov_b32 v25, %s\nv_mov_b32 v26, 1.0\nv_mov_b32 v27, 1.0" % (f32(GC1), f32(GC1)))
    lds_wait(L_CNTR, 4, 18)
    for q in range(8):
        A("ds_read_b128 %s, v17 offset:%d" % (v(64 + 4*q, 4), 1024*q))
    A("s_waitcnt lgkmcnt(0)")
    arrive(L_CNTR)
    for i in range(16):
        A("v_pk_add_f32 %s, %s, %s" % (v(ACC + 2*i, 2), v(ACC + 2*i, 2), v(64 + 2*i, 2)))
    F3N = opt.get("fl3", 8)
    emit_gelu(A, ACC, F3N, 16, 24, 20, 26)
    A("s_waitcnt vmcnt(0)")
    set_flag("s31", 28)
    emit_gelu(A, ACC + F3N, 32 - F3N, 16, 24, 20, 26)
    for n in range(4):
        A("v_lshlrev_b32 v%d, 16, v%d\nv_sub_f32 v%d, 1.0, v%d\nv_mov_b32 v%d, v%d" % (112 + 2*n, 112 + 2*n, 120 + 2*n, 120 + 2*n, 113 + 2*n, 112 + 2*n))
    for n in range(4):
        for mm in range(2):
            c = ACC + 16*mm + 4*n
            for h in range(2):
                A("v_pk_mul_f32 %s, %s, %s op_sel_hi:[1,0]" % (v(c + 2*h, 2), v(c + 2*h, 2), v(120 + 2*n, 2)))
            A("v_cvt_pk_bf16_f32 v%d, v%d, v%d\nv_cvt_pk_bf16_f32 v%d, v%d, v%d" % (16 + 4*n + 2*mm, c, c + 1, 17 + 4*n + 2*mm, c + 2, c + 3))
            A("v_mov_b64 %s, %s\nv_mov_b64 %s, %s" % (v(c, 2), v(112 + 2*n, 2), v(c + 2, 2), v(112 + 2*n, 2)))
    ST(5)
    WSP, ZR = 32, 64
    srd(A, 12, P_WSP, P_WSP + 1, 2048*2048*2)
    A("v_lshrrev_b32 v5, 3, v1\nv_and_b32 v6, 7, v1\nv_lshrrev_b32 v7, 4, v1\nv_xor_b32 v6, v6, v7")
    A("s_lshl_b32 s28, s25, 6\nv_add_u32 v5, s28, v5\nv_lshlrev_b32 v5, 12, v5\nv_lshl_add_u32 v5, v6, 4, v5")
    A("v_xor_b32 v6, 64, v5\nv_add_u32 v6, %d, v6" % (32768 - 1024))
    A("v_add_u32 v7, %d, v5\nv_add_u32 v8, %d, v6" % (2*(32768 - 1024), 2*(32768 - 1024)))
    if opt.get("srot", 0) == 1: A("s_lshl_b32 s6, s26, 1\ns_add_u32 s6, s6, s25\ns_and_b32 s6, s6, 7")
    elif opt.get("srot") == 2: A("s_lshl_b32 s6, s26, 1\ns_and_b32 s6, s6, 7")
    else: A("s_mov_b32 s6, 0")
    A("s_lshl_b32 s3, s7, 10")
    def sp_dma():
        A("s_lshl_b32 s31, s6, 7\ns_add_u32 s31, s31, s3")
        for hf in range(2):
            A("s_add_u32 m0, s30, %d" % (4096*hf))
            A("s_add_u32 s32, s31, %d" % (131072*hf))
            for q in range(4):
                A("buffer_load_dwordx4 v%d, s[12:15], s32 offen offset:%d lds" % (5 + q, 1024*q))
    lds_wait(L_CNTR, 8, 32)
    sp_dma()
    A("v_add_u32 v%d, s30, v%d\nv_xor_b32 v%d, 64, v%d" % (VX[0], VXB, VX[1], VX[0]))
    for mu in range(4):
        A("s_add_u32 s32, s7, %d\ns_and_b32 s32, s32, 3\ns_lshl_b32 s32, s32, 12\nv_add_u32 v%d, s32, v%d" % (mu, 9 + mu, VL16))
    A("s_lshl_b32 s33, s4, 5\ns_lshl_b32 s32, s7, 3\ns_add_u32 s33, s33, s32\ns_lshl_b32 s33, s33, 14\ns_add_u32 s0, s33, 0x%x" % WS_Z2N)
    A("s_lshl_b32 s33, s6, 14\ns_add_u32 s33, s33, s0")
    zero(ACC + 32, 96)
    A("s_lshl_b32 s28, s4, 2\ns_add_u32 s28, s28, s7\ns_lshl_b32 s28, s28, 12\ns_add_u32 s28, s28, 0x%x" % FL_F3)
    A("v_and_b32 v32, 31, v1\nv_lshlrev_b32 v32, 7, v32")
    A("v_and_b32 v34, 0x180, v32")
    poll(34 if opt.get("p2", 0) else 32, "s28", 33, sleep=opt.get("sl3", 3))
    def z_load(m):
        for p in range(2):
            A("buffer_load_dwordx4 %s, v%d, s[16:19], s33 offen offset:%d sc1" % (v(ZR + 8*m + 4*p, 4), 9 + (m >> 1), 2048*(m & 1) + 1024*p))
    for m in range(8): z_load(m)
    if opt.get("p2", 0): poll(32, "s28", 33, sleep=opt.get("sl3", 3))
    else: A("s_waitcnt vmcnt(8)")
    ST(6)
    A("s_mov_b32 s5, 0")
    A("s_setprio %d" % (2 if opt.get("hi", 0) else opt.get("gprio", 0)))
    A("L_SLOOP:")
    if opt.get("hi", 0):
        A("s_cmp_lg_u32 s5, %d\ns_cbranch_scc1 L_SP2\ns_setprio 0\nL_SP2:" % opt["hi"])
    A("s_add_u32 s6, s6, 1\ns_and_b32 s6, s6, 7\ns_lshl_b32 s33, s6, 14\ns_add_u32 s33, s33, s0")
    G2 = opt.get("g2", 1)
    if G2:
        order = [("z", 0)]*2 + [("d", 0)]*4 + [("z", 1)]*2 + [("d", 0)]*4 + [x for m in range(2, 8) for x in [("z", m)]*2]
    else:
        order = [("d", 0)]*8 + [x for m in range(8) for x in [("z", m)]*2]
    def younger(tag, issued):
        last = max(i for i, x in enumerate(order) if x == tag)
        return len(order) - 1 - last + issued
    def w_frags():
        A("s_waitcnt vmcnt(%d)" % younger(("d", 0), 0))
        for n in range(4):
            for p in range(2):
                A("ds_read_b128 %s, v%d offset:%d" % (v(WSP + 8*n + 4*p, 4), VX[p], 2048*n))
    def s_mfma(m, n):
        c = v(ACC + 16*m + 4*n, 4)
        for p in range(2):
            A("v_mfma_f32_16x16x32_bf16 %s, %s, %s, %s" % (c, v(ZR + 8*m + 4*p, 4), v(WSP + 8*n + 4*p, 4), c))
    w_frags()
    if not G2:
        A("s_waitcnt lgkmcnt(0)")
        sp_dma()
        for m in range(8):
            A("s_waitcnt vmcnt(22)")
            A(".p2align 3")
            for n in range(4): s_mfma(m, n)
            z_load(m)
    else:
        A("s_lshl_b32 s31, s6, 7\ns_add_u32 s31, s31, s3\ns_add_u32 s32, s31, 131072\ns_mov_b32 m0, s30")
        cnt = 0
        def zl(m, p):
            return "buffer_load_dwordx4 %s, v%d, s[16:19], s33 offen offset:%d sc1" % (v(ZR + 8*m + 4*p, 4), 9 + (m >> 1), 2048*(m & 1) + 1024*p)
        for m in range(8):
            A("s_waitcnt vmcnt(%d)" % younger(("z", m), cnt))
            if m == 2: A("s_add_u32 m0, s30, 4096")
            A(".p2align 3")
            fill = [zl(m - 1, 0), zl(m - 1, 1)] if m else []
            if m in (1, 2): fill += ["buffer_load_dwordx4 v%d, s[12:15], s%d offen offset:%d lds" % (5 + q, 30 + m, 1024*q) for q in range(4)]
            for n in range(4):
                if m == 0: A("s_waitcnt lgkmcnt(%d)\ns_nop 0" % (6 - 2*n))
                c = v(ACC + 16*m + 4*n, 4)
                for p in range(2):
                    A("v_mfma_f32_16x16x32_bf16 %s, %s, %s, %s" % (c, v(ZR + 8*m + 4*p, 4), v(WSP + 8*n + 4*p, 4), c))
                for _ in range(2 if len(fill) > 4 - n else 1):
                    if fill: A(fill.pop(0)); cnt += 1
        z_load(7)
    A("s_add_u32 s5, s5, 1\ns_cmp_lt_u32 s5, 7\ns_cbranch_scc1 L_SLOOP")
    WHR = (96, 160, 176, 112, 192, 208, 224)
    def wc_base(first_step_expr):
        A("s_mul_i32 s29, s26, 44\n%s\ns_add_u32 s29, s29, s32\ns_lshl_b32 s29, s29, 12\ns_add_u32 s29, s29, 0x%x" % (first_step_expr, WS_WC))
    def wc_load(dst):
        for m in range(4):
            A("buffer_load_dwordx4 %s, v%d, s[16:19], s29 offen offset:%d sc1" % (v(dst + 4*m, 4), VL16, 1024*m))
        A("s_add_u32 s29, s29, 4096")
    A("s_setprio %d" % opt.get("gprio2", 2))
    w_frags()
    A("v_and_b32 v8, 15, v1\nv_lshlrev_b32 v8, 7, v8\ns_lshl_b32 s28, s26, 11\ns_add_u32 s28, s28, 0x%x" % FL_F6)
    A("buffer_load_dword v9, v8, s[16:19], s28 offen sc1")
    A("v_add_u32 v5, s30, v%d\ns_lshl_b32 s32, s7, 14\ns_add_u32 s32, s32, 32768\nv_add_u32 v6, s32, v%d" % (VL16, VL16))
    for r in range(1, 4):
        A("s_sub_u32 s32, s7, %d\ns_and_b32 s32, s32, 3" % r)
        A("s_lshl_b32 s32, s32, %d\ns_add_u32 s32, s32, %d\nv_add_u32 v%d, s32, v%d" % ((13, L_G, 9 + r, VL16) if r == 1 else (14, 32768 + 8192*(r - 2), 9 + r, VL16)))
    wc_base("s_mul_i32 s32, s7, 7")
    A("s_waitcnt lgkmcnt(0)")
    A("s_setprio %d" % opt.get("gprio", 0))
    for mu in (1, 2, 3, 0):
        r = (mu - 1) % 4
        if mu == 3:
            A("s_setprio %d" % opt.get("gprio2", 2))
            A("s_waitcnt vmcnt(0)")
            A("v_cmp_ne_u32 vcc, s27, v9")
            lds_wait(L_CNTKV + 24, 0x01010101, 7)
            A("s_cbranch_vccz L_F6OK")
            poll(8, "s28", 9)
            A("L_F6OK:")
            A("s_setprio %d" % opt.get("gprio4", 0))
        for mm in range(2):
            m = 2*mu + mm
            if mu in (1, 2): A("s_waitcnt vmcnt(%d)" % (2*(7 - m) + 1))
            A(".p2align 3")
            for n in range(4):
                s_mfma(m, n)
                q = 4*mm + n
                if r:
                    A("ds_write_b128 v%d, %s offset:%d" % (5 if r == 1 else 6, v(ACC + 32*r + 4*q, 4), 1024*q + (8192 if r == 3 else 0)))
                if r >= 2 and q in (0, 2, 4):
                    wc_load(WHR[3*(r - 2) + q//2])
        if r: A("s_waitcnt lgkmcnt(0)")
    A("s_setprio %d" % opt.get("gprio2", 2))
    arrive(L_CNTR)
    ST(7)
    wc_load(WHR[6])
    lds_wait(L_CNTR, 12, 7)
    def r_read(r, dst):
        for q in range(8): A("ds_read_b128 %s, v%d offset:%d" % (v(dst + 4*q, 4), 9 + r, 1024*q))
    def r_add(src):
        for i in range(16): A("v_pk_add_f32 %s, %s, %s" % (v(ACC + 2*i, 2), v(ACC + 2*i, 2), v(src + 2*i, 2)))
    r_read(2, 32)
    A("s_waitcnt lgkmcnt(4)")
    r_read(3, 64)
    A("s_waitcnt lgkmcnt(8)")
    r_add(32)
    A("s_waitcnt lgkmcnt(4)")
    r_read(1, 32)
    A("s_waitcnt lgkmcnt(8)")
    r_add(64)
    A("s_waitcnt lgkmcnt(0)")
    arrive(L_CNTR)
    r_add(32)
    ST(8)
    A("v_and_b32 v5, 15, v1\nv_lshlrev_b32 v5, 4, v5\nv_bfe_u32 v6, v1, 4, 1\nv_lshl_add_u32 v5, v6, 9, v5\nv_lshrrev_b32 v6, 5, v1\nv_lshl_add_u32 v5, v6, 8, v5")
    A("s_mul_i32 s31, s25, 44\ns_lshl_b32 s32, s4, 2\ns_add_u32 s32, s32, s7\ns_add_u32 s31, s31, s32\ns_lshl_b32 s31, s31, 12\ns_add_u32 s31, s31, 0x%x" % WS_ACT)
    for n in range(4):
        T = 48 + 4*n
        for i in range(4): A("v_lshlrev_b32 v%d, 16, v%d\nv_and_b32 v%d, 0xffff0000, v%d" % (32 + 2*i, 16 + 4*n + i, 33 + 2*i, 16 + 4*n + i))
        for mm in range(2):
            c = ACC + 16*mm + 4*n
            for i in range(2): A("v_pk_mul_f32 %s, %s, %s" % (v(c + 2*i, 2), v(c + 2*i, 2), v(32 + 4*mm + 2*i, 2)))
        for mm in range(2):
            c = ACC + 16*mm + 4*n
            A("v_cvt_pk_bf16_f32 v%d, v%d, v%d\nv_cvt_pk_bf16_f32 v%d, v%d, v%d" % (T + 2*mm, c, c + 1, T + 2*mm + 1, c + 2, c + 3))
        A("s_nop 1")
        A("v_permlane16_swap_b32 v%d, v%d\nv_permlane16_swap_b32 v%d, v%d" % (T, T + 2, T + 1, T + 3))
        A("buffer_store_dwordx4 %s, v5, s[16:19], s31 offen offset:%d sc1" % (v(T, 4), 1024*n))
    A("s_lshl_b32 s31, s25, 12\ns_lshl_b32 s32, s32, 7\ns_add_u32 s31, s31, s32\ns_add_u32 s31, s31, 0x%x" % FL_F4)
    def wo_stage():
        wc_base("s_lshl_b32 s32, s7, 1\ns_add_u32 s32, s32, 36")
        A("s_lshl_b32 s33, s7, 14\ns_add_u32 s33, s33, 32768")
        for k in range(4):
            A("s_add_u32 m0, s33, %d\ns_nop 0" % (4096*k))
            for m in range(4):
                A("buffer_load_dwordx4 v%d, s[16:19], s29 offen offset:%d sc1 lds" % (VL16, 1024*m))
            A("s_add_u32 s29, s29, 4096" if k != 1 else "s_sub_u32 s29, s29, %d" % (9*4096))
        A("v_add_u32 v23, s33, v%d" % VL16)
    lds_wait(L_CNTR, 16, 7)
    A("s_waitcnt vmcnt(0)")
    set_flag("s31", 6)
    wo_stage()
    A("s_branch L_OUT")
    A("L_G7:")
    A("s_sub_u32 s32, s30, 32768\ns_and_b32 s3, s2, 7")
    wr_setup(16, "s32")
    A("s_cmp_lg_u32 s7, 0\ns_cbranch_scc1 L_G7N")
    srd(A, 12, P_GW, P_GW + 1, 1024)
    A("v_lshrrev_b32 v16, 4, v1\nv_lshlrev_b32 v16, 4, v16")
    for st in range(16):
        A("buffer_load_dwordx4 %s, v16, s[12:15], 0 offen offset:%d" % (v(64 + 4*st, 4), 64*st))
    A("v_add_u32 v%d, %d, v%d\nv_xor_b32 v%d, 64, v%d" % (VX[0], L_X, VXB, VX[1], VX[0]))
    zero(ACC, 16)
    def g_reads(sb):
        for p in range(2):
            for n in range(4):
                A("ds_read_b128 %s, v%d offset:%d" % (v((32, 160)[sb & 1] + 16*p + 4*n, 4), VX[p], 2048*n + 8192*sb))
    g_reads(0)
    nonce_get(28)
    for sb in range(8):
        A("s_waitcnt lgkmcnt(0)")
        if sb < 7: g_reads(sb + 1)
        for n in range(4):
            for p in range(2):
                A("v_mfma_f32_16x16x32_bf16 %s, %s, %s, %s" % (v(ACC + 4*n, 4), v(64 + 8*sb + 4*p, 4), v((32, 160)[sb & 1] + 16*p + 4*n, 4), v(ACC + 4*n, 4)))
    A("s_nop 7")
    for n in range(4): A("v_mul_f32 v%d, %s, v%d" % (16 + n, f32(-LOG2E), ACC + 4*n))
    for n in range(4): A("v_exp_f32 v%d, v%d" % (16 + n, 16 + n))
    for n in range(4): A("v_add_f32 v%d, 1.0, v%d" % (16 + n, 16 + n))
    for n in range(4): A("v_rcp_f32 v%d, v%d" % (16 + n, 16 + n))
    A("v_lshlrev_b32 v20, 2, v1\ns_lshl_b32 s29, s25, 8\ns_add_u32 s29, s29, 0x%x" % WS_G)
    A("s_mov_b32 exec_lo, 0xffff\ns_mov_b32 exec_hi, 0")
    for n in range(4):
        A("buffer_store_dword v%d, v20, s[16:19], s29 offen offset:%d sc1" % (16 + n, 64*n))
    A("s_mov_b64 exec, -1")
    A("s_lshl_b32 s28, s25, 7\ns_add_u32 s28, s28, 0x%x" % FL_F0)
    A("s_waitcnt vmcnt(0)")
    set_flag("s28", 16)
    A("s_branch L_G7X")
    A("L_G7N:")
    nonce_get(28)
    A("L_G7X:")
    arrive(L_CNTG)
    def job_pf(j0, j1, depth):
        for j in range(j0, j1):
            A("s_add_u32 s32, s33, %d" % ((j % PP)*(64//PP)*4096 + (j // PP)*PP*128 if PP <= 8 else j*8192))
            A("buffer_load_dword v20, v19, s[12:15], s32 offen")
            A("s_waitcnt vmcnt(%d)" % depth)
    srd(A, 12, P_WSP, P_WSP + 1, 2048*2048*2)
    PP = opt.get("pp", 2)
    lg = PP.bit_length() - 1
    A("v_lshrrev_b32 v19, %d, v1\nv_lshlrev_b32 v19, 12, v19\nv_and_b32 v18, %d, v1\nv_lshl_add_u32 v19, v18, 7, v19" % (lg, PP - 1))
    A("s_lshl_b32 s32, s25, 18\ns_lshl_b32 s33, s7, %d\ns_add_u32 s33, s33, s32" % (10 if PP <= 8 else 16))
    def job_wt():
        A("s_lshl_b32 s20, s25, 2\ns_add_u32 s20, s20, s7\ns_and_b32 s21, s20, 7\ns_lshr_b32 s20, s20, 3\ns_mov_b32 s22, s20")
        A("s_mov_b32 s28, 1024\ns_lshl_b32 s29, s21, 7")
        w_setup(16)
        A("L_WT:")
        srd(A, 8, P_WOUT, P_WOUT + 1, 896*512*2)
        A("s_lshl_b32 s31, s22, 15")
        A("s_cmp_lt_u32 s22, 28\ns_cbranch_scc1 L_WT2")
        srd(A, 8, P_WO, P_WO + 1, 512*512*2)
        A("s_sub_u32 s31, s31, %d" % (28*32768))
        A("L_WT2:")
        w_dma(0, False)
        A("s_mul_i32 s31, s21, 44\ns_add_u32 s31, s31, s22\ns_lshl_b32 s31, s31, 12\ns_add_u32 s31, s31, 0x%x" % WS_WC)
        A("s_waitcnt vmcnt(0)")
        for l in w_reads(32, 0): A(l)
        A("s_waitcnt lgkmcnt(0)")
        for m in range(4):
            A("buffer_store_dwordx4 %s, v%d, s[16:19], s31 offen offset:%d sc1" % (v(32 + 4*m, 4), VL16, 1024*m))
        A("s_add_u32 s22, s22, 16\ns_cmp_lt_u32 s22, 44\ns_cbranch_scc1 L_WT")
        A("s_lshl_b32 s31, s21, 11\ns_lshl_b32 s32, s20, 7\ns_add_u32 s31, s31, s32\ns_add_u32 s31, s31, 0x%x" % FL_F6)
        A("s_waitcnt vmcnt(0)")
        set_flag("s31", 16)
    def job_help():
        if NS:
            HS, HO, HN, HQ, HK0, HK, HV = (16, 32), (48, 64), (80, 96), (112, 116), 120, 128, 160
            A("s_lshr_b32 s20, s3, 1\ns_lshl_b32 s20, s20, 2\ns_lshr_b32 s32, s2, 6\ns_add_u32 s20, s20, s32")
            A("s_bfe_u32 s21, s2, 0x30003\ns_sub_u32 s21, s21, 3\ns_lshl_b32 s21, s21, 2\ns_add_u32 s21, s21, s7")
            A("s_lshl_b32 s22, s20, 16\ns_add_u32 s28, s22, 0x%x\ns_add_u32 s29, s28, %d" % (WS_K, (64 - NS)*1024))
            zero(HV, 8*NS)
            A("s_mov_b32 exec_lo, 0x00110000\ns_mov_b32 exec_hi, 0x00110000")
            A("v_mov_b32 v124, 0x3f803f80\nv_mov_b32 v125, 0x3f803f80")
            for i in range(0, 8*NS, 2): A("v_mov_b64 %s, v[124:125]" % v(HV + i, 2))
            A("s_mov_b64 exec, -1")
            A("v_and_b32 v124, 15, v1\nv_lshlrev_b32 v124, 4, v124\nv_lshrrev_b32 v125, 5, v1\nv_lshl_add_u32 v124, v125, 8, v124")
            A("v_mov_b32 v126, 0xdddddddd")
            A("buffer_load_dwordx4 %s, v%d, s[16:19], s28 offen sc1" % (v(HK0, 4), VL16))
            for k in range(NS):
                A("buffer_load_dwordx4 %s, v%d, s[16:19], s29 offen offset:%d sc1" % (v(HK + 4*k, 4), VL16, 1024*k))
            A("s_add_u32 s29, s29, 0x%x" % (WS_V - WS_K))
            A("s_mov_b32 exec_lo, 0xffff\ns_mov_b32 exec_hi, 0xffff")
            for k in range(2*NS):
                A("buffer_load_dwordx4 %s, v124, s[16:19], s29 offen offset:%d sc1" % (v(HV + 4*k, 4), 512*k))
            A("s_mov_b64 exec, -1")
            A("s_mov_b32 s5, 0")
            A("L_HELP:")
            A("s_lshl_b32 s32, s21, 11\ns_add_u32 s32, s32, s22")
            A("buffer_load_dwordx4 %s, v%d, s[16:19], s32 offen sc1" % (v(HQ[0], 4), VL16))
            A("buffer_load_dwordx4 %s, v%d, s[16:19], s32 offen offset:1024 sc1" % (v(HQ[1], 4), VL16))
            A("s_lshl_b32 s31, s20, 5\ns_add_u32 s31, s31, s21\ns_lshl_b32 s31, s31, 13\ns_add_u32 s31, s31, 0x%x" % WS_Z1)
            A("s_waitcnt vmcnt(0)")
            for sd in range(2):
                A("v_mfma_f32_32x32x16_bf16 %s, %s, %s, 0" % (v(HS[sd], 16), v(HK0, 4), v(HQ[sd], 4)))
            zero(HO[0], 32)
            for sd in range(2):
                A("v_max3_f32 v%d, v%d, v%d, v%d" % (6 + 2*sd, HS[sd], HS[sd] + 1, HS[sd] + 2))
                for i in range(3, 15, 2):
                    A("v_max3_f32 v%d, v%d, v%d, v%d" % (6 + 2*sd, 6 + 2*sd, HS[sd] + i, HS[sd] + i + 1))
                A("v_max_f32 v%d, v%d, v%d" % (6 + 2*sd, 6 + 2*sd, HS[sd] + 15))
            A("v_mov_b32 v7, v6\nv_mov_b32 v5, v8\ns_nop 1")
            A("v_permlane32_swap_b32 v6, v7\nv_permlane32_swap_b32 v8, v5\ns_nop 1")
            A("v_max_f32 v6, v6, v7\nv_max_f32 v8, v8, v5\nv_sub_f32 v6, 0, v6\nv_sub_f32 v124, 0, v8\nv_mov_b32 v7, v6\nv_mov_b32 v125, v124")
            for i in range(0, 16, 2): A("v_mov_b64 %s, v[6:7]\nv_mov_b64 %s, v[124:125]" % (v(HN[0] + i, 2), v(HN[1] + i, 2)))
            A("s_nop 1")
            for k in range(NS):
                for sd in range(2):
                    A("v_mfma_f32_32x32x16_bf16 %s, %s, %s, %s" % (v(HS[sd], 16), v(HK + 4*k, 4), v(HQ[sd], 4), v(HN[sd], 16)))
                A("s_nop 11")
                for sd in range(2):
                    for i in range(16): A("v_exp_f32 v%d, v%d" % (HS[sd] + i, HS[sd] + i))
                    A("s_nop 1")
                    for hf in range(2):
                        A("v_smfmac_f32_32x32x32_bf16 %s, %s, %s, v126" % (v(HO[sd], 16), v(HV + 8*k + 4*hf, 4), v(HS[sd] + 8*hf, 8)))
            A("s_nop 11")
            A("v_mov_b32 v%d, v%d" % (HO[0] + 9, HO[1] + 8))
            for q in range(4):
                A("buffer_store_dwordx4 %s, v%d, s[16:19], s31 offen offset:%d sc1" % (v(HO[q >> 1] + 4*(q & 1), 4), VL16, 1024*q))
            A("s_add_u32 s32, s31, 4096")
            A("buffer_store_dwordx2 %s, v%d, s[16:19], s32 offen sc1" % (v(HO[0] + 8, 2), VL16))
            A("s_add_u32 s31, s31, 6144")
            A("s_waitcnt vmcnt(0)")
            set_flag("s31", 5)
            A("s_add_u32 s21, s21, 4\ns_add_u32 s5, s5, 1\ns_cmp_lt_u32 s5, 3\ns_cbranch_scc1 L_HELP")
    WTE = opt.get("wte", 4)
    if WTE == 1:
        lds_wait(L_CNTA, 0x01010101, 16, sleep=2)
        lds_wait(L_CNTG, 4, 16, sleep=2)
        job_wt()
    lds_wait(L_CNTKV + 4*opt.get('wtw', 0), 0x01010101, 16, sleep=16)
    if WTE >= 2:
        job_pf(0, WTE, 0); job_wt(); job_pf(WTE, 8, 0)
    else:
        job_pf(0, 8, opt.get("pfd", 0))
    if WTE == 0: job_wt()
    job_help()
    A("v_and_b32 v24, 15, v1\nv_lshlrev_b32 v24, 7, v24")
    A("s_lshl_b32 s28, s26, 11\ns_add_u32 s28, s28, 0x%x" % FL_F6)
    poll(24, "s28", 25, sleep=32)
    wc_base("s_mul_i32 s32, s7, 7")
    for k in range(7): wc_load(WHR[k])
    lds_wait(L_CNTKV + 24, 0x01010101, 16, sleep=16)
    wo_stage()
    lds_wait(L_CNTKV + 4*opt.get("iw", 8), 0x01010101, 16, sleep=16)
    A("L_OUT:")
    ST(9)
    OA = (128, 144, 64, 80)
    HRR = [24 + 4*k for k in range(10)] + [240 + 4*k for k in range(4)]
    NR = 14
    for nu in range(4):
        A("s_add_u32 s32, s7, %d\ns_and_b32 s32, s32, 3\ns_lshl_b32 s32, s32, 10\nv_add_u32 v%d, s32, v%d" % (nu, 16 + nu, VL16))
    A("s_mul_i32 s33, s25, 44\ns_mul_i32 s32, s7, 7\ns_add_u32 s33, s33, s32\ns_lshl_b32 s33, s33, 12\ns_add_u32 s33, s33, 0x%x" % WS_ACT)
    A("v_min_u32 v20, 6, v1\nv_add_u32 v20, s32, v20\nv_lshlrev_b32 v20, 7, v20")
    A("s_mov_b32 exec_lo, 0")
    A("v_and_b32 v20, 3, v1\nv_bfe_u32 v21, v1, 2, 1\nv_lshl_add_u32 v20, v21, 4, v20\ns_lshl_b32 s32, s7, 2\nv_add_u32 v20, s32, v20")
    A("v_lshlrev_b32 v20, 7, v20\nv_add_u32 v20, 0x%x, v20" % (FL_F5 - FL_F4))
    A("s_mov_b32 exec_lo, -1")
    A("s_lshl_b32 s28, s25, 12\ns_add_u32 s28, s28, 0x%x" % FL_F4)
    poll(20, "s28", 21, sleep=opt.get("sl4", 3))
    ST(10)
    vq2 = []
    def vw2(tag):
        last = max(i for i, x in enumerate(vq2) if x == tag)
        A("s_waitcnt vmcnt(%d)" % (len(vq2) - 1 - last))
    def a_load(f, dst):
        vq2.append(("a", f))
        A("buffer_load_dwordx4 %s, v%d, s[16:19], s33 offen sc1" % (v(dst, 4), 16 + (f & 3)))
        if (f & 3) == 3: A("s_add_u32 s33, s33, 4096")
    for f in range(NR): a_load(f, HRR[f])
    A("s_setprio %d" % opt.get("gprio3", 0))
    OB = (24, 192)
    A("s_lshl_b32 s32, s7, 2\nv_mov_b32 v22, s32")
    def o_load(hf):
        A("s_mov_b32 s33, s%d" % (22 + hf))
        for f in range(8): a_load(f, OB[hf] + 4*f)
    A("s_mul_i32 s22, s25, 44\ns_lshl_b32 s32, s7, 1\ns_add_u32 s22, s22, s32\ns_add_u32 s22, s22, 36\ns_lshl_b32 s22, s22, 12\ns_add_u32 s22, s22, 0x%x" % WS_ACT)
    A("s_sub_u32 s23, s22, %d" % (8*4096))
    HD = opt.get("hdefer", 4)
    for f in range(28):
        st, nu = f >> 2, f & 3
        if f == HD: lds_wait(L_CNTD, 1, 21, sleep=2, va=22)
        vw2(("a", f))
        for m in range(4):
            c = v(OA[nu] + 4*m, 4)
            A("v_mfma_f32_16x16x32_bf16 %s, %s, %s, %s" % (c, v(WHR[st] + 4*m, 4), v(HRR[f % NR], 4), c if st else "0"))
        if f + NR < 28: a_load(f + NR, HRR[f % NR])
        if f >= 14 and (f & 1) and (f - 15)//2 < 4:
            k = (f - 15)//2
            if k == 3: A("s_waitcnt lgkmcnt(8)")
            for m in range(4): A("ds_read_b128 %s, v23 offset:%d" % (v(WHR[k] + 4*m, 4), 4096*k + 1024*m))
        if f == 21: o_load(0)
        if f == 23: o_load(1)
    A("s_setprio 2")
    A("s_waitcnt lgkmcnt(0)")
    arrive(L_CNTX)
    A("v_and_b32 v20, 6, v1\nv_lshlrev_b32 v20, 10, v20\nv_and_b32 v21, 1, v1\nv_lshl_add_u32 v20, v21, 9, v20")
    srd(A, 12, P_OUT, P_OUT + 1, 2048*512*2)
    for nu in range(1, 4):
        A("s_add_u32 s32, s7, %d\ns_and_b32 s32, s32, 3\ns_mul_i32 s32, s32, 12288\ns_add_u32 s32, s32, %d\nv_add_u32 v%d, s32, v%d" % (nu, 4096*(nu - 1), 8 + nu, VL16))
    A("s_mul_i32 s32, s7, 12288\nv_add_u32 v8, s32, v%d" % VL16)
    A("v_and_b32 v5, 15, v1\nv_lshlrev_b32 v5, 10, v5\nv_bfe_u32 v6, v1, 4, 1\nv_lshl_add_u32 v5, v6, 5, v5\nv_lshrrev_b32 v6, 5, v1\nv_lshl_add_u32 v5, v6, 4, v5")
    A("s_lshl_b32 s31, s25, 16\ns_lshl_b32 s32, s7, 14\ns_add_u32 s31, s31, s32\ns_lshl_b32 s32, s26, 7\ns_add_u32 s31, s31, s32")
    ST(11)
    def o_mfma(hf):
        for nu in (1, 2, 3, 0):
            for m in range(4):
                c = v(OA[nu] + 4*m, 4)
                for st in range(2):
                    A("v_mfma_f32_16x16x32_bf16 %s, %s, %s, %s" % (c, v(WHR[2*hf + st] + 4*m, 4), v(OB[hf] + 16*st + 4*nu, 4), c))
                if hf == 1 and nu != 1:
                    pn = {2: 1, 3: 2, 0: 3}[nu]
                    A("ds_write_b128 v%d, %s offset:%d" % (8 + pn, v(OA[pn] + 4*m, 4), 1024*m))
    def o_check(hf):
        L = "L_OC%d" % hf
        b = OB[hf]
        A(L + ":")
        A("s_waitcnt vmcnt(%d)" % (8 if hf == 0 else 0))
        A("v_max3_u32 v21, v%d, v%d, v%d\nv_max3_u32 v22, v%d, v%d, v%d" % (b, b + 1, b + 2, b + 3, b + 4, b + 5))
        for i in range(6, 30, 4):
            A("v_max3_u32 v21, v21, v%d, v%d\nv_max3_u32 v22, v22, v%d, v%d" % (b + i, b + i + 1, b + i + 2, b + i + 3))
        A("v_max3_u32 v21, v21, v%d, v%d\nv_max_u32 v21, v21, v22" % (b + 30, b + 31))
        A("v_cmp_eq_u32 vcc, -1, v21")
        A("s_add_u32 s34, s34, 1\ns_cmp_ge_u32 s34, %d\ns_cbranch_scc1 %s_x" % (SPIN_MAX // 8, L))
        A("s_cbranch_vccz %s_x" % L)
        A(L + "_s:")
        A("buffer_load_dword v21, v20, s[16:19], s%d offen sc1" % (22 + hf))
        A("s_waitcnt vmcnt(0)")
        A("v_cmp_eq_u32 vcc, -1, v21")
        A("s_add_u32 s34, s34, 1\ns_cmp_ge_u32 s34, %d\ns_cbranch_scc1 %s_x" % (SPIN_MAX // 8, L))
        A("s_cbranch_vccz %s_r" % L)
        A("s_sleep %d\ns_branch %s_s" % (opt.get("sl5", 1), L))
        A(L + "_r:")
        o_load(hf)
        if hf == 0: o_load(1)
        A("s_branch %s" % L)
        A(L + "_x:")
    A("s_mov_b32 s34, 0")
    o_check(0)
    o_mfma(0)
    o_check(1)
    ST(12)
    A("s_barrier")
    o_mfma(1)
    A("s_waitcnt lgkmcnt(0)")
    A("s_barrier")
    for j in range(12):
        A("ds_read_b128 %s, v8 offset:%d" % (v(192 + 4*j, 4), 1024*j))
    for j in range(3):
        A("s_waitcnt lgkmcnt(%d)" % (8 - 4*j))
        for i in range(8):
            A("v_pk_add_f32 %s, %s, %s" % (v(OA[0] + 2*i, 2), v(OA[0] + 2*i, 2), v(192 + 16*j + 2*i, 2)))
    for i in range(8): A("v_cvt_pk_bf16_f32 v%d, v%d, v%d" % (24 + i, OA[0] + 2*i, OA[0] + 2*i + 1))
    A("s_nop 1")
    for mp in range(2):
        T = 24 + 4*mp
        A("v_permlane16_swap_b32 v%d, v%d\nv_permlane16_swap_b32 v%d, v%d" % (T, T + 2, T + 1, T + 3))
        A("buffer_store_dwordx4 %s, v5, s[12:15], s31 offen offset:%d nt" % (v(T, 4), 64*mp))
    A("L_FIN:")
    ST.end(24)
    A("L_END:")
    A("s_endpgm")

def build(stamps=False, opt=None):
    ref = open("gated_mix__softmax_full_mha__mixer_gmlp__prompt.s.ref").read().split("\n")
    hdr = [l for l in ref if l.startswith(";") and "@launch" not in l]
    out = "\n".join(hdr) + "\n; @launch grid=(256,1,1) block=(512,1,1) lds=163840\n"
    out += '.amdgcn_target "amdgcn-amd-amdhsa--gfx950"\n.text\n.globl %s\n' % KNAME
    A = Asm()
    gen(A, stamps, opt)
    txt = A.text()
    if (opt or {}).get("sc1only", 1): txt = txt.replace("sc0 sc1", "sc1")
    out += txt + '.section .rodata,"a"\n' + kdesc(KNAME, 256, 100, 256)
    return out
if __name__ == "__main__":
    import sys
    opt = dict((a_.split("=")[0], int(a_.split("=")[1])) for a_ in sys.argv[2:] if "=" in a_)
    open(sys.argv[1], "w").write(build("--stamps" in sys.argv, opt))
```

```python
from asmlib2 import *
from p1 import emit_gelu, LOG2E, QSCALE, GC1, GC2

KNAME = "gated_mix__softmax_full_mha__mixer_gmlp__prompt_kernel"
L_CNTG, L_CNTX, L_CNTR, L_CNTA, L_CNTKV, L_CNTD = 0, 8, 16, 24, 32, 96
L_X = 16384
L_WQ = 81920
L_G = 131072
P_X, P_WQKV, P_WO, P_WIN, P_WSP, P_BSP, P_WOUT = 36, 38, 40, 44, 46, 48, 50
P_GW, P_OUT, P_DBG, P_WS = 52, 54, 56, 58
SPIN_MAX = 0x20000

def gen(A, stamps=False, opt=None):
    opt = opt or {}
    ST = Stamps(A, stamps)
    VZ, VONE = 2, 3
    VL16 = 4
    def arrive(off, va=VZ):
        A("s_mov_b64 exec, 1")
        A("ds_add_u32 v%d, v%d offset:%d" % (va, VONE, off))
        A("s_mov_b64 exec, -1")
    def zero(base, n):
        for i in range(0, n, 2): A("v_mov_b64 %s, 0" % v(base + i, 2))
    def lds_wait(off, thr, vt, sleep=0, va=VZ):
        L = A.newlabel("LW")
        A("s_mov_b32 s34, 0")
        A(L + ":")
        if sleep: A("s_sleep %d" % sleep)
        A("ds_read_b32 v%d, v%d offset:%d" % (vt, va, off))
        A("s_waitcnt lgkmcnt(0)")
        A("v_readfirstlane_b32 s35, v%d" % vt)
        A("s_add_u32 s34, s34, 1\ns_cmp_ge_u32 s34, %d\ns_cbranch_scc1 %s_x" % (SPIN_MAX, L))
        A("s_cmp_lt_u32 s35, %s\ns_cbranch_scc1 %s" % (thr, L))
        A(L + "_x:")
    def set_flag(soff, vt):
        A("v_mov_b32 v%d, s27" % vt)
        A("s_mov_b64 exec, 1")
        A("buffer_store_dword v%d, v%d, s[16:19], %s offen sc0 sc1" % (vt, VZ, soff))
        A("s_mov_b64 exec, -1")
    def poll(vaddr, soff, vt, sleep=4, second=None):
        L = A.newlabel("PL")
        A("s_mov_b32 s34, 0")
        A(L + ":")
        A("buffer_load_dword v%d, v%d, s[16:19], %s offen sc0 sc1" % (vt, vaddr, soff))
        if second is not None:
            A("buffer_load_dword v%d, v%d, s[16:19], %s offen sc0 sc1" % (vt + 1, second, soff))
        A("s_waitcnt vmcnt(0)")
        A("v_xor_b32 v%d, s27, v%d" % (vt, vt))
        if second is not None:
            A("v_xor_b32 v%d, s27, v%d\nv_or_b32 v%d, v%d, v%d" % (vt + 1, vt + 1, vt, vt, vt + 1))
        A("v_cmp_ne_u32 vcc, 0, v%d" % vt)
        A("s_add_u32 s34, s34, 1\ns_cmp_ge_u32 s34, %d\ns_cbranch_scc1 %s_x" % (SPIN_MAX // 8, L))
        A("s_cbranch_vccz %s_x" % L)
        A("s_sleep %d" % sleep)
        A("s_branch %s" % L)
        A(L + "_x:")
    def nonce_load(vt):
        A("buffer_load_dword v%d, v%d, s[60:63], 0 offen sc0 sc1" % (vt, VZ))
    def nonce_get(vt, cnt=0):
        L = A.newlabel("NG")
        A("s_waitcnt vmcnt(%d)" % cnt)
        A("v_readfirstlane_b32 s27, v%d" % vt)
        A("s_mov_b32 s34, 0")
        A(L + ":")
        A("s_cmp_lg_u32 s27, 0\ns_cbranch_scc1 %s_x" % L)
        A("s_add_u32 s34, s34, 1\ns_cmp_ge_u32 s34, %d\ns_cbranch_scc1 %s_x" % (SPIN_MAX // 8, L))
        nonce_load(vt)
        A("s_waitcnt vmcnt(0)")
        A("v_readfirstlane_b32 s27, v%d" % vt)
        A("s_branch %s" % L)
        A(L + "_x:")

    VD = (5, 6, 7, 8)
    VW = (9, 10, 11, 12)
    VX = (13, 14)
    VXB = 15
    def w_setup(t0):
        A("v_lshrrev_b32 v%d, 3, v1\nv_mul_lo_u32 v%d, v%d, s28" % (t0, t0, t0))
        A("v_bfe_u32 v%d, v1, 4, 1\nv_lshlrev_b32 v%d, 1, v%d\nv_and_b32 v%d, 7, v1\nv_xor_b32 v%d, v%d, v%d" % (t0+1, t0+1, t0+1, t0+2, t0+1, t0+1, t0+2))
        A("v_lshl_add_u32 v%d, v%d, 4, v%d\nv_add_u32 v%d, s29, v%d" % (t0, t0+1, t0, VD[0], t0))
        A("s_lshl_b32 s32, s28, 3\ns_sub_u32 s32, s32, 1024")
        A("v_xor_b32 v%d, 64, v%d\nv_add_u32 v%d, s32, v%d" % (VD[1], VD[0], VD[1], VD[1]))
        A("s_lshl_b32 s32, s32, 1")
        A("v_add_u32 v%d, s32, v%d\nv_add_u32 v%d, s32, v%d" % (VD[2], VD[0], VD[3], VD[1]))
    def wr_setup(t0, sbase):
        A("v_lshrrev_b32 v%d, 4, v1\nv_bfe_u32 v%d, v1, 2, 2\nv_lshl_add_u32 v%d, v%d, 3, v%d\nv_lshlrev_b32 v%d, 7, v%d" % (t0, t0+1, t0, t0, t0+1, t0, t0))
        A("v_bfe_u32 v%d, v1, 3, 2\nv_lshl_add_u32 v%d, v%d, 5, v%d" % (t0+1, t0, t0+1, t0))
        A("v_and_b32 v%d, 3, v1\nv_lshl_add_u32 v%d, v%d, 3, v%d\nv_add_u32 v%d, %s, v%d" % (t0+1, t0, t0+1, t0, VW[0], sbase, t0))
        for m in range(1, 4):
            A("v_xor_b32 v%d, %d, v%d" % (VW[m], 32*m, VW[0]))
    def xr_setup(t0):
        A("v_and_b32 v%d, 15, v1\nv_lshrrev_b32 v%d, 4, v1\nv_bfe_u32 v%d, v1, 1, 3\nv_xor_b32 v%d, v%d, v%d" % (t0, t0+1, t0+2, t0+1, t0+1, t0+2))
        A("v_lshlrev_b32 v%d, 4, v%d\nv_lshl_add_u32 v%d, v%d, 7, v%d" % (t0+1, t0+1, VXB, t0, t0+1))
    def w_dma_list(slot):
        return ["buffer_load_dwordx4 v%d, s[8:11], s31 offen offset:%d lds" % (VD[q], 1024*q) for q in range(4)]
    def soff(slot):
        return 4096*(slot & 1) + (32768 if slot < 2 else 0)
    def w_dma(slot, wrap=True):
        A("s_add_u32 m0, s30, %d" % (soff(slot) - 32768))
        A("s_nop 0")
        for l in w_dma_list(slot): A(l)
        w_adv(wrap)
    def w_adv(wrap=True):
        A("s_add_u32 s31, s31, s29")
        if wrap:
            A("s_cmp_ge_u32 s31, s33\ns_cselect_b32 s31, s3, s31")
    def w_reads(dst, slot):
        return ["ds_read_b64_tr_b16 %s, v%d offset:%d" % (v(dst + 4*m + 2*b, 2), VW[m], soff(slot) + 512*b) for m in range(4) for b in range(2)]

    ACC = 128
    SLOT = 24576
    PK = opt.get("pk", 4)
    NS = opt.get("ns", 0)
    A(".p2align 8\n.type %s,@function\n%s:" % (KNAME, KNAME))
    A("s_cmp_ge_u32 s2, 256\ns_cbranch_scc1 L_END")
    ST.begin()
    A("s_load_dwordx16 s[36:51], s[0:1], 0")
    A("s_load_dwordx8 s[52:59], s[0:1], 64")
    A("v_lshrrev_b32 v5, 6, v0")
    A("v_and_b32 v1, 63, v0")
    A("v_readfirstlane_b32 s24, v5")
    def common():
        A("s_and_b32 s3, s2, 7\ns_lshr_b32 s4, s2, 3")
        A("s_lshr_b32 s25, s3, 1\ns_lshl_b32 s25, s25, 3\ns_lshr_b32 s6, s4, 2\ns_add_u32 s25, s25, s6")
        A("s_and_b32 s26, s3, 1\ns_lshl_b32 s26, s26, 2\ns_and_b32 s5, s4, 3\ns_add_u32 s26, s26, s5")
        A("s_lshl_b32 s5, s5, 1\ns_add_u32 s6, s6, s5\ns_and_b32 s6, s6, 7")
        A("s_mov_b32 s4, s26")
        A("v_mov_b32 v%d, 0\nv_mov_b32 v%d, 1\nv_lshlrev_b32 v%d, 4, v1" % (VZ, VONE, VL16))
        A("s_mov_b32 s27, 0")
    A("s_cmp_ge_u32 s24, 4\ns_cbranch_scc1 L_GSTART")
    A("s_cmp_lg_u32 s24, 3\ns_cbranch_scc1 L_NOPF")
    A("s_getpc_b64 s[22:23]")
    A("L_PC:")
    A("s_and_b32 s32, s2, 0xf8\nv_and_b32 v20, 7, v1\nv_add_u32 v20, s32, v20\nv_lshlrev_b32 v20, 7, v20")
    A("v_min_u32 v20, L_END-L_PC, v20")
    A("global_load_dword v0, v20, s[22:23]")
    A("L_NOPF:")
    common()
    A("v_lshrrev_b32 v20, 3, v1\nv_and_b32 v21, 7, v1\nv_lshrrev_b32 v22, 4, v1")
    LX, LZ, LQ = (176, 177), (178, 179), (180, 181)
    A("s_setprio 3")
    A("v_xor_b32 v23, v21, v22")
    A("s_lshl_b32 s28, s25, 6\ns_lshl_b32 s29, s24, 4\ns_add_u32 s28, s28, s29")
    A("v_add_u32 v24, s28, v20\nv_lshlrev_b32 v24, 10, v24\nv_lshl_add_u32 v%d, v23, 4, v24" % LX[0])
    A("v_xor_b32 v%d, 64, v%d\nv_add_u32 v%d, %d, v%d" % (LX[1], LX[0], LX[1], 8192 - 1024, LX[1]))
    A("v_add_u32 v20, s29, v20\nv_and_b32 v22, 1, v22\nv_lshlrev_b32 v22, 1, v22\nv_xor_b32 v21, v21, v22\nv_lshlrev_b32 v21, 4, v21")
    A("v_mul_u32_u24 v24, 3584, v20\ns_lshl_b32 s28, s4, 8\ns_add_u32 s28, s28, 1792\nv_add3_u32 v%d, v24, v21, s28" % LZ[0])
    A("v_xor_b32 v%d, 64, v%d\nv_add_u32 v%d, %d, v%d" % (LZ[1], LZ[0], LZ[1], 8*3584 - 1024, LZ[1]))
    A("s_lshl_b32 s22, s24, 11\ns_add_u32 s23, s22, %d\ns_add_u32 s22, s22, %d" % (L_WQ, L_X))
    A("s_mov_b32 s20, s6\ns_mov_b32 s21, s6")
    A("s_mov_b32 s18, 0x%x\ns_mov_b32 s19, 0x20000\ns_mov_b32 s11, 0x20000" % (2048*512*2))
    A("s_mov_b32 s14, 0x%x\ns_mov_b32 s15, 0x20000\ns_mov_b32 s7, s6" % (512*1536*2))
    A("v_mul_u32_u24 v24, 3072, v20\ns_lshl_b32 s28, s26, 7\nv_add3_u32 v%d, v24, v21, s28" % LQ[0])
    A("v_xor_b32 v%d, 64, v%d\nv_add_u32 v%d, %d, v%d" % (LQ[1], LQ[0], LQ[1], 8*3072 - 1024, LQ[1]))
    A("s_cmp_ge_u32 s4, 7\ns_cselect_b32 s10, 0, 0x%x" % (512*1792*2))
    A("s_waitcnt lgkmcnt(0)")
    if opt.get("tlb0", 0) == 2:
        for p in (P_WIN, P_WQKV): A("s_load_dword s97, s[%d:%d], 0" % (p, p + 1))
    A("s_mov_b64 s[16:17], s[%d:%d]\ns_mov_b64 s[8:9], s[%d:%d]\ns_mov_b64 s[12:13], s[%d:%d]" % (P_X, P_X + 1, P_WIN, P_WIN + 1, P_WQKV, P_WQKV + 1))
    vq = []
    def ld_x(i):
        vq.extend([("x", i)]*2)
        A("s_lshl_b32 s31, s20, 13\ns_add_u32 m0, s31, s22\ns_lshl_b32 s31, s20, 7")
        A("buffer_load_dwordx4 v%d, s[16:19], s31 offen lds" % LX[0])
        A("buffer_load_dwordx4 v%d, s[16:19], s31 offen offset:1024 lds" % LX[1])
        A("s_add_u32 s20, s20, 1\ns_and_b32 s20, s20, 7")
    def ld_z(i):
        vq.extend([("w", i)]*4)
        A("s_mul_i32 s31, s21, %d" % (64*3584))
        for d in range(2):
            A("s_add_u32 m0, s23, %d" % (SLOT + 16384*((i + 1) % 3) + (8192 - 128)*d))
            A("s_add_u32 s21, s21, 1" if d == 0 else "s_and_b32 s21, s21, 7")
            A("buffer_load_dwordx4 v%d, s[8:11], s31 offen offset:%d lds" % (LZ[0], 128*d))
            A("buffer_load_dwordx4 v%d, s[8:11], s31 offen offset:%d lds" % (LZ[1], 128*d + 1024))
    def q_dma_groups(sbase, imm):
        g = []
        for mat in range(3):
            pre = "s_mul_i32 s31, s7, %d\n" % (64*3072) if mat == 0 else ""
            g.append(pre + "s_add_u32 m0, %s, %d\n" % (sbase, imm + 7168*mat) + ("s_add_u32 s7, s7, 1", "s_and_b32 s7, s7, 7", "s_nop 0")[mat])
            g.append("buffer_load_dwordx4 v%d, s[12:15], s31 offen offset:%d lds" % (LQ[0], 1024*mat))
            g.append("buffer_load_dwordx4 v%d, s[12:15], s31 offen offset:%d lds" % (LQ[1], 1024*mat + 1024))
        return g
    def ld_q(i):
        vq.extend([("w", i)]*6)
        for l in q_dma_groups("s23", SLOT*((i + 1) % 3)): A(l)
    def vwait(*tags):
        last = max(i for i, x in enumerate(vq) if x in tags)
        A("s_waitcnt vmcnt(%d)" % (len(vq) - 1 - last))
    Q8 = opt.get("q8", 5)
    if opt.get("zfirst", 0):
        A("s_bitcmp1_b32 s24, 0\ns_cbranch_scc1 L_ZF")
        ld_x(0); ld_z(0)
        A("s_branch L_ZF2\nL_ZF:")
        del vq[:]
        ld_z(0); ld_x(0)
        A("L_ZF2:")
        ld_x(1)
    else:
        ld_x(0); ld_z(0); ld_x(1)
    if Q8 == -2: ld_q(8)
    ld_z(1)
    if Q8 == -1: ld_q(8)
    srd(A, 60, P_DBG, P_DBG + 1, 256)
    QA = 128
    XQ, WQ = (16, 72), (48, 104)
    def asetup(part):
        if part == 0:
            A("s_mov_b32 s30, %d" % L_WQ)
            wr_setup(16, "s30"); xr_setup(16)
            A("s_lshl_b32 s32, s24, 5\nv_xor_b32 v%d, s32, v%d" % (VW[1], VW[0]))
        if part == 1: zero(QA, 48)
        if part == 3:
            A("v_and_b32 v16, 15, v1\nv_lshlrev_b32 v16, 4, v16\nv_bfe_u32 v18, v1, 4, 1\nv_lshl_add_u32 v16, v18, 21, v16")
            A("v_lshrrev_b32 v19, 5, v1\nv_lshl_add_u32 v182, v19, 9, v16")
            A("v_and_b32 v17, 3, v1\nv_bfe_u32 v16, v1, 2, 1\nv_lshl_or_b32 v17, v16, 3, v17\nv_bfe_u32 v16, v1, 3, 1\nv_lshl_or_b32 v17, v16, 2, v17")
            A("v_lshlrev_b32 v17, 4, v17\nv_lshl_add_u32 v17, v18, 9, v17\nv_lshl_add_u32 v183, v19, 8, v17")
    XS = {0: {0: [2], 1: [3], 2: [4], 3: [5], 4: [6], 5: [7]}, 1: {0: [2, 3], 1: [4], 2: [5], 3: [6], 4: [7]}}[opt.get("xs", 0)]
    def tlb_touch():
        A("s_lshl_b32 s32, s24, 21")
        A("s_load_dword s97, s[%d:%d], s32" % (P_WSP, P_WSP + 1))
        for k in range(3):
            A("s_load_dword s97, s[%d:%d], s32" % (P_WS, P_WS + 1))
            A("s_add_u32 s32, s32, 0x800000")
        for p in (P_OUT, P_BSP):
            A("s_load_dword s97, s[%d:%d], 0" % (p, p + 1))
    if opt.get("tlb", 2) == 1: tlb_touch()
    for i in range(8):
        vwait(("x", i), ("w", i))
        A("s_barrier")
        if i == 0: ST(1)
        for k in XS.get(i, [])[:1]: ld_x(k)
        if i + 2 < 8: ld_z(i + 2)
        for k in XS.get(i, [])[1:]: ld_x(k)
        if i == Q8: ld_q(8)
        if i == 7: ld_q(9)
        if i == 3 and opt.get("tlb", 2) == 2: tlb_touch()
        if 1 <= i <= 4: asetup(i - 1)
        if i == 6: srd(A, 16, P_WS, P_WS + 1, WS_USED)
    A("s_mov_b32 s33, 0\ns_mov_b32 s5, 0")
    def q_mfma(b, k):
        mat, n, p = k >> 3, (k >> 1) & 3, k & 1
        c = v(QA + 16*mat + 4*n, 4)
        xf, wf = v(XQ[b] + 8*n + 4*p, 4), v(WQ[b] + 8*mat + 4*p, 4)
        A("v_mfma_f32_16x16x32_bf16 %s, %s, %s, %s" % ((c, xf, wf, c) if mat == 2 else (c, wf, xf, c)))
    def q_stage(b, first=False):
        A("s_lshl_b32 s32, s6, 13\ns_add_u32 s32, s32, %d" % L_X)
        A("v_add_u32 v%d, s32, v%d\nv_xor_b32 v%d, 64, v%d\nv_add_u32 v%d, s33, v%d" % (VX[0], VXB, VX[1], VX[0], VW[0], VW[1]))
        A("s_add_u32 s6, s6, 1\ns_and_b32 s6, s6, 7")
        A("s_add_u32 s33, s33, %d\ns_cmp_eq_u32 s33, %d\ns_cselect_b32 s33, 0, s33" % (SLOT, 3*SLOT))
        if first: A("s_waitcnt vmcnt(6)")
        A("s_barrier")
        rd = ["ds_read_b64_tr_b16 %s, v%d offset:%d" % (v(WQ[b] + 8*mat + 4*p + 2*h, 2), VW[0], 8192*mat + 4096*p + 512*h) for mat in range(3) for p in range(2) for h in range(2)]
        rd += ["ds_read_b128 %s, v%d offset:%d" % (v(XQ[b] + 8*n + 4*p, 4), VX[p], 2048*n) for n in range(4) for p in range(2)]
        A(".p2align 3")
        for k in range(24):
            if k < 20:
                if k == 14: A("s_waitcnt lgkmcnt(8)\ns_nop 0")
                A(rd[k])
            if not first: q_mfma(b ^ 1, k)
        A("s_waitcnt vmcnt(0) lgkmcnt(0)" if first else "s_waitcnt lgkmcnt(0)")
    q_stage(0, True)
    A("L_QLOOP:")
    q_stage(1); q_stage(0)
    A("s_add_u32 s5, s5, 1\ns_cmp_lt_u32 s5, 3\ns_cbranch_scc1 L_QLOOP")
    nonce_load(5)
    q_stage(1)
    A("s_barrier")
    for k in range(24): q_mfma(1, k)
    ST(2)
    A("s_lshl_b32 s7, s26, 2\ns_add_u32 s7, s7, s24")
    A("s_lshl_b32 s31, s7, 16\ns_lshl_b32 s32, s25, 11\ns_add_u32 s31, s31, s32\ns_add_u32 s32, s31, 0x%x" % WS_V)
    A("s_mov_b32 s20, %s\ns_mov_b32 s21, s20" % f32(QSCALE))
    for n in range(4):
        T = 152 + 4*n if False else 184 + 4*n
        c, d = QA + 4*n, QA + 16 + 4*n
        A("v_pk_mul_f32 %s, %s, s[20:21]\nv_pk_mul_f32 %s, %s, s[20:21]" % (v(c, 2), v(c, 2), v(c + 2, 2), v(c + 2, 2)))
        A("v_cvt_pk_bf16_f32 v%d, v%d, v%d\nv_cvt_pk_bf16_f32 v%d, v%d, v%d" % (T + 2, d, d + 1, T + 3, d + 2, d + 3))
        A("v_cvt_pk_bf16_f32 v%d, v%d, v%d\nv_cvt_pk_bf16_f32 v%d, v%d, v%d" % (T, c, c + 1, T + 1, c + 2, c + 3))
        A("s_nop 1")
        A("v_permlane16_swap_b32 v%d, v%d\nv_permlane16_swap_b32 v%d, v%d" % (T, T + 2, T + 1, T + 3))
        A("buffer_store_dwordx4 %s, v182, s[16:19], s31 offen offset:%d sc1" % (v(T, 4), 1024*(n >> 1) + 256*(n & 1)))
    for mp in range(2):
        T = 200 + 4*mp
        c = QA + 32 + 8*mp
        for i in range(4): A("v_cvt_pk_bf16_f32 v%d, v%d, v%d" % (T + i, c + 2*i, c + 2*i + 1))
        A("s_nop 1")
        A("v_permlane16_swap_b32 v%d, v%d\nv_permlane16_swap_b32 v%d, v%d" % (T, T + 2, T + 1, T + 3))
        A("buffer_store_dwordx4 %s, v183, s[16:19], s32 offen offset:%d sc1" % (v(T, 4), 1024*mp))
    A("s_lshl_b32 s21, s7, 7\ns_lshl_b32 s32, s25, 2\ns_add_u32 s21, s21, s32\ns_add_u32 s21, s21, 0x%x" % FL_F1)
    S = (16, 32); O = (48, 64); NM = (80, 96)
    Q = (112, 116); KF = (120, 124); K0 = 128; VF = (132, 140)
    IDX, KA, VA, VC, VAB, VCW = 148, 149, 150, 151, 12, 13
    ALL4 = 0x01010101
    A("s_and_b32 s25, s3, 1\ns_xor_b32 s25, s25, 1\ns_lshl_b32 s25, s25, 2\ns_lshr_b32 s5, s3, 1\ns_add_u32 s25, s25, s5")
    A("s_lshl_b32 s25, s25, 2\ns_lshr_b32 s5, s2, 6\ns_add_u32 s25, s25, s5\ns_bfe_u32 s26, s2, 0x30003")
    A("s_lshl_b32 s7, s26, 2\ns_add_u32 s7, s7, s24")
    A("v_mov_b32 v%d, 0xdddddddd" % IDX)
    zero(VF[0], 16)
    A("s_mov_b32 exec_lo, 0x00110000\ns_mov_b32 exec_hi, 0x00110000")
    A("v_mov_b32 v6, 0x3f803f80\nv_mov_b32 v7, 0x3f803f80")
    for i in range(0, 16, 2): A("v_mov_b64 %s, v[6:7]" % v(VF[0] + i, 2))
    A("s_mov_b64 exec, -1")
    A("s_mov_b32 s22, 0x0000ffff\ns_mov_b32 s23, 0x0000ffff")
    A("v_and_b32 v8, 15, v1\nv_lshlrev_b32 v8, 4, v8\nv_lshrrev_b32 v9, 5, v1\nv_lshl_add_u32 v8, v9, 8, v8")
    A("v_add_u32 v%d, 0x2000, v8" % VAB)
    def att_reset():
        zero(O[0], 32)
        A("v_mov_b32 v%d, v%d\nv_mov_b32 v%d, v%d\nv_mov_b32 v%d, 0\nv_mov_b32 v%d, s24" % (KA, VL16, VA, VAB, VC, VCW))
        A("s_mov_b32 s9, 0x76123450")
    att_reset()
    A("s_lshl_b32 s28, s25, 16")
    A("s_lshl_b32 s29, s7, 11\ns_add_u32 s29, s29, s28")
    A("s_add_u32 s28, s28, 0x%x" % WS_K)
    A("s_lshl_b32 s33, s24, 11")
    A("s_add_u32 s30, s28, s33\ns_add_u32 s31, s30, 0x%x" % (WS_V - WS_K))
    A("s_mov_b32 s20, 0\ns_mov_b32 s6, 6\ns_mov_b32 s15, 0x%x" % ALL4)
    A("s_mov_b32 s3, 0xc3\ns_mov_b32 s10, 4")
    if NS:
        A("s_sub_u32 s32, s4, 4\ns_cmp_lt_u32 s32, 3\ns_cselect_b32 s0, 7, 64\ns_cselect_b32 s3, 0x%x, s3\ns_cselect_b32 s10, 0x%x, 4" % (0xc3 | (1 << PK), 4 | (2 << PK)))
        A("s_lshl_b32 s1, s25, 5\ns_add_u32 s1, s1, s7\ns_lshl_b32 s1, s1, 13\ns_add_u32 s1, s1, 0x%x" % WS_Z1)
    A("v_and_b32 v18, 31, v1\nv_lshlrev_b32 v18, 2, v18")
    nonce_get(5, 6)
    A("s_waitcnt vmcnt(0)")
    set_flag("s21", 17)
    A("ds_write_b8 v%d, v%d offset:%d" % (VCW, VONE, L_CNTA))
    ST(3)
    A("s_lshl_b32 s21, s25, 7\ns_add_u32 s21, s21, 0x%x" % FL_F1)
    NP = opt.get("np", 0)
    if NP:
        A("s_mov_b32 s34, 0")
        for k in range(NP - 1):
            A("buffer_load_dword v%d, v18, s[16:19], s21 offen sc1\ns_sleep %d" % (187 + k, opt.get("sl1", 3)))
        A("L_PP:")
        for k in range(NP):
            A("buffer_load_dword v%d, v18, s[16:19], s21 offen sc1" % (187 + (k + NP - 1) % NP))
            A("s_waitcnt vmcnt(%d)" % (NP - 1))
            A("v_cmp_ne_u32 vcc, s27, v%d" % (187 + k))
            A("s_add_u32 s34, s34, 1\ns_cmp_ge_u32 s34, %d\ns_cbranch_scc1 L_PPX" % (SPIN_MAX // 4))
            A("s_cbranch_vccz L_PPX")
            A("s_sleep %d" % opt.get("sl1", 3))
        A("s_branch L_PP")
        A("L_PPX:")
    else:
        poll(18, "s21", 20, sleep=opt.get("sl1", 3))
    ST(4)
    A("buffer_load_dwordx4 %s, v%d, s[16:19], s28 offen sc1" % (v(K0, 4), VL16))
    A("buffer_load_dwordx4 %s, v%d, s[16:19], s29 offen sc1" % (v(Q[0], 4), VL16))
    A("buffer_load_dwordx4 %s, v%d, s[16:19], s29 offen offset:1024 sc1" % (v(Q[1], 4), VL16))
    def kv_dma(first=False):
        if first:
            A("s_cmp_eq_u32 s24, 0\ns_cselect_b32 s32, 1024, 0\ns_add_u32 m0, s33, s32\ns_add_u32 s32, s32, s30")
            A("buffer_load_dwordx4 v%d, s[16:19], s32 offen sc1 lds" % VL16)
            A("s_mov_b32 m0, s33\ns_mov_b32 s11, s33\ns_mov_b32 s32, 0\ns_mov_b32 s35, s30")
        else:
            A("s_bfe_u32 s32, s9, 0x30004\ns_lshl_b32 s11, s32, 14\ns_add_u32 s11, s11, s33\ns_mov_b32 m0, s11\ns_lshl_b32 s32, s32, 13\ns_add_u32 s35, s30, s32")
            A("buffer_load_dwordx4 v%d, s[16:19], s35 offen sc1 lds" % VL16)
        A("buffer_load_dwordx4 v%d, s[16:19], s35 offen offset:1024 sc1 lds" % VL16)
        A("s_add_u32 m0, s11, 8192\ns_add_u32 s35, s31, s32")
        A("buffer_load_dwordx4 v%d, s[16:19], s35 offen sc1 lds" % VL16)
        A("buffer_load_dwordx4 v%d, s[16:19], s35 offen offset:1024 sc1 lds" % VL16)
    kv_dma(True)
    A("s_lshl_b32 s28, s7, 7\ns_add_u32 s28, s28, 0x%x" % FL_F0)
    A("s_waitcnt vmcnt(4)")
    for sd in range(2):
        A("v_mfma_f32_32x32x16_bf16 %s, %s, %s, 0" % (v(S[sd], 16), v(K0, 4), v(Q[sd], 4)))
    kv_dma()
    A("s_waitcnt vmcnt(4)")
    A("ds_write_b8 v%d, v%d offset:%d" % (VCW, VONE, L_CNTKV))
    for sd in range(2):
        A("v_max3_f32 v%d, v%d, v%d, v%d" % (6 + 2*sd, S[sd], S[sd] + 1, S[sd] + 2))
        for i in range(3, 15, 2):
            A("v_max3_f32 v%d, v%d, v%d, v%d" % (6 + 2*sd, 6 + 2*sd, S[sd] + i, S[sd] + i + 1))
        A("v_max_f32 v%d, v%d, v%d" % (6 + 2*sd, 6 + 2*sd, S[sd] + 15))
    A("L_SETMAX:")
    A("v_mov_b32 v7, v6\nv_mov_b32 v9, v8\ns_nop 1")
    A("v_permlane32_swap_b32 v6, v7\nv_permlane32_swap_b32 v8, v9\ns_nop 1")
    A("v_max_f32 v6, v6, v7\nv_max_f32 v8, v8, v9\nv_sub_f32 v6, 0, v6\nv_sub_f32 v8, 0, v8\nv_mov_b32 v7, v6\nv_mov_b32 v9, v8")
    for i in range(0, 16, 2): A("v_mov_b64 %s, v[6:7]" % v(NM[0] + i, 2))
    A("v_mov_b64 %s, %s\nv_mov_b64 %s, %s" % (v(KF[0], 2), v(K0, 2), v(KF[0] + 2, 2), v(K0 + 2, 2)))
    A("v_mfma_f32_32x32x16_bf16 %s, %s, %s, %s" % (v(S[0], 16), v(K0, 4), v(Q[0], 4), v(NM[0], 16)))
    for i in range(0, 16, 2): A("v_mov_b64 %s, v[8:9]" % v(NM[1] + i, 2))
    zero(S[1] + 8, 8)
    lds_wait(L_CNTKV, ALL4, 5)
    A("s_mov_b64 exec, s[22:23]")
    A("ds_read_b128 %s, v%d" % (v(VF[0], 4), VA))
    A("ds_read_b128 %s, v%d offset:512" % (v(VF[0] + 4, 4), VA))
    A("s_mov_b64 exec, -1")
    A("ds_read_b128 %s, v%d offset:1024" % (v(KF[1], 4), KA))
    ST(5)
    A("s_waitcnt lgkmcnt(0)")
    A("s_setprio 1")
    A("s_mov_b32 s5, 0")
    A(".p2align 3")
    A("L_ALOOP:")
    def ex(sd, a_, b_):
        for i in range(a_, b_): A("v_exp_f32 v%d, v%d" % (S[sd] + i, S[sd] + i))
    def sm(sd, vf, half):
        A("v_smfmac_f32_32x32x32_bf16 %s, %s, %s, v%d" % (v(O[sd], 16), v(vf + 4*half, 4), v(S[sd] + 8*half, 8), IDX))
    toff = lambda t: (t & 7)*1024
    TD, TA = opt.get('td', 5), opt.get('ta', 2)
    assert (TD, TA) == (5, 2)
    slotA = {0: "s_lshr_b32 s9, s9, 4", 1: "s_and_b32 s8, s9, 7", 2: "s_lshl_b32 s8, s8, 14", 3: "s_lshl_b32 s14, s12, 13",
             4: "s_add_u32 s13, s30, s14", 5: "s_mov_b32 m0, s11", 6: "s_nop 0", 7: "s_add_u32 s5, s5, 1"}
    slotB = {0: "s_nop 0", 1: "s_lshl_b32 s11, s12, 14", 3: "s_add_u32 s11, s11, s33", 4: "s_add_u32 s14, s31, s14", 6: "s_nop 0", 7: "s_nop 0"}
    for t in range(8):
        kc, kn = KF[t & 1], KF[(t + 1) & 1]
        vc, vn = VF[t & 1], VF[(t + 1) & 1]
        ex(0, 0, 2)
        sm(1, vn, 1)
        A("s_mov_b64 exec, s[22:23]")
        A(slotA[t])
        A("ds_read_b128 %s, v%d offset:%d" % (v(vn, 4), VA, toff(t + 1)))
        A("ds_read_b128 %s, v%d offset:%d" % (v(vn + 4, 4), VA, toff(t + 1) + 512))
        A("s_mov_b64 exec, -1")
        ex(0, 2, 5)
        A("v_mfma_f32_32x32x16_bf16 %s, %s, %s, %s" % (v(S[1], 16), v(kc, 4), v(Q[1], 4), v(NM[1], 16)))
        if t == 0: A("s_bfe_u32 s12, s9, 0x30004")
        ex(0, 5, 11)
        sm(0, vc, 0)
        if t == TD:
            A("s_bitcmp1_b32 s3, s5\ns_cbranch_scc1 L_TD")
            A("L_XFREE:")
            A("buffer_load_dwordx4 v%d, s[16:19], s13 offen sc1 lds" % VL16)
            A("buffer_load_dwordx4 v%d, s[16:19], s13 offen offset:1024 sc1 lds" % VL16)
            A("s_add_u32 m0, s11, 8192")
            ex(0, 11, 13)
            A("buffer_load_dwordx4 v%d, s[16:19], s14 offen sc1 lds" % VL16)
            A("buffer_load_dwordx4 v%d, s[16:19], s14 offen offset:1024 sc1 lds" % VL16)
            A("L_NODMA:")
            A("v_exp_f32_e64 v%d, v%d" % (S[0] + 13, S[0] + 13))
            ex(0, 14, 16)
        elif t == TA:
            A("s_waitcnt vmcnt(0)")
            A("s_bitcmp1_b32 s10, s5")
            A("ds_write_b8 v%d, v%d offset:%d" % (VCW, VONE, L_CNTKV + 4))
            A("v_exp_f32_e64 v%d, v%d" % (S[0] + 11, S[0] + 11))
            ex(0, 12, 16)
        else:
            A(slotB[t])
            ex(0, 11, 16)
        ex(1, 0, 2)
        sm(0, vc, 1)
        A("s_waitcnt lgkmcnt(%d)" % (3 if t == TA else 2))
        if t == TA:
            A("s_cbranch_scc1 L_TA")
            A("L_NOG:")
            A("v_exp_f32_e64 v%d, v%d" % (S[1] + 2, S[1] + 2))
            ex(1, 3, 5)
        else:
            ex(1, 2, 5)
        A("v_mfma_f32_32x32x16_bf16 %s, %s, %s, %s" % (v(S[0], 16), v(kn, 4), v(Q[0], 4), v(NM[0], 16)))
        if t == 6: A("v_cmp_ne_u32_e64 vcc, s15, v5\nv_add_u32 v%d, s8, v%d\nv_add_u32 v%d, s8, v%d" % (KA, VL16, VA, VAB))
        if t == 7: A("v_add_u32 v%d, 4, v%d\nv_add_u32 v%d, 4, v%d" % (VCW, VCW, VC, VC))
        ex(1, 5, 11)
        sm(1, vc, 0)
        A("s_waitcnt lgkmcnt(0)")
        if t == 6:
            A("s_cbranch_vccnz L_KVWAIT")
            A("L_KVOK:")
        else:
            A("s_cmp_lt_u32 s5, 8" if t == 7 else ("s_cmp_eq_u32 s5, s0" if NS and t == 7 - NS else "s_nop 0"))
        A("ds_read_b128 %s, v%d offset:%d" % (v(kc, 4), KA, toff(t + 2)))
        if t == 5: A("ds_read_b32 v5, v%d offset:%d" % (VC, L_CNTKV + 4))
        if t == 7:
            ex(1, 11, 16)
        elif NS and t == 7 - NS:
            ex(1, 11, 16)
            A("s_cbranch_scc1 L_AEXIT")
        else:
            A("v_exp_f32_e64 v%d, v%d" % (S[1] + 11, S[1] + 11))
            ex(1, 12, 16)
    A("s_cbranch_scc1 L_ALOOP")
    A("s_nop 0")
    sm(1, VF[1], 1)
    A("s_setprio 3")
    A("L_AJOIN:")
    if opt.get("sig", 0) == 0: A("s_lshl_b32 s32, s24, 2\nv_mov_b32 v5, s32\nds_write_b32 v5, v%d offset:%d" % (VONE, L_CNTD))
    ST(6)
    A(".p2align 3")
    A("v_add_f32 v5, abs(v%d), abs(v%d)" % (O[0] + 8, O[0]))
    for i in range(1, 8): A("v_add_f32 v5, v5, abs(v%d)" % (O[0] + i))
    def o_pack(sd):
        A("v_rcp_f32 v%d, v%d" % (8, O[sd] + 8))
        A("s_nop 0")
        A("v_mul_f32 v8, v8, v%d" % (10 + sd))
        A("s_nop 0")
        for i in range(4): A("v_pk_mul_f32 %s, %s, v[8:9] op_sel_hi:[1,0]" % (v(160 + 2*i, 2), v(O[sd] + 2*i, 2)))
        for i in range(4): A("v_cvt_pk_bf16_f32 v%d, v%d, v%d" % (152 + 4*sd + i, 160 + 2*i, 161 + 2*i))
        for i in range(4): A("v_min_u32 v%d, -2, v%d" % (152 + 4*sd + i, 152 + 4*sd + i))
    o_pack(0)
    for i in range(9): A("v_add_f32 v5, v5, abs(v%d)" % (O[1] + i))
    A("v_mov_b32 v6, 0x207")
    A("v_cmp_class_f32 vcc, v5, v6")
    o_pack(1)
    A("s_cmp_lg_u32 s20, 0\ns_cbranch_scc1 L_AFIN")
    A("s_cbranch_vccnz L_REDO")
    A("L_AFIN:")
    for sd in range(2):
        A("buffer_store_dwordx4 %s, v14, s[16:19], s21 offen offset:%d sc1" % (v(152 + 4*sd, 4), 2048*sd))
    if opt.get("sig", 0) == 1: A("s_lshl_b32 s32, s24, 2\nv_mov_b32 v5, s32\nds_write_b32 v5, v%d offset:%d" % (VONE, L_CNTD))
    ST(7)
    A("s_barrier\ns_barrier")
    A("s_branch L_FIN")
    if NS:
        PR = 168
        A("L_AEXIT:")
        A("s_setprio 3")
        sm(1, VF[(7 - NS) & 1], 1)
        for i in range(4): A("v_pk_add_f32 %s, %s, %s" % (v(O[0] + 2*i, 2), v(O[0] + 2*i, 2), v(PR + 2*i, 2)))
        A("v_add_f32 v%d, v%d, v%d" % (O[0] + 8, O[0] + 8, PR + 16))
        A("s_nop 6")
        for i in range(4): A("v_pk_add_f32 %s, %s, %s" % (v(O[1] + 2*i, 2), v(O[1] + 2*i, 2), v(PR + 8 + 2*i, 2)))
        A("v_add_f32 v%d, v%d, v%d" % (O[1] + 8, O[1] + 8, PR + 17))
        A("s_branch L_AJOIN")
        A("L_TD4:")
        A("s_add_u32 s32, s1, 6144")
        A("buffer_load_dword v15, v%d, s[16:19], s32 offen sc1" % VZ)
        A("s_branch L_XFREE")
        A("L_TA5:")
        A("s_add_u32 s32, s1, 6144")
        A("v_cmp_ne_u32 vcc, s27, v15")
        A("s_nop 4\ns_cbranch_vccz L_LATE3")
        poll(VZ, "s32", 15)
        A("L_LATE3:")
        for q in range(4):
            A("buffer_load_dwordx4 %s, v%d, s[16:19], s1 offen offset:%d sc1" % (v(PR + 4*q, 4), VL16, 1024*q))
        A("s_add_u32 s32, s1, 4096")
        A("buffer_load_dwordx2 %s, v%d, s[16:19], s32 offen sc1" % (v(PR + 16, 2), VL16))
        A("s_branch L_NOG")
    A("L_TD:")
    A("s_cmp_lt_u32 s5, s6\ns_cbranch_scc1 L_TD0")
    ex(0, 11, 13)
    A("s_branch L_NODMA")
    A("L_TD0:")
    A("s_cmp_lg_u32 s5, 0\ns_cbranch_scc1 L_TD1")
    lds_wait(L_CNTG, 4, 5)
    A("s_branch L_XFREE")
    A("L_TD1:")
    if NS: A("s_cmp_eq_u32 s5, %d\ns_cbranch_scc1 L_TD4" % PK)
    A("buffer_load_dword v10, v%d, s[16:19], s28 offen sc1" % VZ)
    A("v_and_b32 v14, 15, v1\nv_lshlrev_b32 v14, 4, v14\nv_bfe_u32 v8, v1, 4, 1\nv_lshl_add_u32 v14, v8, 10, v14\nv_lshrrev_b32 v8, 5, v1\nv_lshl_add_u32 v14, v8, 8, v14")
    A("s_mul_i32 s21, s7, 44\ns_lshr_b32 s32, s25, 1\ns_add_u32 s21, s21, s32\ns_add_u32 s21, s21, 28\ns_lshl_b32 s21, s21, 12")
    A("s_and_b32 s32, s25, 1\ns_lshl_b32 s32, s32, 9\ns_add_u32 s21, s21, s32\ns_add_u32 s21, s21, 0x%x" % WS_ACT)
    A("v_mov_b64 v[152:153], -1\nv_mov_b64 v[154:155], -1")
    for sd in range(2):
        A("buffer_store_dwordx4 v[152:155], v14, s[16:19], s21 offen offset:%d sc1" % (2048*sd))
    A("s_branch L_XFREE")
    A("L_TA:")
    if NS: A("s_cmp_eq_u32 s5, %d\ns_cbranch_scc1 L_TA5" % (PK + 1))
    A("s_lshl_b32 s29, s7, 12\ns_lshl_b32 s32, s25, 7\ns_add_u32 s29, s29, s32\ns_add_u32 s29, s29, 0x%x" % FL_F5)
    set_flag("s29", 5)
    A("v_cmp_ne_u32 vcc, s27, v10")
    A("s_nop 4\ns_cbranch_vccz L_GOK")
    poll(VZ, "s28", 10)
    A("L_GOK:")
    A("v_and_b32 v5, 31, v1\nv_lshlrev_b32 v5, 2, v5\ns_lshl_b32 s29, s7, 8\ns_add_u32 s29, s29, 0x%x" % WS_G)
    A("buffer_load_dword v10, v5, s[16:19], s29 offen sc1")
    A("buffer_load_dword v11, v5, s[16:19], s29 offen offset:128 sc1")
    A("s_branch L_NOG")
    A("L_KVWAIT:")
    lds_wait(L_CNTKV + 4, ALL4, 5, va=VC)
    A("s_branch L_KVOK")
    A("L_REDO:")
    A("s_waitcnt lgkmcnt(0)")
    A("s_mov_b32 s20, 1\ns_mov_b32 s0, 64\ns_mov_b32 s6, 0\ns_mov_b32 s10, 0\ns_mov_b32 s3, 0xff")
    A("s_lshl_b32 s32, s24, 2\nv_mov_b32 v5, s32\nds_write_b32 v5, v%d offset:%d" % (VONE, L_CNTD))
    lds_wait(L_CNTX, 4, 5, sleep=8)
    A("s_lshl_b32 s30, s25, 16\ns_add_u32 s30, s30, 0x%x\ns_mov_b32 s5, 16" % WS_K)
    A("L_RELOAD:")
    A("s_lshr_b32 s32, s5, 3\ns_lshl_b32 s32, s32, 14\ns_and_b32 s35, s5, 7\ns_lshl_b32 s35, s35, 10\ns_add_u32 s32, s32, s35")
    A("s_lshl_b32 s35, s5, 10\ns_add_u32 s35, s35, s30\ns_mov_b32 m0, s32\ns_nop 0")
    A("buffer_load_dwordx4 v%d, s[16:19], s35 offen sc1 lds" % VL16)
    A("s_add_u32 m0, s32, 8192\ns_add_u32 s35, s35, 0x%x" % (WS_V - WS_K))
    A("buffer_load_dwordx4 v%d, s[16:19], s35 offen sc1 lds" % VL16)
    A("s_waitcnt vmcnt(16)")
    A("s_add_u32 s5, s5, 1\ns_cmp_lt_u32 s5, 48\ns_cbranch_scc1 L_RELOAD")
    A("s_waitcnt vmcnt(0)")
    pass
    A("s_mov_b64 exec, s[22:23]")
    zero(VF[1] + 4, 4)
    A("s_mov_b64 exec, -1")
    A("v_mov_b32 v6, 0xff800000\nv_mov_b32 v8, 0xff800000")
    A("v_mov_b64 %s, %s\nv_mov_b64 %s, %s" % (v(KF[0], 2), v(K0, 2), v(KF[0] + 2, 2), v(K0 + 2, 2)))
    A("s_mov_b32 s5, 1\ns_nop 1")
    A("L_MAXL:")
    for sd in range(2):
        A("v_mfma_f32_32x32x16_bf16 %s, %s, %s, 0" % (v(S[sd], 16), v(KF[0], 4), v(Q[sd], 4)))
    A("s_lshr_b32 s32, s5, 3\ns_lshl_b32 s32, s32, 14\ns_and_b32 s35, s5, 7\ns_lshl_b32 s35, s35, 10\ns_add_u32 s32, s32, s35")
    A("v_add_u32 v%d, s32, v%d" % (KA, VL16))
    A("ds_read_b128 %s, v%d" % (v(KF[0], 4), KA))
    A("s_nop 15")
    for sd in range(2):
        for i in range(0, 16, 2):
            A("v_max3_f32 v%d, v%d, v%d, v%d" % (6 + 2*sd, 6 + 2*sd, S[sd] + i, S[sd] + i + 1))
    A("s_waitcnt lgkmcnt(0)")
    A("s_add_u32 s5, s5, 1\ns_cmp_lt_u32 s5, 65\ns_cbranch_scc1 L_MAXL")
    att_reset()
    A("s_branch L_SETMAX")

    A("L_GSTART:")
    A("s_setprio 2")
    common()
    A("s_sub_u32 s7, s24, 4")
    A("s_waitcnt lgkmcnt(0)")
    if opt.get("tlb0", 0) == 1:
        for p in (P_WIN, P_WQKV): A("s_load_dword s97, s[%d:%d], 0" % (p, p + 1))
    srd(A, 8, P_WIN, P_WIN + 1, 512*1792*2)
    srd(A, 16, P_WS, P_WS + 1, WS_USED)
    srd(A, 60, P_DBG, P_DBG + 1, 256)
    A("s_cmp_lg_u32 s7, 3\ns_cbranch_scc1 L_NOLEAD")
    zero(16, 4)
    A("ds_write_b128 v%d, v[16:19]" % VL16)
    A("s_cmp_lg_u32 s2, 25\ns_cbranch_scc1 L_NOLEAD")
    A("s_mov_b32 s31, 0x%x" % FL_EPOCH)
    A("buffer_load_dword v16, v%d, s[16:19], s31 offen sc0 sc1" % VZ)
    A("s_mov_b32 s32, 0x9e3779b1")
    A("s_waitcnt vmcnt(0)")
    A("v_mul_lo_u32 v16, v16, s32")
    A("v_add_u32 v16, 0x7f4a7c15, v16")
    A("v_max_u32 v16, 1, v16")
    A("s_mov_b64 exec, 1")
    A("buffer_store_dword v16, v%d, s[60:63], 0 offen sc0 sc1" % VZ)
    A("buffer_store_dword v16, v%d, s[16:19], s31 offen sc0 sc1" % VZ)
    A("s_mov_b64 exec, -1")
    A("L_NOLEAD:")
    A("s_lshr_b32 s22, s7, 1\ns_and_b32 s23, s7, 1")
    A("s_lshl_b32 s30, s7, 13\ns_add_u32 s30, s30, %d" % L_G)
    xr_setup(16)
    srd(A, 12, P_WQKV, P_WQKV + 1, 512*1536*2)
    A("v_lshrrev_b32 v16, 3, v1\ns_lshl_b32 s29, s7, 4\nv_add_u32 v16, s29, v16\nv_mul_u32_u24 v16, 3072, v16")
    A("v_bfe_u32 v17, v1, 4, 1\nv_lshlrev_b32 v17, 1, v17\nv_and_b32 v18, 7, v1\nv_xor_b32 v17, v17, v18\nv_lshlrev_b32 v17, 4, v17")
    A("s_lshl_b32 s28, s26, 7\nv_add3_u32 v%d, v16, v17, s28" % LQ[0])
    A("v_xor_b32 v%d, 64, v%d\nv_add_u32 v%d, %d, v%d" % (LQ[1], LQ[0], LQ[1], 8*3072 - 1024, LQ[1]))
    A("s_lshl_b32 s1, s7, 11\ns_add_u32 s1, s1, %d\ns_add_u32 s0, s6, 2\ns_and_b32 s0, s0, 7" % L_WQ)
    def g_ldq(i):
        A("s_mul_i32 s31, s0, %d" % (64*3072))
        for mat in range(3):
            A("s_add_u32 m0, s1, %d" % (SLOT*((i + 1) % 3) + 7168*mat))
            A(("s_add_u32 s0, s0, 1", "s_and_b32 s0, s0, 7", "s_nop 0")[mat])
            A("buffer_load_dwordx4 v%d, s[12:15], s31 offen offset:%d lds" % (LQ[0], 1024*mat))
            A("buffer_load_dwordx4 v%d, s[12:15], s31 offen offset:%d lds" % (LQ[1], 1024*mat + 1024))
    A("s_cmp_lt_u32 s4, 7\ns_cbranch_scc1 L_Z2S")
    A("s_waitcnt lgkmcnt(0)")
    PQ, PZ = opt.get("pq", 1), opt.get("pz", 7)
    A("s_lshl_b32 s28, s25, 2\ns_add_u32 s28, s28, s7")
    for i in range(8):
        if i == PQ:
            A("s_mul_i32 s32, s28, 12288\nv_lshlrev_b32 v16, 7, v1\nv_min_u32 v17, 31, v1\nv_lshlrev_b32 v17, 7, v17\nv_add_u32 v17, 0x2000, v17")
            A("buffer_load_dword v29, v16, s[12:15], s32 offen\nbuffer_load_dword v29, v17, s[12:15], s32 offen")
        if i == PZ:
            A("s_mul_i32 s32, s28, %d\nv_lshrrev_b32 v16, 4, v1\nv_mul_u32_u24 v16, 3584, v16\nv_and_b32 v17, 15, v1\nv_min_u32 v17, 13, v17\nv_lshl_add_u32 v16, v17, 7, v16" % (4*3584))
            A("buffer_load_dword v29, v16, s[8:11], s32 offen")
        A("s_barrier")
    A("s_mov_b32 s10, 0")
    A("s_branch L_ZEND")
    A("L_Z2S:")
    Z2 = 192
    XZ, WZ = (16, 64), (32, 80)
    A("s_lshl_b32 s32, s22, 13\ns_add_u32 s32, s32, %d" % (L_WQ + SLOT))
    wr_setup(16, "s32")
    A("v_mov_b32 v5, v%d" % VW[0])
    A("s_lshl_b32 s20, s23, 12\ns_add_u32 s20, s20, %d" % L_X)
    zero(Z2, 32); zero(XZ[1], 48)
    A("s_mov_b32 s33, 16384\ns_mov_b32 s5, 0\ns_mov_b32 s21, s6")
    def z_mfma(b, k):
        m, nn, p = k >> 2, (k >> 1) & 1, k & 1
        c = v(Z2 + 8*m + 4*nn, 4)
        A("v_mfma_f32_16x16x32_bf16 %s, %s, %s, %s" % (c, v(WZ[b] + 8*m + 4*p, 4), v(XZ[b] + 8*nn + 4*p, 4), c))
    A("s_waitcnt lgkmcnt(0)")
    A("L_ZLOOP:")
    for b in range(2):
        A("s_lshl_b32 s32, s21, 13\ns_add_u32 s32, s32, s20")
        A("v_add_u32 v%d, s32, v%d\nv_xor_b32 v%d, 64, v%d\nv_add_u32 v%d, s33, v5" % (VX[0], VXB, VX[1], VX[0], VW[0]))
        for m in range(1, 4): A("v_xor_b32 v%d, %d, v%d" % (VW[m], 32*m, VW[0]))
        A("s_add_u32 s21, s21, 1\ns_and_b32 s21, s21, 7")
        A("s_add_u32 s33, s33, %d\ns_cmp_eq_u32 s33, %d\ns_cselect_b32 s33, 0, s33" % (16384, 3*16384))
        A("s_barrier")
        rd = ["ds_read_b128 %s, v%d offset:%d" % (v(XZ[b] + 8*nn + 4*p, 4), VX[p], 2048*nn) for nn in range(2) for p in range(2)]
        rd += ["ds_read_b64_tr_b16 %s, v%d offset:%d" % (v(WZ[b] + 8*m + 4*p + 2*h, 2), VW[m], 4096*p + 512*h) for m in range(4) for p in range(2) for h in range(2)]
        A(".p2align 3")
        for k in range(16):
            if k < 10:
                if k == 7: A("s_waitcnt lgkmcnt(8)\ns_nop 0")
                A(rd[2*k]); A(rd[2*k + 1])
            z_mfma(b ^ 1, k)
        A("s_waitcnt lgkmcnt(0)")
    A("s_add_u32 s5, s5, 1\ns_cmp_lt_u32 s5, 4\ns_cbranch_scc1 L_ZLOOP")
    A("L_ZEND:")
    A("s_barrier")
    ST(1)
    g_ldq(10)
    for k in range(16): z_mfma(1, k)
    for i in range(9, 15):
        if i >= 10: A("s_waitcnt vmcnt(6)")
        A("s_barrier")
        if i <= 13: g_ldq(i + 2)
        if i == 9:
            A("s_mov_b32 s20, %s\ns_mov_b32 s21, %s" % (f32(GC2), f32(GC2)))
            A("v_mov_b32 v24, %s\nv_mov_b32 v25, %s\nv_mov_b32 v26, 1.0\nv_mov_b32 v27, 1.0" % (f32(GC1), f32(GC1)))
            A("s_mov_b32 s28, 3584")
            A("s_lshl_b32 s29, s4, 8\ns_lshl_b32 s32, s22, 7\ns_add_u32 s29, s29, s32")
            w_setup(16)
        if 0 <= i - 10 < opt.get("gq", 0): emit_gelu(A, Z2 + 8*(i - 10), 8, 32, 24, 20, 26)
        if i == 10:
            A("s_sub_u32 s32, s30, 32768")
            wr_setup(20, "s32")
            A("s_lshl_b32 s32, s23, 6")
            for m in range(4): A("v_xor_b32 v%d, s32, v%d" % (VW[m], VW[m]))
    A("s_lshl_b32 s29, s28, 5\ns_lshl_b32 s3, s23, 3\ns_mul_i32 s3, s3, s29\ns_lshl_b32 s33, s29, 3\ns_add_u32 s33, s33, s3")
    A("s_and_b32 s6, s25, 3\ns_lshl_b32 s32, s6, 1\ns_mul_i32 s31, s32, s29\ns_add_u32 s31, s31, s3")
    A("s_lshl_b32 s5, s23, 15\ns_add_u32 s5, s5, %d" % L_X)
    nonce_load(28)
    w_dma(0); w_dma(1)
    def x_addr():
        A("s_lshl_b32 s32, s6, 13\ns_add_u32 s32, s32, s5")
        A("v_add_u32 v%d, s32, v%d\nv_xor_b32 v%d, 64, v%d" % (VX[0], VXB, VX[1], VX[0]))
        A("s_add_u32 s6, s6, 1\ns_and_b32 s6, s6, 3")
    x_addr()
    def st_loads():
        for j in range(7):
            A("buffer_load_dwordx4 %s, v%d, s[16:19], s%d offen offset:%d sc0 sc1" % (v(64 + 4*j, 4), VL16, j >> 2, 1024*(j & 3)))
    A("s_waitcnt vmcnt(9)")
    A("s_barrier")
    A("s_barrier")
    ST(2)
    A("s_cmp_ge_u32 s4, 7\ns_cbranch_scc1 L_G7")
    SET = (64, 0)
    def d_reads(d):
        b = SET[d & 1]
        w = ["ds_read_b64_tr_b16 %s, v%d offset:%d" % (v(WS_(d) + 8*m + 4*p + 2*h, 2), VW[m], soff(2*(d & 1) + p) + 512*h) for m in range(4) for p in range(2) for h in range(2)]
        x = ["ds_read_b128 %s, v%d offset:%d" % (v(XS_(d) + 8*n + 4*p, 4), VX[p], 2048*n) for n in range(4) for p in range(2)]
        return w + x
    def d_mfma(d, fill):
        b = SET[d & 1]
        fill = list(fill)
        for k in range(32):
            m, n, p = k >> 3, (k >> 1) & 3, k & 1
            c = v(ACC + 16*m + 4*n, 4)
            A("v_mfma_f32_16x16x32_bf16 %s, %s, %s, %s" % (c, v(WS_(d) + 8*m + 4*p, 4), v(XS_(d) + 8*n + 4*p, 4), "0" if (d == 0 and p == 0) else c))
            if fill: A(fill.pop(0))
    def with_waits(rd):
        return rd[:12] + ["s_waitcnt lgkmcnt(3)\ns_nop 0\n" + rd[12]] + rd[13:]
    XS_ = lambda d: (64, 32)[d & 1]
    WS_ = lambda d: (96, 224)[d & 1]
    w_dma(2); w_dma(3)
    A("s_waitcnt vmcnt(8)")
    for l in with_waits(d_reads(0)): A(l)
    emit_gelu(A, Z2 + 8*opt.get("gq", 0), 32 - 8*opt.get("gq", 0), 16, 24, 20, 26)
    for nn in range(2):
        sA, sB = 16 + 2*nn, 20 + 2*nn
        for m in range(4):
            for h in range(2):
                c = Z2 + 8*m + 4*nn + 2*h
                if m == 0 and h == 0:
                    A("v_pk_mul_f32 %s, %s, %s" % (v(sB, 2), v(c, 2), v(c, 2)))
                    A("v_pk_add_f32 %s, %s, %s" % (v(sA, 2), v(c, 2), v(c + 2, 2)))
                else:
                    A("v_pk_fma_f32 %s, %s, %s, %s" % (v(sB, 2), v(c, 2), v(c, 2), v(sB, 2)))
                    if m > 0: A("v_pk_add_f32 %s, %s, %s" % (v(sA, 2), v(sA, 2), v(c, 2)))
    for i in range(4): A("v_add_f32 v%d, v%d, v%d" % (16 + 2*i, 16 + 2*i, 17 + 2*i))
    A("s_nop 1")
    A("v_permlane16_swap_b32 v16, v18\nv_permlane16_swap_b32 v20, v22\ns_nop 1")
    A("v_add_f32 v16, v16, v18\nv_add_f32 v18, v20, v22\nv_mov_b32 v17, v16\nv_mov_b32 v19, v18\ns_nop 1")
    A("v_permlane32_swap_b32 v16, v17\nv_permlane32_swap_b32 v18, v19\ns_nop 1")
    A("v_add_f32 v16, v16, v17\nv_add_f32 v18, v18, v19")
    nonce_get(28, 8)
    A("v_mov_b32 v17, s27\nv_mov_b32 v19, s27")
    A("s_lshl_b32 s32, s25, 1\ns_add_u32 s32, s32, s23\ns_mul_i32 s0, s32, 7168\ns_add_u32 s0, s0, 0x%x" % WS_ST)
    A("s_lshl_b32 s32, s4, 1\ns_add_u32 s32, s32, s22\ns_lshl_b32 s32, s32, 9\ns_add_u32 s32, s32, s0")
    A("s_mov_b32 exec_hi, 0")
    A("buffer_store_dwordx4 v[16:19], v%d, s[16:19], s32 offen sc0 sc1" % VL16)
    A("s_mov_b32 exec_hi, -1")
    A("s_add_u32 s1, s0, 4096")
    if opt.get("d23", 0):
        A("s_waitcnt lgkmcnt(0)")
        if opt["d23"] == 2: lds_wait(L_CNTA, 0x01010101, 29)
        w_dma(0); w_dma(1)
        x_addr()
        A("s_waitcnt vmcnt(9)")
        for l in with_waits(d_reads(1)): A(l)
        A("s_waitcnt lgkmcnt(8)")
        w_dma(2); w_dma(3)
        x_addr()
        A(".p2align 3")
        d_mfma(0, [])
        A("s_waitcnt vmcnt(8) lgkmcnt(0)\ns_nop 0")
    else:
        A("s_waitcnt lgkmcnt(0)")
        w_dma(0); w_dma(1)
        x_addr()
        A("s_waitcnt vmcnt(9)")
        A(".p2align 3")
        d_mfma(0, with_waits(d_reads(1)))
        A("s_waitcnt lgkmcnt(0)")
        w_dma(2); w_dma(3)
        x_addr()
        A("s_waitcnt vmcnt(8)")
        A(".p2align 3")
    d_mfma(1, with_waits(d_reads(2)))
    x_addr()
    A("s_waitcnt vmcnt(0) lgkmcnt(0)")
    A(".p2align 3")
    d_mfma(2, with_waits(d_reads(3)))
    A("s_lshl_b32 s28, s25, 7\ns_add_u32 s28, s28, 0x%x" % FL_F0)
    st_loads()
    A("v_add_u32 v16, s30, v%d\nv_xor_b32 v17, 0x2000, v16" % VL16)
    A("s_waitcnt lgkmcnt(0)")
    for k in range(32):
        m, n, p = (k >> 3) ^ 2, (k >> 1) & 3, k & 1
        c = v(ACC + 16*m + 4*n, 4)
        A("v_mfma_f32_16x16x32_bf16 %s, %s, %s, %s" % (c, v(WS_(1) + 8*m + 4*p, 4), v(XS_(1) + 8*n + 4*p, 4), c))
        if k >= 16 and (k & 1):
            q = (k - 16) >> 1
            A("ds_write_b128 v16, %s offset:%d" % (v(ACC + 32 + 4*q, 4), 1024*q))
    A("v_and_b32 v60, 15, v1\nv_lshlrev_b32 v60, 7, v60\nv_bfe_u32 v61, v1, 1, 1\nv_lshl_add_u32 v60, v61, 5, v60")
    A("v_bfe_u32 v61, v1, 3, 1\nv_xor_b32 v61, s23, v61\nv_lshl_add_u32 v60, v61, 6, v60\nv_lshrrev_b32 v61, 4, v1\nv_lshl_add_u32 v60, v61, 3, v60")
    A("s_sub_u32 s32, s30, 32768\nv_add_u32 v60, s32, v60")
    for m in range(1, 4): A("v_xor_b32 v%d, %d, v60" % (60 + m, 32*m))
    A("s_waitcnt lgkmcnt(0)")
    arrive(L_CNTR)
    ST(3)
    Lp = A.newlabel("SP")
    A("s_mov_b32 s34, 0")
    A("s_waitcnt vmcnt(0)")
    A(Lp + ":")
    A("v_xor_b32 v20, s27, v65")
    for j in range(7):
        for q in (1, 3):
            if j or q == 3: A("v_xor_b32 v21, s27, v%d\nv_or_b32 v20, v20, v21" % (64 + 4*j + q))
    A("v_cmp_ne_u32 vcc, 0, v20")
    A("s_add_u32 s34, s34, 1\ns_cmp_ge_u32 s34, %d\ns_cbranch_scc1 %s_x" % (SPIN_MAX // 16, Lp))
    A("s_cbranch_vccz %s_x" % Lp)
    st_loads()
    A("s_waitcnt vmcnt(0)")
    A("s_branch %s" % Lp)
    A(Lp + "_x:")
    ST(4)
    A("v_mov_b32 v32, v64\nv_mov_b32 v34, v66")
    for j in range(1, 7):
        A("v_add_f32 v32, v32, v%d\nv_add_f32 v34, v34, v%d" % (64 + 4*j, 66 + 4*j))
    A("v_mov_b32 v33, v32\nv_mov_b32 v35, v34\ns_nop 1")
    A("v_permlane32_swap_b32 v32, v33\nv_permlane32_swap_b32 v34, v35\ns_nop 1")
    A("v_add_f32 v32, v32, v33\nv_add_f32 v34, v34, v35")
    A("v_mul_f32 v32, %s, v32\nv_mul_f32 v34, %s, v34" % (f32(1.0/896), f32(1.0/896)))
    A("v_fma_f32 v34, -v32, v32, v34\nv_max_f32 v34, 0, v34\nv_add_f32 v34, %s, v34" % f32(1e-5))
    A("v_rsq_f32 v36, v34\ns_nop 0\nv_mul_f32 v40, v32, v36\nv_sub_f32 v40, 0, v40")
    A("v_mov_b32 v38, v36\nv_mov_b32 v42, v40\ns_nop 1")
    A("v_permlane16_swap_b32 v36, v38\nv_permlane16_swap_b32 v40, v42")
    A("s_waitcnt lgkmcnt(0)\ns_nop 0")
    for m in range(4):
        for nn in range(2):
            c = Z2 + 8*m + 4*nn
            T = 44 + 2*(2*m + nn)
            for h in range(2):
                A("v_pk_fma_f32 %s, %s, %s, %s op_sel_hi:[1,0,0]" % (v(c + 2*h, 2), v(c + 2*h, 2), v(36 + 2*nn, 2), v(40 + 2*nn, 2)))
            A("v_cvt_pk_bf16_f32 v%d, v%d, v%d\nv_cvt_pk_bf16_f32 v%d, v%d, v%d" % (T, c, c + 1, T + 1, c + 2, c + 3))
            A("ds_write_b64 v%d, %s offset:%d" % (60 + m, v(T, 2), 2048*nn))
    A("s_lshl_b32 s0, s4, 5\ns_add_u32 s0, s0, s25\ns_lshl_b32 s0, s0, 14\ns_lshl_b32 s32, s22, 13\ns_add_u32 s0, s0, s32")
    A("s_lshl_b32 s32, s23, 10\ns_add_u32 s0, s0, s32\ns_add_u32 s0, s0, 0x%x\ns_add_u32 s1, s0, 4096" % WS_Z2N)
    A("s_waitcnt lgkmcnt(0)")
    for l in w_reads(96, 2): A(l)
    A("s_waitcnt lgkmcnt(0)")
    for m in range(4):
        A("buffer_store_dwordx4 %s, v%d, s[16:19], s%d offen offset:%d sc1" % (v(96 + 4*m, 4), VL16, m >> 1, 2048*(m & 1)))
    A("buffer_load_dword v29, v%d, s[16:19], s28 offen sc1" % VZ)
    arrive(L_CNTG)
    A("s_lshl_b32 s31, s4, 7\ns_lshl_b32 s32, s25, 2\ns_add_u32 s31, s31, s32\ns_add_u32 s31, s31, s7\ns_lshl_b32 s31, s31, 7\ns_add_u32 s31, s31, 0x%x" % FL_F3)
    A("v_mov_b32 v24, %s\nv_mov_b32 v25, %s\nv_mov_b32 v26, 1.0\nv_mov_b32 v27, 1.0" % (f32(GC1), f32(GC1)))
    lds_wait(L_CNTR, 4, 18)
    for q in range(8):
        A("ds_read_b128 %s, v17 offset:%d" % (v(64 + 4*q, 4), 1024*q))
    A("s_waitcnt lgkmcnt(0)")
    arrive(L_CNTR)
    for i in range(16):
        A("v_pk_add_f32 %s, %s, %s" % (v(ACC + 2*i, 2), v(ACC + 2*i, 2), v(64 + 2*i, 2)))
    WSP, ZR = 32, 64
    emit_gelu(A, ACC, 8, 16, 24, 20, 26)
    srd(A, 12, P_WSP, P_WSP + 1, 2048*2048*2)
    srd(A, 8, P_BSP, P_BSP + 1, 4096)
    A("v_lshrrev_b32 v5, 3, v1\nv_and_b32 v6, 7, v1\nv_lshrrev_b32 v7, 4, v1\nv_xor_b32 v6, v6, v7")
    A("s_lshl_b32 s32, s25, 6\nv_add_u32 v5, s32, v5\nv_lshlrev_b32 v5, 12, v5\nv_lshl_add_u32 v5, v6, 4, v5")
    A("v_xor_b32 v6, 64, v5\nv_add_u32 v6, %d, v6" % (32768 - 1024))
    A("v_add_u32 v7, %d, v5\nv_add_u32 v8, %d, v6" % (2*(32768 - 1024), 2*(32768 - 1024)))
    A("s_mov_b32 s6, 0\ns_lshl_b32 s3, s7, 10")
    A("v_and_b32 v48, 15, v1\nv_lshlrev_b32 v49, 1, v48\nv_lshlrev_b32 v48, 2, v48")
    A("s_waitcnt vmcnt(0)")
    set_flag("s31", 28)
    A("v_cmp_ne_u32 vcc, s27, v29\ns_nop 4\ns_cbranch_vccz L_G0OK")
    poll(VZ, "s28", 29)
    A("L_G0OK:")
    A("s_lshl_b32 s28, s25, 7\ns_lshl_b32 s29, s25, 8\ns_add_u32 s29, s29, 0x%x" % WS_G)
    for n in range(4):
        A("buffer_load_ushort v%d, v49, s[8:11], s28 offen offset:%d" % (32 + 2*n, 32*n))
        A("buffer_load_dword v%d, v48, s[16:19], s29 offen offset:%d sc1" % (40 + 2*n, 64*n))
    def sp_dma():
        A("s_lshl_b32 s31, s6, 7\ns_add_u32 s31, s31, s3")
        for hf in range(2):
            A("s_add_u32 m0, s30, %d" % (4096*hf))
            A("s_add_u32 s32, s31, %d" % (131072*hf))
            for q in range(4):
                A("buffer_load_dwordx4 v%d, s[12:15], s32 offen offset:%d lds" % (5 + q, 1024*q))
    lds_wait(L_CNTR, 8, 29)
    sp_dma()
    F3P = opt.get("f3p", 32)
    emit_gelu(A, ACC + 8, F3P - 8, 16, 24, 20, 26)
    A("s_lshl_b32 s28, s4, 2\ns_add_u32 s28, s28, s7\ns_lshl_b32 s28, s28, 12\ns_add_u32 s28, s28, 0x%x" % FL_F3)
    A("v_and_b32 v48, 31, v1\nv_lshlrev_b32 v48, 7, v48")
    A("buffer_load_dword v49, v48, s[16:19], s28 offen sc1")
    emit_gelu(A, ACC + F3P, 32 - F3P, 16, 24, 20, 26)
    A("v_add_u32 v%d, s30, v%d\nv_xor_b32 v%d, 64, v%d" % (VX[0], VXB, VX[1], VX[0]))
    for mu in range(4):
        A("s_add_u32 s32, s7, %d\ns_and_b32 s32, s32, 3\ns_lshl_b32 s32, s32, 12\nv_add_u32 v%d, s32, v%d" % (mu, 9 + mu, VL16))
    A("s_lshl_b32 s33, s4, 5\ns_lshl_b32 s32, s7, 3\ns_add_u32 s33, s33, s32\ns_lshl_b32 s33, s33, 14\ns_add_u32 s0, s33, 0x%x\ns_mov_b32 s33, s0" % WS_Z2N)
    def z_load(m):
        for p in range(2):
            A("buffer_load_dwordx4 %s, v%d, s[16:19], s33 offen offset:%d sc1" % (v(ZR + 8*m + 4*p, 4), 9 + (m >> 1), 2048*(m & 1) + 1024*p))
    def do_pack():
        for n in range(4):
            A("v_lshlrev_b32 v%d, 16, v%d\nv_sub_f32 v%d, 1.0, v%d\nv_mov_b32 v%d, v%d" % (32 + 2*n, 32 + 2*n, 40 + 2*n, 40 + 2*n, 33 + 2*n, 32 + 2*n))
        for n in range(4):
            for mm in range(2):
                c = ACC + 16*mm + 4*n
                for h in range(2):
                    A("v_pk_mul_f32 %s, %s, %s op_sel_hi:[1,0]" % (v(c + 2*h, 2), v(c + 2*h, 2), v(40 + 2*n, 2)))
                A("v_cvt_pk_bf16_f32 v%d, v%d, v%d\nv_cvt_pk_bf16_f32 v%d, v%d, v%d" % (16 + 4*n + 2*mm, c, c + 1, 17 + 4*n + 2*mm, c + 2, c + 3))
                A("v_mov_b64 %s, %s\nv_mov_b64 %s, %s" % (v(c, 2), v(32 + 2*n, 2), v(c + 2, 2), v(32 + 2*n, 2)))
    if opt.get("pk1", 1):
        A("s_waitcnt vmcnt(9)")
        do_pack()
    ST(5)
    A("s_waitcnt vmcnt(0)")
    A("v_cmp_ne_u32 vcc, s27, v49\ns_nop 4\ns_cbranch_vccz L_F3OK")
    poll(48, "s28", 49, sleep=opt.get("sl3", 3))
    A("L_F3OK:")
    for m in range(8): z_load(m)
    if not opt.get("pk1", 1): do_pack()
    zero(ACC + 32, 96)
    A("s_waitcnt vmcnt(8)")
    ST(6)
    A("s_mov_b32 s5, 0")
    A("s_setprio %d" % (2 if opt.get("hi", 0) else opt.get("gprio", 0)))
    A("L_SLOOP:")
    if opt.get("hi", 0):
        A("s_cmp_lg_u32 s5, %d\ns_cbranch_scc1 L_SP2\ns_setprio 0\nL_SP2:" % opt["hi"])
    A("s_add_u32 s6, s6, 1\ns_and_b32 s6, s6, 7\ns_lshl_b32 s33, s6, 14\ns_add_u32 s33, s33, s0")
    G2 = opt.get("g2", 1)
    if G2:
        order = [("z", 0)]*2 + [("d", 0)]*4 + [("z", 1)]*2 + [("d", 0)]*4 + [x for m in range(2, 8) for x in [("z", m)]*2]
    else:
        order = [("d", 0)]*8 + [x for m in range(8) for x in [("z", m)]*2]
    def younger(tag, issued):
        last = max(i for i, x in enumerate(order) if x == tag)
        return len(order) - 1 - last + issued
    def w_frags():
        A("s_waitcnt vmcnt(%d)" % younger(("d", 0), 0))
        for n in range(4):
            for p in range(2):
                A("ds_read_b128 %s, v%d offset:%d" % (v(WSP + 8*n + 4*p, 4), VX[p], 2048*n))
    def s_mfma(m, n):
        c = v(ACC + 16*m + 4*n, 4)
        for p in range(2):
            A("v_mfma_f32_16x16x32_bf16 %s, %s, %s, %s" % (c, v(ZR + 8*m + 4*p, 4), v(WSP + 8*n + 4*p, 4), c))
    w_frags()
    if not G2:
        A("s_waitcnt lgkmcnt(0)")
        sp_dma()
        for m in range(8):
            A("s_waitcnt vmcnt(22)")
            A(".p2align 3")
            for n in range(4): s_mfma(m, n)
            z_load(m)
    else:
        A("s_lshl_b32 s31, s6, 7\ns_add_u32 s31, s31, s3\ns_add_u32 s32, s31, 131072\ns_mov_b32 m0, s30")
        cnt = 0
        def zl(m, p):
            return "buffer_load_dwordx4 %s, v%d, s[16:19], s33 offen offset:%d sc1" % (v(ZR + 8*m + 4*p, 4), 9 + (m >> 1), 2048*(m & 1) + 1024*p)
        for m in range(8):
            A("s_waitcnt vmcnt(%d)" % younger(("z", m), cnt))
            if m == 2: A("s_add_u32 m0, s30, 4096")
            A(".p2align 3")
            fill = [zl(m - 1, 0), zl(m - 1, 1)] if m else []
            if m in (1, 2): fill += ["buffer_load_dwordx4 v%d, s[12:15], s%d offen offset:%d lds" % (5 + q, 30 + m, 1024*q) for q in range(4)]
            for n in range(4):
                if m == 0: A("s_waitcnt lgkmcnt(%d)\ns_nop 0" % (6 - 2*n))
                c = v(ACC + 16*m + 4*n, 4)
                for p in range(2):
                    A("v_mfma_f32_16x16x32_bf16 %s, %s, %s, %s" % (c, v(ZR + 8*m + 4*p, 4), v(WSP + 8*n + 4*p, 4), c))
                for _ in range(2 if len(fill) > 4 - n else 1):
                    if fill: A(fill.pop(0)); cnt += 1
        z_load(7)
    A("s_add_u32 s5, s5, 1\ns_cmp_lt_u32 s5, 7\ns_cbranch_scc1 L_SLOOP")
    WHR = (96, 160, 176, 112, 192, 208, 224)
    def wc_base(first_step_expr):
        A("s_mul_i32 s29, s26, 44\n%s\ns_add_u32 s29, s29, s32\ns_lshl_b32 s29, s29, 12\ns_add_u32 s29, s29, 0x%x" % (first_step_expr, WS_WC))
    def wc_load(dst):
        for m in range(4):
            A("buffer_load_dwordx4 %s, v%d, s[16:19], s29 offen offset:%d sc1" % (v(dst + 4*m, 4), VL16, 1024*m))
        A("s_add_u32 s29, s29, 4096")
    A("s_setprio %d" % opt.get("gprio2", 2))
    w_frags()
    A("v_and_b32 v8, 15, v1\nv_lshlrev_b32 v8, 7, v8\ns_lshl_b32 s28, s26, 11\ns_add_u32 s28, s28, 0x%x" % FL_F6)
    A("buffer_load_dword v9, v8, s[16:19], s28 offen sc1")
    A("v_add_u32 v5, s30, v%d\ns_lshl_b32 s32, s7, 14\ns_add_u32 s32, s32, 32768\nv_add_u32 v6, s32, v%d" % (VL16, VL16))
    for r in range(1, 4):
        A("s_sub_u32 s32, s7, %d\ns_and_b32 s32, s32, 3" % r)
        A("s_lshl_b32 s32, s32, %d\ns_add_u32 s32, s32, %d\nv_add_u32 v%d, s32, v%d" % ((13, L_G, 9 + r, VL16) if r == 1 else (14, 32768 + 8192*(r - 2), 9 + r, VL16)))
    wc_base("s_mul_i32 s32, s7, 7")
    A("s_waitcnt lgkmcnt(0)")
    A("s_setprio %d" % opt.get("gprio", 0))
    for mu in (1, 2, 3, 0):
        r = (mu - 1) % 4
        if mu == 3:
            A("s_setprio %d" % opt.get("gprio2", 2))
            A("s_waitcnt vmcnt(0)")
            A("v_cmp_ne_u32 vcc, s27, v9")
            lds_wait(L_CNTKV + 24, 0x01010101, 7)
            A("s_cbranch_vccz L_F6OK")
            poll(8, "s28", 9)
            A("L_F6OK:")
            A("s_setprio %d" % opt.get("gprio4", 0))
        for mm in range(2):
            m = 2*mu + mm
            if mu in (1, 2): A("s_waitcnt vmcnt(%d)" % (2*(7 - m) + 1))
            A(".p2align 3")
            for n in range(4):
                s_mfma(m, n)
                q = 4*mm + n
                if r:
                    A("ds_write_b128 v%d, %s offset:%d" % (5 if r == 1 else 6, v(ACC + 32*r + 4*q, 4), 1024*q + (8192 if r == 3 else 0)))
                if r >= 2 and q in (0, 2, 4):
                    wc_load(WHR[3*(r - 2) + q//2])
        if r: A("s_waitcnt lgkmcnt(0)")
    A("s_setprio %d" % opt.get("gprio2", 2))
    arrive(L_CNTR)
    ST(7)
    wc_load(WHR[6])
    lds_wait(L_CNTR, 12, 7)
    def r_read(r, dst):
        for q in range(8): A("ds_read_b128 %s, v%d offset:%d" % (v(dst + 4*q, 4), 9 + r, 1024*q))
    def r_add(src):
        for i in range(16): A("v_pk_add_f32 %s, %s, %s" % (v(ACC + 2*i, 2), v(ACC + 2*i, 2), v(src + 2*i, 2)))
    r_read(2, 32)
    A("s_waitcnt lgkmcnt(4)")
    r_read(3, 64)
    A("s_waitcnt lgkmcnt(8)")
    r_add(32)
    A("s_waitcnt lgkmcnt(4)")
    r_read(1, 32)
    A("s_waitcnt lgkmcnt(8)")
    r_add(64)
    A("s_waitcnt lgkmcnt(0)")
    arrive(L_CNTR)
    r_add(32)
    ST(8)
    A("v_and_b32 v5, 15, v1\nv_lshlrev_b32 v5, 4, v5\nv_bfe_u32 v6, v1, 4, 1\nv_lshl_add_u32 v5, v6, 9, v5\nv_lshrrev_b32 v6, 5, v1\nv_lshl_add_u32 v5, v6, 8, v5")
    A("s_mul_i32 s31, s25, 44\ns_lshl_b32 s32, s4, 2\ns_add_u32 s32, s32, s7\ns_add_u32 s31, s31, s32\ns_lshl_b32 s31, s31, 12\ns_add_u32 s31, s31, 0x%x" % WS_ACT)
    for n in range(4):
        T = 48 + 4*n
        for i in range(4): A("v_lshlrev_b32 v%d, 16, v%d\nv_and_b32 v%d, 0xffff0000, v%d" % (32 + 2*i, 16 + 4*n + i, 33 + 2*i, 16 + 4*n + i))
        for mm in range(2):
            c = ACC + 16*mm + 4*n
            for i in range(2): A("v_pk_mul_f32 %s, %s, %s" % (v(c + 2*i, 2), v(c + 2*i, 2), v(32 + 4*mm + 2*i, 2)))
        for mm in range(2):
            c = ACC + 16*mm + 4*n
            A("v_cvt_pk_bf16_f32 v%d, v%d, v%d\nv_cvt_pk_bf16_f32 v%d, v%d, v%d" % (T + 2*mm, c, c + 1, T + 2*mm + 1, c + 2, c + 3))
        A("s_nop 1")
        A("v_permlane16_swap_b32 v%d, v%d\nv_permlane16_swap_b32 v%d, v%d" % (T, T + 2, T + 1, T + 3))
        A("buffer_store_dwordx4 %s, v5, s[16:19], s31 offen offset:%d sc1" % (v(T, 4), 1024*n))
    A("s_lshl_b32 s31, s25, 12\ns_lshl_b32 s32, s32, 7\ns_add_u32 s31, s31, s32\ns_add_u32 s31, s31, 0x%x" % FL_F4)
    def wo_stage():
        wc_base("s_lshl_b32 s32, s7, 1\ns_add_u32 s32, s32, 36")
        A("s_lshl_b32 s33, s7, 14\ns_add_u32 s33, s33, 32768")
        for k in range(4):
            A("s_add_u32 m0, s33, %d\ns_nop 0" % (4096*k))
            for m in range(4):
                A("buffer_load_dwordx4 v%d, s[16:19], s29 offen offset:%d sc1 lds" % (VL16, 1024*m))
            A("s_add_u32 s29, s29, 4096" if k != 1 else "s_sub_u32 s29, s29, %d" % (9*4096))
        A("v_add_u32 v23, s33, v%d" % VL16)
    lds_wait(L_CNTR, 16, 7)
    A("s_waitcnt vmcnt(0)")
    set_flag("s31", 6)
    wo_stage()
    A("s_branch L_OUT")
    A("L_G7:")
    A("s_sub_u32 s32, s30, 32768\ns_and_b32 s3, s2, 7")
    wr_setup(16, "s32")
    A("s_cmp_lg_u32 s7, 0\ns_cbranch_scc1 L_G7N")
    srd(A, 12, P_GW, P_GW + 1, 1024)
    A("v_lshrrev_b32 v16, 4, v1\nv_lshlrev_b32 v16, 4, v16")
    for st in range(16):
        A("buffer_load_dwordx4 %s, v16, s[12:15], 0 offen offset:%d" % (v(64 + 4*st, 4), 64*st))
    A("v_add_u32 v%d, %d, v%d\nv_xor_b32 v%d, 64, v%d" % (VX[0], L_X, VXB, VX[1], VX[0]))
    zero(ACC, 16)
    def g_reads(sb):
        for p in range(2):
            for n in range(4):
                A("ds_read_b128 %s, v%d offset:%d" % (v((32, 160)[sb & 1] + 16*p + 4*n, 4), VX[p], 2048*n + 8192*sb))
    g_reads(0)
    nonce_get(28)
    for sb in range(8):
        A("s_waitcnt lgkmcnt(0)")
        if sb < 7: g_reads(sb + 1)
        for n in range(4):
            for p in range(2):
                A("v_mfma_f32_16x16x32_bf16 %s, %s, %s, %s" % (v(ACC + 4*n, 4), v(64 + 8*sb + 4*p, 4), v((32, 160)[sb & 1] + 16*p + 4*n, 4), v(ACC + 4*n, 4)))
    A("s_nop 7")
    for n in range(4): A("v_mul_f32 v%d, %s, v%d" % (16 + n, f32(-LOG2E), ACC + 4*n))
    for n in range(4): A("v_exp_f32 v%d, v%d" % (16 + n, 16 + n))
    for n in range(4): A("v_add_f32 v%d, 1.0, v%d" % (16 + n, 16 + n))
    for n in range(4): A("v_rcp_f32 v%d, v%d" % (16 + n, 16 + n))
    A("v_lshlrev_b32 v20, 2, v1\ns_lshl_b32 s29, s25, 8\ns_add_u32 s29, s29, 0x%x" % WS_G)
    A("s_mov_b32 exec_lo, 0xffff\ns_mov_b32 exec_hi, 0")
    for n in range(4):
        A("buffer_store_dword v%d, v20, s[16:19], s29 offen offset:%d sc1" % (16 + n, 64*n))
    A("s_mov_b64 exec, -1")
    A("s_lshl_b32 s28, s25, 7\ns_add_u32 s28, s28, 0x%x" % FL_F0)
    A("s_waitcnt vmcnt(0)")
    set_flag("s28", 16)
    A("s_branch L_G7X")
    A("L_G7N:")
    nonce_get(28)
    A("L_G7X:")
    arrive(L_CNTG)
    def job_pf(j0, j1, depth):
        for j in range(j0, j1):
            A("s_add_u32 s32, s33, %d" % ((j % PP)*(64//PP)*4096 + (j // PP)*PP*128 if PP <= 8 else j*8192))
            A("buffer_load_dword v20, v19, s[12:15], s32 offen")
            A("s_waitcnt vmcnt(%d)" % depth)
    srd(A, 12, P_WSP, P_WSP + 1, 2048*2048*2)
    PP = opt.get("pp", 2)
    lg = PP.bit_length() - 1
    A("v_lshrrev_b32 v19, %d, v1\nv_lshlrev_b32 v19, 12, v19\nv_and_b32 v18, %d, v1\nv_lshl_add_u32 v19, v18, 7, v19" % (lg, PP - 1))
    A("s_lshl_b32 s32, s25, 18\ns_lshl_b32 s33, s7, %d\ns_add_u32 s33, s33, s32" % (10 if PP <= 8 else 16))
    def job_wt():
        A("s_lshl_b32 s20, s25, 2\ns_add_u32 s20, s20, s7\ns_and_b32 s21, s20, 7\ns_lshr_b32 s20, s20, 3\ns_mov_b32 s22, s20")
        A("s_mov_b32 s28, 1024\ns_lshl_b32 s29, s21, 7")
        w_setup(16)
        A("L_WT:")
        srd(A, 8, P_WOUT, P_WOUT + 1, 896*512*2)
        A("s_lshl_b32 s31, s22, 15")
        A("s_cmp_lt_u32 s22, 28\ns_cbranch_scc1 L_WT2")
        srd(A, 8, P_WO, P_WO + 1, 512*512*2)
        A("s_sub_u32 s31, s31, %d" % (28*32768))
        A("L_WT2:")
        w_dma(0, False)
        A("s_mul_i32 s31, s21, 44\ns_add_u32 s31, s31, s22\ns_lshl_b32 s31, s31, 12\ns_add_u32 s31, s31, 0x%x" % WS_WC)
        A("s_waitcnt vmcnt(0)")
        for l in w_reads(32, 0): A(l)
        A("s_waitcnt lgkmcnt(0)")
        for m in range(4):
            A("buffer_store_dwordx4 %s, v%d, s[16:19], s31 offen offset:%d sc1" % (v(32 + 4*m, 4), VL16, 1024*m))
        A("s_add_u32 s22, s22, 16\ns_cmp_lt_u32 s22, 44\ns_cbranch_scc1 L_WT")
        A("s_lshl_b32 s31, s21, 11\ns_lshl_b32 s32, s20, 7\ns_add_u32 s31, s31, s32\ns_add_u32 s31, s31, 0x%x" % FL_F6)
        A("s_waitcnt vmcnt(0)")
        set_flag("s31", 16)
    def job_help():
        if NS:
            HS, HO, HN, HQ, HK0, HK, HV = (16, 32), (48, 64), (80, 96), (112, 116), 120, 128, 160
            A("s_lshr_b32 s20, s3, 1\ns_lshl_b32 s20, s20, 2\ns_lshr_b32 s32, s2, 6\ns_add_u32 s20, s20, s32")
            A("s_bfe_u32 s21, s2, 0x30003\ns_sub_u32 s21, s21, 3\ns_lshl_b32 s21, s21, 2\ns_add_u32 s21, s21, s7")
            A("s_lshl_b32 s22, s20, 16\ns_add_u32 s28, s22, 0x%x\ns_add_u32 s29, s28, %d" % (WS_K, (64 - NS)*1024))
            zero(HV, 8*NS)
            A("s_mov_b32 exec_lo, 0x00110000\ns_mov_b32 exec_hi, 0x00110000")
            A("v_mov_b32 v124, 0x3f803f80\nv_mov_b32 v125, 0x3f803f80")
            for i in range(0, 8*NS, 2): A("v_mov_b64 %s, v[124:125]" % v(HV + i, 2))
            A("s_mov_b64 exec, -1")
            A("v_and_b32 v124, 15, v1\nv_lshlrev_b32 v124, 4, v124\nv_lshrrev_b32 v125, 5, v1\nv_lshl_add_u32 v124, v125, 8, v124")
            A("v_mov_b32 v126, 0xdddddddd")
            A("buffer_load_dwordx4 %s, v%d, s[16:19], s28 offen sc1" % (v(HK0, 4), VL16))
            for k in range(NS):
                A("buffer_load_dwordx4 %s, v%d, s[16:19], s29 offen offset:%d sc1" % (v(HK + 4*k, 4), VL16, 1024*k))
            A("s_add_u32 s29, s29, 0x%x" % (WS_V - WS_K))
            A("s_mov_b32 exec_lo, 0xffff\ns_mov_b32 exec_hi, 0xffff")
            for k in range(2*NS):
                A("buffer_load_dwordx4 %s, v124, s[16:19], s29 offen offset:%d sc1" % (v(HV + 4*k, 4), 512*k))
            A("s_mov_b64 exec, -1")
            A("s_mov_b32 s5, 0")
            A("L_HELP:")
            A("s_lshl_b32 s32, s21, 11\ns_add_u32 s32, s32, s22")
            A("buffer_load_dwordx4 %s, v%d, s[16:19], s32 offen sc1" % (v(HQ[0], 4), VL16))
            A("buffer_load_dwordx4 %s, v%d, s[16:19], s32 offen offset:1024 sc1" % (v(HQ[1], 4), VL16))
            A("s_lshl_b32 s31, s20, 5\ns_add_u32 s31, s31, s21\ns_lshl_b32 s31, s31, 13\ns_add_u32 s31, s31, 0x%x" % WS_Z1)
            A("s_waitcnt vmcnt(0)")
            for sd in range(2):
                A("v_mfma_f32_32x32x16_bf16 %s, %s, %s, 0" % (v(HS[sd], 16), v(HK0, 4), v(HQ[sd], 4)))
            zero(HO[0], 32)
            for sd in range(2):
                A("v_max3_f32 v%d, v%d, v%d, v%d" % (6 + 2*sd, HS[sd], HS[sd] + 1, HS[sd] + 2))
                for i in range(3, 15, 2):
                    A("v_max3_f32 v%d, v%d, v%d, v%d" % (6 + 2*sd, 6 + 2*sd, HS[sd] + i, HS[sd] + i + 1))
                A("v_max_f32 v%d, v%d, v%d" % (6 + 2*sd, 6 + 2*sd, HS[sd] + 15))
            A("v_mov_b32 v7, v6\nv_mov_b32 v5, v8\ns_nop 1")
            A("v_permlane32_swap_b32 v6, v7\nv_permlane32_swap_b32 v8, v5\ns_nop 1")
            A("v_max_f32 v6, v6, v7\nv_max_f32 v8, v8, v5\nv_sub_f32 v6, 0, v6\nv_sub_f32 v124, 0, v8\nv_mov_b32 v7, v6\nv_mov_b32 v125, v124")
            for i in range(0, 16, 2): A("v_mov_b64 %s, v[6:7]\nv_mov_b64 %s, v[124:125]" % (v(HN[0] + i, 2), v(HN[1] + i, 2)))
            A("s_nop 1")
            for k in range(NS):
                for sd in range(2):
                    A("v_mfma_f32_32x32x16_bf16 %s, %s, %s, %s" % (v(HS[sd], 16), v(HK + 4*k, 4), v(HQ[sd], 4), v(HN[sd], 16)))
                A("s_nop 11")
                for sd in range(2):
                    for i in range(16): A("v_exp_f32 v%d, v%d" % (HS[sd] + i, HS[sd] + i))
                    A("s_nop 1")
                    for hf in range(2):
                        A("v_smfmac_f32_32x32x32_bf16 %s, %s, %s, v126" % (v(HO[sd], 16), v(HV + 8*k + 4*hf, 4), v(HS[sd] + 8*hf, 8)))
            A("s_nop 11")
            A("v_mov_b32 v%d, v%d" % (HO[0] + 9, HO[1] + 8))
            for q in range(4):
                A("buffer_store_dwordx4 %s, v%d, s[16:19], s31 offen offset:%d sc1" % (v(HO[q >> 1] + 4*(q & 1), 4), VL16, 1024*q))
            A("s_add_u32 s32, s31, 4096")
            A("buffer_store_dwordx2 %s, v%d, s[16:19], s32 offen sc1" % (v(HO[0] + 8, 2), VL16))
            A("s_add_u32 s31, s31, 6144")
            A("s_waitcnt vmcnt(0)")
            set_flag("s31", 5)
            A("s_add_u32 s21, s21, 4\ns_add_u32 s5, s5, 1\ns_cmp_lt_u32 s5, 3\ns_cbranch_scc1 L_HELP")
    WTE = opt.get("wte", 4)
    if WTE == 1:
        lds_wait(L_CNTA, 0x01010101, 16, sleep=2)
        lds_wait(L_CNTG, 4, 16, sleep=2)
        job_wt()
    lds_wait(L_CNTKV + 4*opt.get('wtw', 0), 0x01010101, 16, sleep=16)
    if WTE >= 2:
        job_pf(0, WTE, 0); job_wt(); job_pf(WTE, 8, 0)
    else:
        job_pf(0, 8, opt.get("pfd", 0))
    if WTE == 0: job_wt()
    job_help()
    A("v_and_b32 v24, 15, v1\nv_lshlrev_b32 v24, 7, v24")
    A("s_lshl_b32 s28, s26, 11\ns_add_u32 s28, s28, 0x%x" % FL_F6)
    poll(24, "s28", 25, sleep=32)
    wc_base("s_mul_i32 s32, s7, 7")
    for k in range(7): wc_load(WHR[k])
    lds_wait(L_CNTKV + 24, 0x01010101, 16, sleep=16)
    wo_stage()
    lds_wait(L_CNTKV + 4*opt.get("iw", 8), 0x01010101, 16, sleep=16)
    A("L_OUT:")
    ST(9)
    OA = (128, 144, 64, 80)
    HRR = [24 + 4*k for k in range(10)] + [240 + 4*k for k in range(4)]
    NR = 14
    for nu in range(4):
        A("s_add_u32 s32, s7, %d\ns_and_b32 s32, s32, 3\ns_lshl_b32 s32, s32, 10\nv_add_u32 v%d, s32, v%d" % (nu, 16 + nu, VL16))
    A("s_mul_i32 s33, s25, 44\ns_mul_i32 s32, s7, 7\ns_add_u32 s33, s33, s32\ns_lshl_b32 s33, s33, 12\ns_add_u32 s33, s33, 0x%x" % WS_ACT)
    A("v_min_u32 v20, 6, v1\nv_add_u32 v20, s32, v20\nv_lshlrev_b32 v20, 7, v20")
    A("s_mov_b32 exec_lo, 0")
    A("v_and_b32 v20, 3, v1\nv_bfe_u32 v21, v1, 2, 1\nv_lshl_add_u32 v20, v21, 4, v20\ns_lshl_b32 s32, s7, 2\nv_add_u32 v20, s32, v20")
    A("v_lshlrev_b32 v20, 7, v20\nv_add_u32 v20, 0x%x, v20" % (FL_F5 - FL_F4))
    A("s_mov_b32 exec_lo, -1")
    A("s_lshl_b32 s28, s25, 12\ns_add_u32 s28, s28, 0x%x" % FL_F4)
    poll(20, "s28", 21, sleep=opt.get("sl4", 3))
    ST(10)
    vq2 = []
    def vw2(tag):
        last = max(i for i, x in enumerate(vq2) if x == tag)
        A("s_waitcnt vmcnt(%d)" % (len(vq2) - 1 - last))
    def a_load(f, dst):
        vq2.append(("a", f))
        A("buffer_load_dwordx4 %s, v%d, s[16:19], s33 offen sc1" % (v(dst, 4), 16 + (f & 3)))
        if (f & 3) == 3: A("s_add_u32 s33, s33, 4096")
    for f in range(NR): a_load(f, HRR[f])
    A("s_setprio %d" % opt.get("gprio3", 0))
    OB = (24, 192)
    A("s_lshl_b32 s32, s7, 2\nv_mov_b32 v22, s32")
    def o_load(hf):
        A("s_mov_b32 s33, s%d" % (22 + hf))
        for f in range(8): a_load(f, OB[hf] + 4*f)
    A("s_mul_i32 s22, s25, 44\ns_lshl_b32 s32, s7, 1\ns_add_u32 s22, s22, s32\ns_add_u32 s22, s22, 36\ns_lshl_b32 s22, s22, 12\ns_add_u32 s22, s22, 0x%x" % WS_ACT)
    A("s_sub_u32 s23, s22, %d" % (8*4096))
    HD = opt.get("hdefer", 4)
    for f in range(28):
        st, nu = f >> 2, f & 3
        if f == HD: lds_wait(L_CNTD, 1, 21, sleep=2, va=22)
        vw2(("a", f))
        for m in range(4):
            c = v(OA[nu] + 4*m, 4)
            A("v_mfma_f32_16x16x32_bf16 %s, %s, %s, %s" % (c, v(WHR[st] + 4*m, 4), v(HRR[f % NR], 4), c if st else "0"))
        if f + NR < 28: a_load(f + NR, HRR[f % NR])
        if f >= 14 and (f & 1) and (f - 15)//2 < 4:
            k = (f - 15)//2
            if k == 3: A("s_waitcnt lgkmcnt(8)")
            for m in range(4): A("ds_read_b128 %s, v23 offset:%d" % (v(WHR[k] + 4*m, 4), 4096*k + 1024*m))
        if f == 21: o_load(0)
        if f == 23: o_load(1)
    A("s_setprio 2")
    A("s_waitcnt lgkmcnt(0)")
    arrive(L_CNTX)
    A("v_and_b32 v20, 6, v1\nv_lshlrev_b32 v20, 10, v20\nv_and_b32 v21, 1, v1\nv_lshl_add_u32 v20, v21, 9, v20")
    srd(A, 12, P_OUT, P_OUT + 1, 2048*512*2)
    for nu in range(1, 4):
        A("s_add_u32 s32, s7, %d\ns_and_b32 s32, s32, 3\ns_mul_i32 s32, s32, 12288\ns_add_u32 s32, s32, %d\nv_add_u32 v%d, s32, v%d" % (nu, 4096*(nu - 1), 8 + nu, VL16))
    A("s_mul_i32 s32, s7, 12288\nv_add_u32 v8, s32, v%d" % VL16)
    if opt.get("otr", 1):
        A("v_lshrrev_b32 v6, 3, v1\nv_and_b32 v7, 7, v1\nv_lshlrev_b32 v7, 4, v7\nv_lshl_add_u32 v5, v6, 10, v7")
        A("v_mul_u32_u24 v13, 144, v6\nv_add3_u32 v13, v13, v7, s30")
        A("v_and_b32 v6, 15, v1\nv_mul_u32_u24 v12, 144, v6\nv_lshrrev_b32 v6, 4, v1\nv_lshlrev_b32 v6, 3, v6\nv_add3_u32 v12, v12, v6, s30")
    else:
        A("v_and_b32 v5, 15, v1\nv_lshlrev_b32 v5, 10, v5\nv_bfe_u32 v6, v1, 4, 1\nv_lshl_add_u32 v5, v6, 5, v5\nv_lshrrev_b32 v6, 5, v1\nv_lshl_add_u32 v5, v6, 4, v5")
    A("s_lshl_b32 s31, s25, 16\ns_lshl_b32 s32, s7, 14\ns_add_u32 s31, s31, s32\ns_lshl_b32 s32, s26, 7\ns_add_u32 s31, s31, s32")
    ST(11)
    def o_mfma(hf):
        for nu in (1, 2, 3, 0):
            for m in range(4):
                c = v(OA[nu] + 4*m, 4)
                for st in range(2):
                    A("v_mfma_f32_16x16x32_bf16 %s, %s, %s, %s" % (c, v(WHR[2*hf + st] + 4*m, 4), v(OB[hf] + 16*st + 4*nu, 4), c))
                if hf == 1 and nu != 1:
                    pn = {2: 1, 3: 2, 0: 3}[nu]
                    A("ds_write_b128 v%d, %s offset:%d" % (8 + pn, v(OA[pn] + 4*m, 4), 1024*m))
    def o_check(hf):
        L = "L_OC%d" % hf
        b = OB[hf]
        A(L + ":")
        A("s_waitcnt vmcnt(%d)" % (8 if hf == 0 else 0))
        A("v_max3_u32 v21, v%d, v%d, v%d\nv_max3_u32 v22, v%d, v%d, v%d" % (b, b + 1, b + 2, b + 3, b + 4, b + 5))
        for i in range(6, 30, 4):
            A("v_max3_u32 v21, v21, v%d, v%d\nv_max3_u32 v22, v22, v%d, v%d" % (b + i, b + i + 1, b + i + 2, b + i + 3))
        A("v_max3_u32 v21, v21, v%d, v%d\nv_max_u32 v21, v21, v22" % (b + 30, b + 31))
        A("v_cmp_eq_u32 vcc, -1, v21")
        A("s_add_u32 s34, s34, 1\ns_cmp_ge_u32 s34, %d\ns_cbranch_scc1 %s_x" % (SPIN_MAX // 8, L))
        A("s_cbranch_vccz %s_x" % L)
        A(L + "_s:")
        A("buffer_load_dword v21, v20, s[16:19], s%d offen sc1" % (22 + hf))
        A("s_waitcnt vmcnt(0)")
        A("v_cmp_eq_u32 vcc, -1, v21")
        A("s_add_u32 s34, s34, 1\ns_cmp_ge_u32 s34, %d\ns_cbranch_scc1 %s_x" % (SPIN_MAX // 8, L))
        A("s_cbranch_vccz %s_r" % L)
        A("s_sleep %d\ns_branch %s_s" % (opt.get("sl5", 1), L))
        A(L + "_r:")
        o_load(hf)
        if hf == 0: o_load(1)
        A("s_branch %s" % L)
        A(L + "_x:")
    A("s_mov_b32 s34, 0")
    o_check(0)
    o_mfma(0)
    o_check(1)
    ST(12)
    A("s_barrier")
    o_mfma(1)
    A("s_waitcnt lgkmcnt(0)")
    A("s_barrier")
    for j in range(12):
        A("ds_read_b128 %s, v8 offset:%d" % (v(192 + 4*j, 4), 1024*j))
    for j in range(3):
        A("s_waitcnt lgkmcnt(%d)" % (8 - 4*j))
        for i in range(8):
            A("v_pk_add_f32 %s, %s, %s" % (v(OA[0] + 2*i, 2), v(OA[0] + 2*i, 2), v(192 + 16*j + 2*i, 2)))
    FL = {0: "", 1: " nt", 2: " sc1", 3: " sc1 nt"}[opt.get("ofl", 2)]
    if opt.get("otr", 1):
        for m in range(4):
            A("v_cvt_pk_bf16_f32 v%d, v%d, v%d\nv_cvt_pk_bf16_f32 v%d, v%d, v%d" % (24 + 2*m, OA[0] + 4*m, OA[0] + 4*m + 1, 25 + 2*m, OA[0] + 4*m + 2, OA[0] + 4*m + 3))
            A("ds_write_b64 v12, %s offset:%d" % (v(24 + 2*m, 2), 32*m))
        A("s_waitcnt lgkmcnt(0)")
        A("ds_read_b128 v[32:35], v13\nds_read_b128 v[36:39], v13 offset:%d" % (8*144))
        A("s_add_u32 s32, s31, 8192")
        A("s_waitcnt lgkmcnt(1)")
        A("buffer_store_dwordx4 v[32:35], v5, s[12:15], s31 offen" + FL)
        A("s_waitcnt lgkmcnt(0)")
        A("buffer_store_dwordx4 v[36:39], v5, s[12:15], s32 offen" + FL)
    else:
        for i in range(8): A("v_cvt_pk_bf16_f32 v%d, v%d, v%d" % (24 + i, OA[0] + 2*i, OA[0] + 2*i + 1))
        A("s_nop 1")
        for mp in range(2):
            T = 24 + 4*mp
            A("v_permlane16_swap_b32 v%d, v%d\nv_permlane16_swap_b32 v%d, v%d" % (T, T + 2, T + 1, T + 3))
            A("buffer_store_dwordx4 %s, v5, s[12:15], s31 offen offset:%d%s" % (v(T, 4), 64*mp, FL))
    A("L_FIN:")
    ST.end(24)
    A("L_END:")
    A("s_endpgm")

def build(stamps=False, opt=None):
    ref = open("gated_mix__softmax_full_mha__mixer_gmlp__prompt.s.ref").read().split("\n")
    hdr = [l for l in ref if l.startswith(";") and "@launch" not in l]
    out = "\n".join(hdr) + "\n; @launch grid=(256,1,1) block=(512,1,1) lds=163840\n"
    out += '.amdgcn_target "amdgcn-amd-amdhsa--gfx950"\n.text\n.globl %s\n' % KNAME
    A = Asm()
    gen(A, stamps, opt)
    txt = A.text()
    if (opt or {}).get("sc1only", 1): txt = txt.replace("sc0 sc1", "sc1")
    out += txt + '.section .rodata,"a"\n' + kdesc(KNAME, 256, 100, 256)
    return out
if __name__ == "__main__":
    import sys
    opt = dict((a_.split("=")[0], int(a_.split("=")[1])) for a_ in sys.argv[2:] if "=" in a_)
    open(sys.argv[1], "w").write(build("--stamps" in sys.argv, opt))
```
